```python
import torch

def _softmax(x, axis=-1):
    return torch.softmax(x, dim=axis)
def _gelu(x):
    return torch.nn.functional.gelu(x, approximate="tanh")
def _silu(x):
    return torch.nn.functional.silu(x)
def _sigmoid(x):
    return torch.sigmoid(x)
def _layernorm(x, axis=-1, eps=1e-5):
    m = x.mean(dim=axis, keepdim=True)
    v = x.var(dim=axis, keepdim=True, unbiased=False)
    return (x - m) / torch.sqrt(v + eps)
def _scatter_add(tgt, idx, src, axis=0):
    return tgt.clone().index_add_(axis, idx, src)
def _segment_sum(src, seg, n):
    out = torch.zeros((n,) + src.shape[1:], dtype=src.dtype)
    return out.index_add_(0, seg, src)
def _pad(x, pw):
    flat = tuple(v for pair in reversed(pw) for v in pair)
    return torch.nn.functional.pad(x, flat)

kernel_name = 'parallel_sum__sliding_local_dilated__glu_gated_swiglu__prompt'

def setup_inputs():

    _w = (lambda a: (lambda t: t.to(torch.bfloat16) if t.is_floating_point() else t)(torch.as_tensor(a)))
    def _A_setup():
        B, S, D = 1, 2048, 512
        return {
            "x": _w((lambda *s: torch.randn(*s, dtype=torch.bfloat16) * 0.05)(B, S, D)),
            "wqkv": _w((lambda *s: torch.randn(*s, dtype=torch.bfloat16) * 0.05)(D, 3 * D)),
            "wo": _w((lambda *s: torch.randn(*s, dtype=torch.bfloat16) * 0.05)(D, D)),
        }
    _A_in = _A_setup()

    def _B_setup():
        B, S, D, F = 1, 2048, 512, 1792
        return {
            "x": _w((lambda *s: torch.randn(*s, dtype=torch.bfloat16) * 0.05)(B, S, D)),
            "w1": _w((lambda *s: torch.randn(*s, dtype=torch.bfloat16) * 0.8)(D, F) * (2.0 / D) ** 0.5),
            "w3": _w((lambda *s: torch.randn(*s, dtype=torch.bfloat16) * 0.8)(D, F) * (2.0 / D) ** 0.5),
            "w2": _w((lambda *s: torch.randn(*s, dtype=torch.bfloat16) * 0.8)(F, D) * (2.0 / F) ** 0.5),
        }
    _B_in = _B_setup()

    return {
        "A_x": _A_in["x"],
        "A_wqkv": _A_in["wqkv"],
        "A_wo": _A_in["wo"],
        "B_x": _B_in["x"],
        "B_w1": _B_in["w1"],
        "B_w3": _B_in["w3"],
        "B_w2": _B_in["w2"],
    }

def reference(A_x, A_wqkv, A_wo, B_x, B_w1, B_w3, B_w2):
    def _A_ref(x, wqkv, wo):
        B, S, D = x.shape
        H = 32; Dh = D // H
        W, dil = 8, 2
        qkv = (lambda x, *d: x.permute(*d))((x @ wqkv).reshape(B, S, 3, H, Dh), 2, 0, 3, 1, 4)
        q, k, v = qkv[0], qkv[1], qkv[2]
        scale = Dh ** -0.5
        pos = torch.arange(S)
        off = torch.arange(W) * dil
        idx = pos[:, None] - off[None, :]
        mask = idx >= 0
        idx_c = torch.where(mask, idx, 0).reshape(-1)
        kg = k[:, :, idx_c, :].reshape(B, H, S, W, Dh)
        vg = v[:, :, idx_c, :].reshape(B, H, S, W, Dh)
        logits = torch.einsum("bhsd,bhswd->bhsw", q, kg) * scale
        logits = torch.where(mask[None, None, :, :], logits, -1e9)
        attn = _softmax(logits, axis=-1)
        o = torch.einsum("bhsw,bhswd->bhsd", attn, vg)
        return (lambda x, *d: x.permute(*d))(o, 0, 2, 1, 3).reshape(B, S, D) @ wo

    def _B_ref(x, w1, w3, w2):
        gate = torch.einsum("bsd,df->bsf", x, w1)
        up = torch.einsum("bsd,df->bsf", x, w3)
        h = _silu(gate) * up
        out = torch.einsum("bsf,fd->bsd", h, w2)
        return out

    x = A_x
    xn = _layernorm(x, axis=-1)
    return x + _A_ref(xn, A_wqkv, A_wo) + _B_ref(xn, B_w1, B_w3, B_w2)
```

```python
import re

REG = re.compile(r'(?<![\w.])([vas])(?:(\d+)|\[(\d+):(\d+)\])(?![\w])')
TRANS = ('v_exp_f32', 'v_log_f32', 'v_rcp_f32', 'v_rsq_f32', 'v_sqrt_f32')

def regs_of(tok):
    out = []
    tok = tok.strip()
    if tok in ('vcc',): return [('s', 'vcc')]
    if tok in ('vcc_lo', 'vcc_hi'): return [('s', 'vcc')]
    if tok == 'm0': return [('s', 'm0')]
    if tok == 'exec': return [('s', 'exec')]
    for m in REG.finditer(tok):
        k = m.group(1)
        if m.group(2) is not None: out.append((k, int(m.group(2))))
        else: out.extend((k, i) for i in range(int(m.group(3)), int(m.group(4)) + 1))
    return out

class Ins:
    __slots__ = ('text', 'op', 'w', 'r', 'kind', 'passes', 'srcc', 'srcab', 'dpp', 'states', 'wide', 'data')
    def __init__(self, text):
        self.text = text
        t = text.split(';')[0].strip()
        sp = t.split(None, 1)
        op = sp[0]; self.op = op
        base = re.sub(r'_(e32|e64|dpp|sdwa)$', '', op)
        rest = sp[1] if len(sp) > 1 else ''
        ops = [o.strip() for o in rest.split(',')] if rest else []
        if ops:
            last = ops[-1].split()
            ops[-1] = last[0] if last else ''
            mods = ' '.join(last[1:])
        else: mods = ''
        self.w = []; self.r = []; self.passes = 0; self.srcc = []; self.srcab = []; self.dpp = False
        self.states = 1; self.wide = False; self.data = []
        R = [regs_of(o) for o in ops]
        flat = lambda L: [x for l in L for x in l]
        if op.startswith('v_mfma'):
            self.kind = 'mfma'
            self.passes = 2 if '4x4x4' in op else (8 if '32x32' in op else 4)
            self.w = R[0]; self.srcab = R[1] + R[2]; self.srcc = R[3]; self.r = self.srcab + self.srcc
        elif op.startswith('v_'):
            self.kind = 'trans' if base in TRANS else 'valu'
            self.dpp = op.endswith('_dpp')
            if base.startswith('v_permlane'):
                self.kind = 'perm'; self.w = R[0] + R[1]; self.r = R[0] + R[1]
            elif base.startswith('v_cmp'):
                self.w = R[0]; self.r = flat(R[1:])
            elif base in ('v_fmac_f32', 'v_dot2c_f32_bf16'):
                self.w = R[0]; self.r = flat(R)
            elif base in ('v_readfirstlane_b32', 'v_readlane_b32'):
                self.kind = 'rfl'; self.w = R[0]; self.r = flat(R[1:])
            elif base in ('v_add_co_u32', 'v_addc_co_u32'):
                self.w = R[0] + R[1]; self.r = flat(R[2:])
            else:
                self.w = R[0]; self.r = flat(R[1:])
                if self.dpp: self.r = self.r + R[0]
        elif op.startswith('ds_read'):
            self.kind = 'ds'; self.w = R[0]; self.r = flat(R[1:])
        elif op.startswith('ds_write'):
            self.kind = 'ds'; self.r = flat(R)
        elif op.startswith('buffer_load'):
            self.kind = 'vmem'
            if re.search(r'\blds\b', mods): self.r = flat(R) + [('s', 'm0')]; self.kind = 'dma'
            else: self.w = R[0]; self.r = flat(R[1:])
        elif op.startswith('buffer_store') or op.startswith('buffer_atomic'):
            self.kind = 'vmem'; self.r = flat(R); self.data = R[0]
            self.wide = op.endswith('x4') or op.endswith('x3')
        elif op == 's_nop':
            self.kind = 'nop'; self.states = int(ops[0]) + 1
        elif op.startswith('s_load') or op.startswith('s_memtime') or op.startswith('s_memrealtime'):
            self.kind = 'smem'; self.w = R[0]; self.r = flat(R[1:])
        elif op.startswith('s_cmp') or op.startswith('s_bitcmp') or op in ('s_waitcnt', 's_barrier', 's_endpgm', 's_setprio', 's_sleep') or op.startswith('s_cbranch') or op == 's_branch':
            self.kind = 'salu'; self.r = flat(R)
        elif op.startswith('s_'):
            self.kind = 'salu'; self.w = R[0]; self.r = flat(R[1:])
        else:
            raise ValueError('unknown op ' + text)

VALUK = ('valu', 'trans', 'perm', 'rfl')
def need_states(p, c):
    n = 0
    pw = set(p.w); cr = set(c.r); cw = set(c.w)
    if p.kind in VALUK:
        vw = {x for x in pw if x[0] in 'va'}; sw = {x for x in pw if x[0] == 's'}
        if c.kind == 'mfma' and vw & cr: n = max(n, 2)
        if c.kind in VALUK and c.dpp and vw & cr: n = max(n, 2)
        if c.kind == 'perm' and vw & cr: n = max(n, 2)
        if c.kind == 'rfl' and vw & cr: n = max(n, 1)
        if p.kind == 'trans' and c.kind in ('valu', 'perm', 'rfl', 'mfma', 'vmem', 'ds') and vw & cr: n = max(n, 1)
        if sw & cr:
            if c.kind in VALUK: n = max(n, 2)
            if c.kind in ('vmem', 'dma'): n = max(n, 5)
            if c.kind in ('salu', 'smem'): n = max(n, 2)
    if p.kind == 'mfma':
        big = {2: 5, 4: 8, 8: 12}[p.passes]
        if c.kind == 'mfma':
            if pw & set(c.srcab): n = max(n, big)
            if pw & set(c.srcc):
                if list(p.w) == list(c.srcc) and p.passes == c.passes: n = max(n, 2 if p.passes == 2 else 0)
                else: n = max(n, {2: 4, 4: 6, 8: 10}[p.passes])
            elif pw & cw: n = max(n, big)
        elif c.kind in VALUK or c.kind in ('vmem', 'dma', 'ds'):
            if pw & (cr | cw): n = max(n, big)
        if c.kind in VALUK and set(p.srcc) & cw: n = max(n, {2: 1, 4: 3, 8: 7}[p.passes])
        if c.kind in ('ds', 'vmem') and set(p.srcc) & cw: n = max(n, {2: 1, 4: 3, 8: 7}[p.passes])
    if p.kind == 'salu':
        if ('s', 'm0') in pw and c.kind == 'dma': n = max(n, 1)
    if p.kind == 'vmem' and p.wide and set(p.data) & cw:
        n = max(n, 2 if c.kind in VALUK or c.kind == 'mfma' else 1)
    return n

class Asm:
    def __init__(self):
        self.out = []
        self.hist = []
        self.lg = []
        self.vm = []
        self.nid = 0
        self.smem_pending = False
        self.nnop = 0
        self.ninst = 0
    def raw(self, s): self.out.append(s)
    def comment(self, s): self.out.append('    ; ' + s)
    def fork(self):
        a = Asm(); a.hist = list(self.hist); a.lg = list(self.lg); a.vm = list(self.vm); a.nid = self.nid
        a.smem_pending = self.smem_pending
        return a
    def _push(self, ins):
        need = 0; dist = 0
        for p in reversed(self.hist):
            k = need_states(p, ins) - dist
            if k > need: need = k
            dist += p.states
            if dist >= 20: break
        while need > 0:
            k = min(need, 16)
            nop = Ins(f's_nop {k-1}'); self.hist.append(nop); self.out.append('    ' + nop.text); need -= k; self.nnop += 1
        self.hist.append(ins); self.hist = self.hist[-40:]
        self.out.append('    ' + ins.text); self.ninst += 1
    def _wait(self, vm=None, lg=None):
        parts = []
        if vm is not None:
            vm = min(vm, 63)
            if len(self.vm) > vm:
                parts.append(f'vmcnt({vm})'); self.vm = self.vm[len(self.vm) - vm:] if vm else []
        if lg is not None:
            lg = min(lg, 15)
            if len(self.lg) > lg or (lg == 0 and self.smem_pending):
                parts.append(f'lgkmcnt({lg})'); self.lg = self.lg[len(self.lg) - lg:] if lg else []
                if lg == 0: self.smem_pending = False
        if parts: self._push(Ins('s_waitcnt ' + ' '.join(parts)))
    def wait(self, vm_tok=None, lg0=False, vm0=False):
        vm = None
        if vm0: vm = 0
        elif vm_tok is not None:
            toks = vm_tok if isinstance(vm_tok, (list, tuple)) else [vm_tok]
            idx = [i for i, (t, _) in enumerate(self.vm) if t in toks]
            if idx: vm = len(self.vm) - 1 - max(idx)
        self._wait(vm=vm, lg=0 if lg0 else None)
    def __call__(self, text, track=True):
        ins = Ins(text)
        touched = set(ins.r) | set(ins.w)
        vm = lg = None
        for i, (t, w) in enumerate(self.vm):
            if w & touched: vm = len(self.vm) - 1 - i
        for i, (t, w) in enumerate(self.lg):
            if w & touched: lg = len(self.lg) - 1 - i
        if lg is not None and self.smem_pending: lg = 0
        if vm is not None or lg is not None: self._wait(vm=vm, lg=lg)
        self._push(ins)
        tok = None
        if track:
            self.nid += 1; tok = self.nid
            if ins.kind in ('vmem', 'dma'): self.vm.append((tok, set(ins.w)))
            elif ins.kind == 'ds': self.lg.append((tok, set(ins.w)))
            elif ins.kind == 'smem': self.smem_pending = True
        return tok
    def label(self, name):
        self.out.append(name + ':')
    def settle(self, n=12):
        self._push(Ins(f's_nop {n-1}'))
    def text(self): return '\n'.join(self.out) + '\n'
```

```python
import sys, struct, math
from asmlib import Asm, Ins

KN = 'parallel_sum__sliding_local_dilated__glu_gated_swiglu__prompt_kernel'
def f2u(x): return struct.unpack('<I', struct.pack('<f', x))[0]

HALO = 0xA00000; FLAGS = 0xC00000; WSSZ = 0xD00000; STAMP = 0xD00000
OOB = 0x40000000
LOG2E = 1.4426950408889634

sX, sW0, sW1, sW2, sB2, sBo, sWS, sDBG, sOUT = 24, 28, 32, 36, 40, 44, 48, 52, 56
(s_w, s_r, s_c, s_kp, s_rb, s_ty, s_rb64, s_ct, s_t0, s_t1, s_t2, s_t3,
 s_wo0, s_wo1, s_wo2,
 s_wm,
 s_bm,
 s_b2, s_b2h, s_bo,
 s_hst,
 s_fl,
 s_pl,
 s_hl,
 s_hms,
 s_ha,
 s_al,
 s_cnt, s_nl2e, s_xo) = range(60, 90)
s_m = 4
s_st = 90
def srd(b): return f's[{b}:{b+3}]'

ACC0, ACC1, WF = 0, 32, 64
v_l16, v_tr0, v_tr1, v_trh, v_xe, v_xo, v_wv0, v_wv1, v_wv2, v_bv, v_fl, v_pl, v_P, v_one, v_hv = range(96, 111)
v_KP = 112
v_T = 120
v_P2 = 111
def vr(b, n): return f'v[{b}:{b+n-1}]' if n > 1 else f'v{b}'
def ar(b, n): return f'a[{b}:{b+n-1}]'

RING = 6
def bslot(i):
    i %= 10
    return 49152 + 16384*i if i < 7 else {7: 32768, 8: 0, 9: 16384}[i]
BSTEP = [('w2',128,0),('w2',160,0),('w2',320,0),('w2',352,0),('w2',192,0),('w2',224,0),('w2',384,0),('w2',416,0),
         ('w2',0,0),('w2',32,0),('w2',64,0),('w2',96,0),('w2',256,1),('w2',288,1),('wo',0,0),('wo',32,0),('wo',64,0),('wo',96,0)]

class Gen:
    def __init__(self, diag=False, stop=None, opt=None):
        self.diag = diag; self.stop = stop; self.opt = opt or {}
        self.slow = []; self.nlab = 0; self.nstamp = 0
    def dstamp(self, a, i):
        if not self.diag: return
        a(f's_memtime s[{s_st}:{s_st+1}]'); a.wait(lg0=True)
        a(f's_mov_b32 s{s_st+2+i}, s{s_st}')
    def poll_issue(self, a, vdst, vaddr, sr, soff):
        return a(f'buffer_load_dword v{vdst}, v{vaddr}, {srd(sr)}, {soff} offen sc1')
    def poll_check(self, a, vdst, vaddr, sr, soff, mask):
        self.nlab += 1; n = self.nlab
        a(f'v_cmp_eq_u32 vcc, 1, v{vdst}')
        a(f's_and_b32 s{s_t0}, vcc_lo, {mask}')
        a(f's_cmp_eq_u32 s{s_t0}, {mask}')
        a(f's_cbranch_scc0 L_slow{n}')
        a.label(f'L_ok{n}')
        S = [f'L_slow{n}:', f'    s_mov_b32 s{s_cnt}, 0', f'L_spin{n}:',
             f'    buffer_load_dword v{vdst}, v{vaddr}, {srd(sr)}, {soff} offen sc1', '    s_waitcnt vmcnt(0)',
             f'    v_cmp_eq_u32 vcc, 1, v{vdst}', '    s_nop 3', f'    s_and_b32 s{s_t0}, vcc_lo, {mask}', f'    s_cmp_eq_u32 s{s_t0}, {mask}',
             f'    s_cbranch_scc1 L_ok{n}', f'    s_add_u32 s{s_cnt}, s{s_cnt}, 1', f'    s_cmp_lt_u32 s{s_cnt}, 0x8000',
             f'    s_cbranch_scc1 L_spin{n}', f'    s_branch L_ok{n}']
        self.slow += S
    def flag(self, a, stage):
        return a(f'buffer_store_dword v{v_one}, v{v_fl}, {srd(sWS)}, s{s_fl} offen offset:{stage*128} sc1')
    def wdma(self, a, slab):
        ch = 0 if slab < 16 else (1 if slab < 32 else 2)
        so = [s_wo0, s_wo1, s_wo2][ch]; vv = [v_wv0, v_wv1, v_wv2][ch]; sr = [sW0, sW1, sW2][ch]
        step = self.wstep[ch]
        L = [f's_add_u32 m0, s{s_wm}, {(slab % RING)*8192}',
             ('dma', f'buffer_load_dwordx4 v{vv}, {srd(sr)}, s{so} offen lds', ('W', slab)),
             f's_add_u32 s{so}, s{so}, {step}']
        return L
    def bdma(self, i, n):
        mat, ro, half = BSTEP[i]
        base = {('w2',0): s_b2, ('w2',1): s_b2h, ('wo',0): s_bo}[(mat, half)]
        off = ro*1024 + n*(16384 if half else 8192)
        sr = sB2 if mat == 'w2' else sBo
        return [f's_add_u32 m0, s{s_bm}, {bslot(i) + n*1024}', f's_add_u32 s{s_t1}, s{base}, {off}',
                ('dma', f'buffer_load_dwordx4 v{v_bv}, {srd(sr)}, s{s_t1} offen lds', ('B', i, n))]
    def aload(self, n):
        i, t = n >> 1, n & 1
        return [f's_add_u32 s{s_t2}, s{s_al}, {t*73728 + i*1024}',
                ('dma', f'buffer_load_dwordx4 {ar((n % 32)*4, 4)}, v{v_l16}, {srd(sWS)}, s{s_t2} offen sc1', ('A', n))]
    def do(self, a, it):
        if isinstance(it, str): a(it)
        elif callable(it): it(a)
        elif it[0] == 'dma': self.tok[it[2]] = a(it[1])
        else: raise ValueError(it)
    @staticmethod
    def weight(it):
        if isinstance(it, str):
            if it.startswith('s_'): return 0
            return 2 if it.split()[0].replace('_e32','').replace('_e64','') in ('v_exp_f32','v_rcp_f32','v_rsq_f32') else 1
        return 0
    def prologue(self, a):
        a('s_cmp_ge_u32 s2, 256'); a('s_cbranch_scc1 L_end')
        a('s_load_dwordx16 s[4:19], s[0:1], 0'); a('s_load_dwordx4 s[20:23], s[0:1], 64')
        if self.diag: a(f's_memrealtime s[{s_st}:{s_st+1}]'); a(f's_memtime s[{s_st+2}:{s_st+3}]')
        a('v_lshrrev_b32 v1, 6, v0'); a('v_and_b32 v0, 63, v0')
        a(f'v_readfirstlane_b32 s{s_w}, v1')
        a(f's_and_b32 s{s_t0}, s2, 7'); a(f's_lshr_b32 s{s_t1}, s2, 3')
        a(f's_and_b32 s{s_kp}, s{s_t0}, 3'); a(f's_and_b32 s{s_ty}, s{s_t1}, 3')
        a(f's_lshr_b32 s{s_rb}, s{s_t0}, 2'); a(f's_lshl_b32 s{s_rb}, s{s_rb}, 3'); a(f's_lshr_b32 s{s_t2}, s{s_t1}, 2'); a(f's_add_u32 s{s_rb}, s{s_rb}, s{s_t2}')
        a(f's_lshl_b32 s{s_rb64}, s{s_t0}, 2'); a(f's_lshr_b32 s{s_t2}, s{s_t1}, 3'); a(f's_add_u32 s{s_rb64}, s{s_rb64}, s{s_t2}')
        a(f's_and_b32 s{s_ct}, s{s_t1}, 7')
        a(f's_lshr_b32 s{s_r}, s{s_w}, 1'); a(f's_and_b32 s{s_c}, s{s_w}, 1')
        g, c16, T0, T1, T2 = v_T, v_T+1, v_T+2, v_T+3, v_T+4
        a(f'v_lshrrev_b32 v{g}, 4, v0'); a(f'v_and_b32 v{c16}, 15, v0')
        a(f'v_lshlrev_b32 v{v_l16}, 4, v0')
        a(f'v_lshlrev_b32 v{T0}, 10, v{g}'); a(f'v_lshl_add_u32 v{v_P}, v{c16}, 4, v{T0}')
        a(f's_lshl_b32 s{s_xo}, s{s_rb}, 17'); a(f's_lshl_b32 s{s_t0}, s{s_w}, 14'); a(f's_add_u32 s{s_xo}, s{s_xo}, s{s_t0}')
        a(f'v_mov_b32 v{v_hv}, v0')
        a.wait(lg0=True)
        if self.diag: a(f's_mov_b32 s3, s{s_st}'); a(f's_mov_b32 s0, s{s_st+2}')
        a(f's_mov_b32 s{sX}, s4'); a(f's_and_b32 s{sX+1}, s5, 0xffff'); a(f's_mov_b32 s{sX+2}, {2048*1024}'); a(f's_mov_b32 s{sX+3}, 0x20000')
        for q in range(4):
            a(f's_add_u32 s{s_t0}, s{s_ty}, {q}'); a(f's_and_b32 s{s_t0}, s{s_t0}, 3'); a(f's_lshl_b32 s{s_t0}, s{s_t0}, 12'); a(f's_add_u32 s{s_t0}, s{s_t0}, s{s_xo}')
            for i in range(4):
                a(f'buffer_load_dwordx4 {vr(16*q+4*i,4)}, v{v_P}, {srd(sX)}, s{s_t0} offen offset:{256*i}')
        lane = v_hv
        def mk(d, p, n):
            a(f's_mov_b32 s{d}, s{p}'); a(f's_and_b32 s{d+1}, s{p+1}, 0xffff'); a(f's_mov_b32 s{d+2}, {n}'); a(f's_mov_b32 s{d+3}, 0x20000')
        mk(sWS, 22, WSSZ + (0x100000 if self.diag else 0))
        a(f's_cmp_eq_u32 s{s_c}, 0'); a(f's_cselect_b32 s{sW1}, s12, s14'); a(f's_cselect_b32 s{sW1+1}, s13, s15')
        a(f's_and_b32 s{sW1+1}, s{sW1+1}, 0xffff'); a(f's_mov_b32 s{sW1+2}, {512*3584}'); a(f's_mov_b32 s{sW1+3}, 0x20000')
        a(f's_and_b32 s7, s7, 0xffff')
        a(f's_cmp_lt_u32 s{s_ty}, 2')
        for d in (sW0, sW2):
            a(f's_cselect_b32 s{d}, s6, s{sW1}'); a(f's_cselect_b32 s{d+1}, s7, s{sW1+1}'); a(f's_cselect_b32 s{d+2}, {512*3072}, s{sW1+2}'); a(f's_mov_b32 s{d+3}, 0x20000')
        a(f's_mov_b32 s{s_t3}, 3584'); a(f's_cselect_b32 s{s_t3}, 3072, s{s_t3}')
        a(f's_and_b32 s{s_t0}, s{s_r}, 1'); a(f's_lshl_b32 s{s_t0}, s{s_t0}, 2')
        a(f'v_and_b32 v{T0}, 1, v{g}'); a(f'v_lshlrev_b32 v{T0}, 1, v{T0}'); a(f'v_or_b32 v{T0}, s{s_t0}, v{T0}')
        a(f'v_and_b32 v{T1}, 7, v{lane}'); a(f'v_xor_b32 v{T0}, v{T0}, v{T1}'); a(f'v_lshlrev_b32 v{T0}, 4, v{T0}')
        a(f'v_lshrrev_b32 v{T2}, 3, v{lane}')
        a(f'v_mad_u32_u24 v{v_wv0}, v{T2}, s{s_t3}, v{T0}')
        a(f'v_mul_u32_u24 v{v_wv1}, 3584, v{T2}'); a(f'v_add_u32 v{v_wv1}, v{v_wv1}, v{T0}')
        a(f's_mul_i32 s{s_wo0}, s{s_r}, s{s_t3}'); a(f's_lshl_b32 s{s_wo0}, s{s_wo0}, 3')
        a(f's_lshl_b32 s{s_t0}, s{s_kp}, 1'); a(f's_add_u32 s{s_t0}, s{s_t0}, s{s_ty}'); a(f's_lshl_b32 s{s_t0}, s{s_t0}, 7')
        a(f's_lshl_b32 s{s_t1}, s{s_c}, 10'); a(f's_add_u32 s{s_t1}, s{s_t1}, s{s_t0}'); a(f's_add_u32 s{s_t1}, s{s_t1}, 1024')
        a(f's_mul_i32 s{s_t2}, s{s_kp}, 896')
        a(f's_mul_i32 s{s_cnt}, s{s_ty}, 384'); a(f's_add_u32 s{s_cnt}, s{s_cnt}, s{s_t2}'); a(f's_sub_u32 s{s_cnt}, s{s_cnt}, 512')
        a(f's_cmp_lt_u32 s{s_ty}, 2'); a(f's_cselect_b32 s{s_t1}, s{s_t1}, s{s_cnt}')
        a(f's_add_u32 s{s_wo0}, s{s_wo0}, s{s_t1}')
        a(f's_lshl_b32 s{s_wm}, s{s_c}, 12'); a(f's_lshl_b32 s{s_t1}, s{s_r}, 10'); a(f's_add_u32 s{s_wm}, s{s_wm}, s{s_t1}')
        a(f's_lshl_b32 s{s_wo2}, s{s_t3}, 5')
        a(f's_or_b32 s{s_t1}, s{s_kp}, s{s_ty}'); a(f's_cmp_lg_u32 s{s_t1}, 0'); a('s_cbranch_scc1 L_nolead')
        for i in range(4): a(f'v_mov_b32 v{WF+i}, 0')
        a(f's_lshl_b32 s{s_t1}, s{s_rb}, 13'); a(f's_lshl_b32 s{s_hl}, s{s_w}, 10'); a(f's_add_u32 s{s_t1}, s{s_t1}, s{s_hl}'); a(f's_add_u32 s{s_t1}, s{s_t1}, {FLAGS}')
        a(f'buffer_store_dwordx4 {vr(WF,4)}, v{v_l16}, {srd(sWS)}, s{s_t1} offen sc1', track=False)
        a('s_nop 1')
        a.label('L_nolead')
        for slab in range(4):
            a(f's_add_u32 m0, s{s_wm}, {slab*8192}')
            self.tok[('W', slab)] = a(f'buffer_load_dwordx4 v{v_wv0}, {srd(sW0)}, s{s_wo0} offen lds')
            a(f's_add_u32 s{s_wo0}, s{s_wo0}, s{s_wo2}')
        a(f's_mul_i32 s{s_wo1}, s{s_r}, {8*3584}')
        a(f's_lshl_b32 s{s_t1}, s{s_ty}, 7'); a(f's_add_u32 s{s_t1}, s{s_t1}, s{s_t2}')
        a(f's_add_u32 s{s_cnt}, s{s_cnt}, 128')
        a(f's_cmp_lt_u32 s{s_ty}, 2'); a(f's_cselect_b32 s{s_t1}, s{s_t1}, s{s_cnt}'); a(f's_add_u32 s{s_wo1}, s{s_wo1}, s{s_t1}')
        a(f's_lshl_b32 s{s_t1}, s{s_c}, 2'); a(f's_add_u32 s{s_t1}, s{s_t1}, s{s_r}'); a(f's_mul_i32 s{s_t1}, s{s_t1}, {8*3072}'); a(f's_add_u32 s{s_t1}, s{s_t1}, s{s_t0}')
        a(f's_mul_i32 s{s_cnt}, s{s_r}, {16*3584}'); a(f's_add_u32 s{s_cnt}, s{s_cnt}, s{s_t2}'); a(f's_lshl_b32 s{s_t3}, s{s_ty}, 6'); a(f's_add_u32 s{s_cnt}, s{s_cnt}, s{s_t3}'); a(f's_add_u32 s{s_cnt}, s{s_cnt}, {512-128}')
        a(f's_cmp_lt_u32 s{s_ty}, 2'); a(f's_cselect_b32 s{s_wo2}, s{s_t1}, s{s_cnt}')
        mk(sB2, 16, 1792*1024); mk(sBo, 8, 512*1024); mk(sDBG, 20, 256); mk(sOUT, 18, 2048*1024)
        a(f'v_lshrrev_b32 v{T0}, 5, v{lane}'); a(f'v_lshlrev_b32 v{T0}, 1, v{T0}'); a(f'v_and_b32 v{T1}, 3, v{lane}'); a(f'v_xor_b32 v{T0}, v{T0}, v{T1}'); a(f'v_lshlrev_b32 v{T0}, 4, v{T0}')
        a(f'v_lshrrev_b32 v{T2}, 2, v{lane}'); a(f'v_mul_u32_u24 v{v_wv2}, 3584, v{T2}'); a(f'v_add_u32 v{v_wv2}, v{v_wv2}, v{T0}')
        r4 = v_T+5; fz = v_T+6
        a(f'v_and_b32 v{r4}, 3, v{T2}')
        a(f'v_lshrrev_b32 v{fz}, 1, v{r4}'); a(f'v_and_b32 v{T0}, 1, v{g}'); a(f'v_lshl_or_b32 v{fz}, v{T0}, 1, v{fz}')
        a(f'v_lshl_add_u32 v{T2}, v{g}, 3, v{r4}')
        a(f's_lshl_b32 s{s_t0}, s{s_c}, 1')
        a(f'v_xor_b32 v{v_tr0}, s{s_t0}, v{fz}'); a(f'v_lshlrev_b32 v{v_tr0}, 5, v{v_tr0}'); a(f'v_lshl_add_u32 v{v_tr0}, v{T2}, 7, v{v_tr0}'); a(f'v_lshl_add_u32 v{v_tr0}, v{T1}, 3, v{v_tr0}')
        a(f'v_xor_b32 v{v_tr1}, 32, v{v_tr0}')
        a(f'v_xor_b32 v{v_trh}, s{s_c}, v{T0}'); a(f'v_lshlrev_b32 v{v_trh}, 5, v{v_trh}'); a(f'v_lshl_add_u32 v{v_trh}, v{T2}, 6, v{v_trh}'); a(f'v_lshl_add_u32 v{v_trh}, v{T1}, 3, v{v_trh}')
        a(f's_lshl_b32 s{s_t0}, s{s_r}, 11'); a(f's_add_u32 s{s_t0}, s{s_t0}, 32768')
        a(f'v_xor_b32 v{v_xe}, v{c16}, v{g}'); a(f'v_lshlrev_b32 v{v_xe}, 4, v{v_xe}'); a(f'v_lshl_add_u32 v{v_xe}, v{g}, 8, v{v_xe}'); a(f'v_add_u32 v{v_xe}, s{s_t0}, v{v_xe}')
        a(f'v_xor_b32 v{v_xo}, 64, v{v_xe}')
        a(f'v_and_b32 v{T0}, 7, v{lane}'); a(f'v_lshlrev_b32 v{T2}, 1, v{g}'); a(f'v_xor_b32 v{T0}, v{T0}, v{T2}'); a(f'v_lshlrev_b32 v{T0}, 4, v{T0}')
        a(f'v_lshrrev_b32 v{T2}, 3, v{lane}'); a(f'v_lshl_add_u32 v{v_bv}, v{T2}, 10, v{T0}'); a(f's_lshl_b32 s{s_t0}, s{s_ct}, 7'); a(f'v_add_u32 v{v_bv}, s{s_t0}, v{v_bv}')
        a(f's_lshl_b32 s{s_bm}, s{s_w}, 11')
        a(f's_mul_i32 s{s_t0}, s{s_r}, {448*1024}')
        a(f's_lshl_b32 s{s_t1}, s{s_c}, 14'); a(f's_add_u32 s{s_b2}, s{s_t0}, s{s_t1}')
        a(f's_lshl_b32 s{s_t2}, s{s_c}, 13'); a(f's_add_u32 s{s_b2h}, s{s_t0}, s{s_t2}')
        a(f's_lshl_b32 s{s_bo}, s{s_r}, 17'); a(f's_add_u32 s{s_bo}, s{s_bo}, s{s_t1}')
        a(f'v_mov_b32 v{T0}, {OOB}')
        a(f'v_cmp_eq_u32 vcc, 0, v{lane}'); a(f'v_cndmask_b32 v{v_fl}, v{T0}, v{lane}, vcc')
        a(f'v_lshlrev_b32 v{T2}, 2, v{lane}'); a(f'v_cmp_gt_u32 vcc, 16, v{lane}'); a(f'v_cndmask_b32 v{v_pl}, v{T0}, v{T2}, vcc')
        a(f'v_mov_b32 v{v_one}, 1')
        a(f's_lshl_b32 s{s_t0}, s{s_rb}, 2'); a(f's_add_u32 s{s_t0}, s{s_t0}, s{s_r}')
        a(f's_mul_i32 s{s_hst}, s{s_t0}, {2*73728}'); a(f's_mul_i32 s{s_t1}, s{s_kp}, {18*1024}'); a(f's_add_u32 s{s_hst}, s{s_hst}, s{s_t1}')
        a(f's_lshl_b32 s{s_t1}, s{s_ty}, 1'); a(f's_add_u32 s{s_t1}, s{s_t1}, s{s_c}')
        a(f's_lshl_b32 s{s_fl}, s{s_t0}, 2'); a(f's_add_u32 s{s_fl}, s{s_fl}, s{s_kp}'); a(f's_lshl_b32 s{s_fl}, s{s_fl}, 9'); a(f's_lshl_b32 s{s_t2}, s{s_t1}, 2')
        a(f's_add_u32 s{s_fl}, s{s_fl}, s{s_t2}'); a(f's_add_u32 s{s_fl}, s{s_fl}, {FLAGS}')
        a(f's_sub_u32 s{s_hl}, s{s_fl}, {2048-384}')
        a(f's_lshl_b32 s{s_t2}, s{s_kp}, 2'); a(f's_add_u32 s{s_t2}, s{s_t2}, s{s_t1}'); a(f's_lshl_b32 s{s_ha}, s{s_t0}, 4'); a(f's_add_u32 s{s_ha}, s{s_ha}, s{s_t2}')
        a(f's_lshl_b32 s{s_ha}, s{s_ha}, 11'); a(f's_add_u32 s{s_ha}, s{s_ha}, {HALO}')
        a(f's_cmp_eq_u32 s{s_t0}, 0'); a(f's_cselect_b32 s{s_hms}, 0, 1')
        a(f's_lshl_b32 s{s_t0}, s{s_rb64}, 1'); a(f's_add_u32 s{s_t0}, s{s_t0}, s{s_c}')
        a(f's_mul_i32 s{s_al}, s{s_t0}, {2*73728}'); a(f's_mul_i32 s{s_t1}, s{s_r}, {18*1024}'); a(f's_add_u32 s{s_al}, s{s_al}, s{s_t1}')
        a(f's_lshl_b32 s{s_pl}, s{s_t0}, 2'); a(f's_add_u32 s{s_pl}, s{s_pl}, s{s_r}'); a(f's_lshl_b32 s{s_pl}, s{s_pl}, 9'); a(f's_add_u32 s{s_pl}, s{s_pl}, {FLAGS}')
        a(f's_mov_b32 s{s_nl2e}, {hex(f2u(-LOG2E))}')
        M0r, M1r, ONE, WB = v_KP, v_KP+1, v_KP+2, v_KP+4
        for k, m in enumerate((0x2222222222222222, 0x4444444444444444, 0x8888888888888888, 0x1111111111111111)):
            a(f's_mov_b32 s{s_m+2*k}, {hex(m & 0xffffffff)}'); a(f's_mov_b32 s{s_m+2*k+1}, {hex(m >> 32)}')
        sm = lambda k: f's[{s_m+2*k}:{s_m+2*k+1}]'
        a(f'v_mov_b32 v{T0}, 0xffff'); a(f'v_mov_b32 v{T1}, 0xffff0000')
        a(f'v_cndmask_b32 v{M0r}, 0, v{T0}, {sm(3)}'); a(f'v_cndmask_b32 v{M0r}, v{M0r}, v{T1}, {sm(0)}')
        a(f'v_cndmask_b32 v{M1r}, 0, v{T0}, {sm(1)}'); a(f'v_cndmask_b32 v{M1r}, v{M1r}, v{T1}, {sm(2)}')
        a(f'v_mov_b32 v{ONE}, 0x3f803f80'); a(f'v_mov_b32 v{ONE+1}, 0x3f803f80')
        a(f'v_lshrrev_b32 v{T0}, 2, v{c16}'); a(f'v_lshlrev_b32 v{T0}, 13, v{T0}'); a(f'v_and_b32 v{T1}, 3, v{c16}'); a(f'v_lshl_add_u32 v{T0}, v{T1}, 8, v{T0}')
        a(f's_lshl_b32 s{s_t0}, s{s_w}, 10'); a(f's_add_u32 s{s_t0}, s{s_t0}, 32768'); a(f'v_add_u32 v{WB}, s{s_t0}, v{T0}')
        a(f'v_and_b32 v{T0}, 7, v{c16}'); a(f'v_xor_b32 v{T0}, v{T0}, v{g}'); a(f'v_lshlrev_b32 v{WB+3}, 4, v{T0}')
        self.dstamp(a, 0)
        S, Q = v_T, v_T+4
        for q in range(4):
            X = 16*q
            for u in range(8):
                xp = vr(X+2*u, 2)
                a(f'v_mfma_f32_4x4x4_16b_bf16 {vr(S,4)}, {vr(ONE,2)}, {xp}, {vr(S,4) if u else 0}')
                a(f'v_mfma_f32_4x4x4_16b_bf16 {vr(Q,4)}, {xp}, {xp}, {vr(Q,4) if u else 0}')
            a(f's_add_u32 s{s_t0}, s{s_ty}, {q}'); a(f's_and_b32 s{s_t0}, s{s_t0}, 3'); a(f's_lshl_b32 s{s_t0}, s{s_t0}, 6')
            a(f'v_xor_b32 v{WB+1}, s{s_t0}, v{WB+3}'); a(f'v_add_u32 v{WB+1}, v{WB+1}, v{WB}'); a(f'v_add_u32 v{WB+2}, 0x10000, v{WB+1}')
            for k in range(3): a(f'v_cndmask_b32 v{Q}, v{Q}, v{Q+1+k}, {sm(k)}')
            for ro in (8, 4, 2, 1):
                a(f'v_add_f32_dpp v{S}, v{S}, v{S} row_ror:{ro} row_mask:0xf bank_mask:0xf')
                a(f'v_add_f32_dpp v{Q}, v{Q}, v{Q} row_ror:{ro} row_mask:0xf bank_mask:0xf')
            a(f'v_mul_f32 v{S}, {hex(f2u(1/512))}, v{S}')
            a(f'v_mul_f32 v{S+1}, v{S}, v{S}')
            a(f'v_mov_b32 v{S+2}, {hex(f2u(1/512))}')
            a(f'v_fma_f32 v{Q}, v{Q}, v{S+2}, -v{S+1}')
            a(f'v_max_f32 v{Q}, 0, v{Q}'); a(f'v_add_f32 v{Q}, {hex(f2u(1e-5))}, v{Q}')
            a(f'v_rsq_f32 v{Q}, v{Q}')
            a(f'v_cvt_pk_bf16_f32 v{Q+1}, v{Q}, v{Q}')
            a(f'v_mul_f32_e64 v{S}, -v{S}, v{Q}')
            a(f'v_and_b32 v{Q+2}, 0xffff0000, v{Q+1}'); a(f'v_sub_f32 v{Q+2}, v{Q}, v{Q+2}')
            a(f'v_cvt_pk_bf16_f32 v{Q+3}, v{Q+2}, v{Q+2}')
            a(f'v_and_b32 v{Q}, v{M0r}, v{Q+1}'); a(f'v_and_b32 v{Q+1}, v{M1r}, v{Q+1}')
            a(f'v_and_b32 v{Q+2}, v{M0r}, v{Q+3}'); a(f'v_and_b32 v{Q+3}, v{M1r}, v{Q+3}')
            for k in (1, 2, 3): a(f'v_mov_b32 v{S+k}, v{S}')
            D = lambda u: WF + 4*u
            hi = lambda u: f'v_mfma_f32_4x4x4_16b_bf16 {vr(D(u),4)}, {vr(Q,2)}, {vr(X+2*u,2)}, {vr(S,4)}'
            lo = lambda u: f'v_mfma_f32_4x4x4_16b_bf16 {vr(D(u),4)}, {vr(Q+2,2)}, {vr(X+2*u,2)}, {vr(D(u),4)}'
            cv = lambda u: [f'v_cvt_pk_bf16_f32 v{X+2*u}, v{D(u)}, v{D(u)+1}', f'v_cvt_pk_bf16_f32 v{X+2*u+1}, v{D(u)+2}, v{D(u)+3}']
            wr = lambda i: f'ds_write_b128 v{WB+1+(i>>1)}, {vr(X+4*i,4)} offset:{(i&1)*32768}'
            for u in range(4): a(hi(u))
            for u in range(4): a(lo(u))
            for u in range(4, 8): a(hi(u))
            for u in range(4):
                a(lo(u+4))
                for x in cv(u): a(x)
                if u & 1: a(wr(u >> 1))
            for u in range(4, 8):
                for x in cv(u): a(x)
                if u & 1: a(wr(u >> 1))
        a.wait(vm_tok=[self.tok[('W', 0)]], lg0=True)
        a('s_barrier')
        self.dstamp(a, 1)
        a(f's_or_b32 s{s_t1}, s{s_kp}, s{s_ty}'); a(f's_or_b32 s{s_t1}, s{s_t1}, s{s_w}'); a(f's_cmp_lg_u32 s{s_t1}, 0'); a('s_cbranch_scc1 L_nolead2')
        a(f's_lshl_b32 s{s_t1}, s{s_rb}, 2')
        a(f'buffer_store_dword v{v_one}, v{v_fl}, {srd(sDBG)}, s{s_t1} offen sc1', track=False)
        a.label('L_nolead2')
    def wreads(self, s, typ):
        buf = WF + (s & 1)*16; base = (s % RING)*8192; L = []
        for f in range(4):
            p, tf = f >> 1, f & 1
            for rd in range(2):
                if s >= 32 and typ == 'B': addr, off = v_trh, base + p*4096 + tf*2048 + rd*256
                else: addr, off = (v_tr1 if tf else v_tr0), base + p*4096 + rd*512
                L.append(f'ds_read_b64_tr_b16 {vr(buf+4*f+2*rd,2)}, v{addr} offset:{off}')
        return L
    def xreads(self, s):
        L = []
        if s == 8: L += [f'v_add_u32 v{v_xe}, 0x10000, v{v_xe}']
        if s == 9: L += [f'v_add_u32 v{v_xo}, 0x10000, v{v_xo}']
        for t in range(2):
            L.append(f'ds_read_b128 {ar((2*s+t)*4,4)}, v{v_xo if s & 1 else v_xe} offset:{(s & 7)*8192 + t*1024}')
        return L
    def mfmas(self, s, typ):
        buf = WF + (s & 1)*16; L = []
        for f in range(4):
            p, tf = f >> 1, f & 1
            for t in range(2):
                w = vr(buf+4*f, 4)
                if s < 32:
                    ks = s & 15; first = ks == 0
                    if s < 16 and typ == 'A': acc = ACC0 + (16 if p == 0 else 0) + (tf*2+t)*4
                    else: acc = (ACC0 if s < 16 else ACC1) + (f*2+t)*4
                    swap = (s < 16 and typ == 'A' and p == 1)
                else:
                    u, cidx = (p, tf) if typ == 'A' else (tf, p)
                    ks = 2*(s-32) + u; first = ks == 0; acc = ACC0 + (cidx*2+t)*4; swap = False
                x = ar((2*ks+t)*4, 4)
                A, B = (x, w) if swap else (w, x)
                L.append(f'v_mfma_f32_16x16x32_bf16 {vr(acc,4)}, {A}, {B}, {0 if first else vr(acc,4)}')
        return L
    def silu_batch(self, G, U, O, T):
        L = [f'v_mul_f32 v{T+r}, s{s_nl2e}, v{G+r}' for r in range(4)]
        for r in range(4): L += [f'v_exp_f32 v{T+r}, v{T+r}', f'v_mul_f32 v{U+r}, v{G+r}, v{U+r}']
        L += [f'v_add_f32 v{T+r}, 1.0, v{T+r}' for r in range(4)]
        L += [f'v_rcp_f32 v{T+r}, v{T+r}' for r in range(4)]
        L += [f'v_mul_f32 v{U+r}, v{U+r}, v{T+r}' for r in range(4)]
        L += [f'v_cvt_pk_bf16_f32 v{O}, v{U}, v{U+1}', f'v_cvt_pk_bf16_f32 v{O+1}, v{U+2}, v{U+3}']
        return L
    def hstore(self, regs, t, istep, key):
        return [f's_add_u32 s{s_t3}, s{s_xo}, {t*73728 + istep*1024}',
                ('dma', f'buffer_store_dwordx4 {vr(regs,4)}, v{v_l16}, {srd(sWS)}, s{s_t3} offen sc1', key)]
    def ffn_epi(self, acc, istep, key):
        L = []
        for t in range(2):
            O = acc + t*4
            for tf in range(2):
                L += self.silu_batch(acc + (tf*2+t)*4, acc + ((2+tf)*2+t)*4, O + 2*tf, v_T + 4*tf)
            L += self.hstore(O, t, istep, (key, t))
        return L
    def kv_epi(self):
        L = []
        K = lambda hh, t: ACC0 + 16 + (hh*2+t)*4
        V = lambda hh, t: ACC0 + (hh*2+t)*4
        pk = lambda d, s: [f'v_cvt_pk_bf16_f32 v{d}, v{s}, v{s+1}', f'v_cvt_pk_bf16_f32 v{d+1}, v{s+2}, v{s+3}']
        L += pk(v_KP, K(0,1)) + pk(v_KP+2, K(1,1))
        L += [('dma', f'buffer_store_dwordx4 {vr(v_KP,4)}, v{v_l16}, {srd(sWS)}, s{s_ha} offen sc1', ('halo', 0))]
        L += pk(v_T, V(0,1)) + pk(v_T+2, V(1,1))
        L += [('dma', f'buffer_store_dwordx4 {vr(v_T,4)}, v{v_l16}, {srd(sWS)}, s{s_ha} offen offset:1024 sc1', ('halo', 1))]
        L += pk(v_KP+4, K(0,0)) + pk(v_KP+6, K(1,0))
        L += pk(16, V(0,1)) + pk(18, V(0,0)) + pk(24, V(1,0)) + pk(26, V(1,1))
        return L
    def step(self, a, mf, reads, misc, valu, quota, endwait, barrier=True):
        reads = list(reads); misc = list(misc)
        used = 0
        for k, m in enumerate(mf):
            a(m)
            for _ in range(2):
                if reads: self.do(a, reads.pop(0))
            if k >= 1 and misc:
                grp = misc.pop(0)
                for it in grp: self.do(a, it)
            if k < len(mf) - 1:
                lim = quota*(k+1)/(len(mf)-1)
                while valu and used + self.weight(valu[0]) <= lim + 0.01:
                    it = valu.pop(0); used += self.weight(it); self.do(a, it)
        for it in reads: self.do(a, it)
        for grp in misc:
            for it in grp: self.do(a, it)
        a.wait(vm_tok=[self.tok[k] for k in endwait if k in self.tok], lg0=True)
        if barrier: a('s_barrier')
    def p1(self, a, typ):
        self.wstep = [32*(3072 if typ == 'A' else 3584), 32*3584, 64*(3072 if typ == 'A' else 3584)]
        if typ == 'A': a(f'v_mov_b32 v{v_wv2}, v{v_wv0}')
        a(f's_and_b32 s{s_t0}, s{s_ty}, 1'); a(f's_lshl_b32 s{s_t0}, s{s_t0}, 1'); a(f's_add_u32 s{s_t0}, s{s_t0}, s{s_c}'); a(f's_lshl_b32 s{s_t0}, s{s_t0}, 10')
        a(f's_add_u32 s{s_xo}, s{s_hst}, s{s_t0}')
        for x in self.wreads(0, typ) + self.xreads(0) + self.xreads(1): a(x)
        a.wait(vm_tok=[self.tok[('W', 1)]], lg0=True); a('s_barrier')
        valu = []
        nb = 0
        for s in range(40):
            misc = []; reads = []
            if s < 39: reads += self.wreads(s+1, typ)
            if s + 2 < 16: reads += self.xreads(s+2)
            if s == 0: misc += [self.wdma(a, 4), self.wdma(a, 5)]
            if s + RING < 40: misc.append(self.wdma(a, s + RING))
            if s >= 2 and s % 2 == 0 and nb < 14: misc.append(self.bdma(nb >> 1, nb & 1)); nb += 1
            if s == 11: misc.append([lambda a: self.poll_issue(a, v_P, v_pl, sDBG, 0)])
            if s == 15: misc.append([lambda a: self.poll_check(a, v_P, v_pl, sDBG, 0, 0xffff)])
            quota = 16
            if s == 16:
                valu += self.kv_epi() if typ == 'A' else self.ffn_epi(ACC0, 0, 'h0')
            if 16 <= s < 32: quota = 12
            if typ == 'A' and s == 21: misc.append([lambda a: a.wait(vm_tok=self.tok[('halo', 1)]), lambda a: self.flag(a, 3)])
            if typ == 'B' and s == 31: misc.append([lambda a: a.wait(vm_tok=self.tok[('h0', 1)]), lambda a: self.flag(a, 0)])
            if s == 32:
                assert not valu
                valu += self.ffn_epi(ACC1, 8 if typ == 'A' else 4, 'h1')
                self.dstamp(a, 3)
            if s == 16: self.dstamp(a, 2)
            if s >= 32: quota = 17
            if typ == 'A' and s == 30: misc.append([lambda a: self.poll_issue(a, v_P2, v_pl, sWS, f's{s_hl}')])
            if typ == 'A' and s == 33:
                misc.append([lambda a: self.poll_check(a, v_P2, v_pl, sWS, f's{s_hl}', f's{s_hms}'),
                             f's_cmp_eq_u32 s{s_hms}, 0', f's_cselect_b32 s{s_t1}, {OOB}, s{s_ha}', f's_sub_u32 s{s_t1}, s{s_t1}, 32768',
                             f'buffer_load_dwordx4 {vr(28,4)}, v{v_l16}, {srd(sWS)}, s{s_t1} offen sc1',
                             f'buffer_load_dwordx4 {vr(20,4)}, v{v_l16}, {srd(sWS)}, s{s_t1} offen offset:1024 sc1'])
            if s == 35: misc.append([lambda a: self.poll_issue(a, v_P, v_pl, sWS, f's{s_pl}')])
            if s in (35, 36): misc.append(self.bdma(7, s-35))
            if s in (37, 38): misc.append(self.bdma(8, s-37))
            if s == 38: misc.append([lambda a: self.poll_check(a, v_P, v_pl, sWS, f's{s_pl}', 0xf0)] + sum((self.aload(n) for n in range(4)), []))
            if s == 39: misc += [self.bdma(9, 0), self.bdma(9, 1), sum((self.aload(n) for n in range(4, 8)), [])]
            self.step(a, self.mfmas(s, typ), reads, misc, valu, quota, [('W', s+2)], barrier=(s < 39))
        for it in valu: self.do(a, it)
        self.dstamp(a, 4)
    def half_epi(self, a):
        X = WF
        for t in range(2):
            for x in self.silu_batch(ACC0 + t*4, ACC0 + (2+t)*4, X + 2*t, v_T + 4*t): a(x)
            if t == 0:
                a.wait(vm_tok=self.tok[('h1', 1)]); self.flag(a, 1)
        a(f'v_permlane32_swap_b32 v{X}, v{X+2}'); a(f'v_permlane32_swap_b32 v{X+1}, v{X+3}')
        a(f'v_lshrrev_b32 v{v_T}, 5, v{v_hv}'); a(f'v_mul_u32_u24 v{v_T}, {73728-512}, v{v_T}'); a(f'v_add_u32 v{v_T}, v{v_T}, v{v_l16}')
        a(f's_and_b32 s{s_t0}, s{s_ty}, 1'); a(f's_lshl_b32 s{s_t0}, s{s_t0}, 1'); a(f's_add_u32 s{s_t0}, s{s_t0}, s{s_c}'); a(f's_lshl_b32 s{s_t0}, s{s_t0}, 9')
        a(f's_add_u32 s{s_t0}, s{s_t0}, s{s_hst}'); a(f's_add_u32 s{s_t0}, s{s_t0}, {12*1024}')
        self.tok['fin'] = a(f'buffer_store_dwordx4 {vr(X,4)}, v{v_T}, {srd(sWS)}, s{s_t0} offen sc1')
    def attention(self, a):
        cur = [0]*4; prv = [0]*4
        for l in range(64):
            t, g = l & 15, l >> 4
            for r in range(4):
                i = 4*g + r
                if (i ^ t) & 1: continue
                if i <= t: cur[r] |= 1 << l
                else: prv[r] |= 1 << l
        sm = lambda k: f's[{s_m+2*k}:{s_m+2*k+1}]'
        def setm(k, m): a(f's_mov_b32 s{s_m+2*k}, {hex(m & 0xffffffff)}'); a(f's_mov_b32 s{s_m+2*k+1}, {hex(m >> 32)}')
        for r in range(4): setm(r, cur[r]); setm(4+r, prv[r])
        setm(8, cur[0] | cur[1]); setm(9, cur[2] | cur[3])
        Mc, Mp, Mp0, Ac, Ap, ONES, NEG, HM = WF, WF+4, WF+8, WF+12, WF+14, WF+16, WF+20, WF+21
        a(f'v_mov_b32 v{NEG}, {hex(f2u(-1e30))}')
        for r in range(4): a(f'v_cndmask_b32 v{Mc+r}, v{NEG}, 0, {sm(r)}')
        for r in range(4): a(f'v_cndmask_b32 v{Mp+r}, v{NEG}, 0, {sm(4+r)}')
        a(f's_cmp_eq_u32 s{s_hms}, 0'); a(f's_cselect_b64 {sm(0)}, 0, -1')
        for r in range(4): a(f'v_cndmask_b32 v{Mp0+r}, v{NEG}, v{Mp+r}, {sm(0)}')
        Qa = lambda hh, t: ACC0 + (hh*2+t)*4
        units = [(0,0),(1,0),(0,1),(1,1)]
        for hh, t in units:
            q = Qa(hh, t); a(f'v_cvt_pk_bf16_f32 v{q}, v{q}, v{q+1}'); a(f'v_cvt_pk_bf16_f32 v{q+1}, v{q+2}, v{q+3}')
        Kc = lambda hh, t: v_KP + (4 if t == 0 else 0) + 2*hh
        Kp = lambda hh, t: 28 + 2*hh if t == 0 else Kc(hh, 0)
        Sg = lambda u: ACC1 + 8*u
        for u, (hh, t) in enumerate(units):
            a(f'v_mfma_f32_16x16x16_bf16 {vr(Sg(u)+4,4)}, {vr(Kc(hh,t),2)}, {vr(Qa(hh,t),2)}, {vr(Mc,4)}')
        for u, (hh, t) in reversed(list(enumerate(units))):
            a(f'v_mfma_f32_16x16x16_bf16 {vr(Sg(u),4)}, {vr(Kp(hh,t),2)}, {vr(Qa(hh,t),2)}, {vr(Mp0 if t == 0 else Mp,4)}')
        a.wait(vm_tok=self.tok[('h1', 1)]); self.flag(a, 1)
        a(f's_mov_b32 s{s_m+2}, 0xaaaaaaaa'); a(f's_mov_b32 s{s_m+3}, 0xaaaaaaaa')
        a(f'v_mov_b32 v{HM}, 0xffff'); a(f'v_mov_b32 v{NEG}, 0xffff0000'); a(f'v_cndmask_b32 v{HM}, v{HM}, v{NEG}, {sm(1)}')
        for d in range(2): a(f'v_cndmask_b32 v{Ac+d}, 0, v{HM}, {sm(8+d)}')
        for d in range(2): a(f'v_xor_b32 v{Ap+d}, v{HM}, v{Ac+d}')
        for i in range(4): a(f'v_mov_b32 v{ONES+i}, 0x3f803f80')
        m = [v_T+u for u in range(4)]
        for u in (3, 2, 1, 0):
            S = Sg(u)
            a(f'v_max3_f32 v{S}, v{S}, v{S+1}, v{S+4}'); a(f'v_max3_f32 v{S+2}, v{S+2}, v{S+3}, v{S+6}')
            a(f'v_max_f32 v{S}, v{S}, v{S+5}'); a(f'v_max_f32 v{S+2}, v{S+2}, v{S+7}')
            a(f'v_max_f32 v{m[u]}, v{S}, v{S+2}')
        c = 0.25*LOG2E
        a(f's_mov_b32 s{s_t0}, {hex(f2u(c))}')
        a(f'v_permlane32_swap_b32 v{m[2]}, v{m[3]}'); a(f'v_permlane32_swap_b32 v{m[0]}, v{m[1]}')
        a(f'v_max_f32 v{m[2]}, v{m[2]}, v{m[3]}'); a(f'v_max_f32 v{m[0]}, v{m[0]}, v{m[1]}')
        a(f'v_permlane16_swap_b32 v{m[0]}, v{m[2]}')
        a(f'v_max_f32 v{m[0]}, v{m[0]}, v{m[2]}')
        a(f'v_mul_f32 v{m[2]}, s{s_t0}, v{m[0]}'); a(f'v_mul_f32 v{m[0]}, s{s_t0}, v{m[0]}')
        a(f'v_permlane16_swap_b32 v{m[0]}, v{m[2]}')
        a(f'v_mov_b32 v{m[1]}, v{m[0]}'); a(f'v_mov_b32 v{m[3]}, v{m[2]}')
        a(f'v_permlane32_swap_b32 v{m[0]}, v{m[1]}'); a(f'v_permlane32_swap_b32 v{m[2]}, v{m[3]}')
        for u in range(4):
            S = Sg(u)
            a(f'v_fma_f32 v{S}, v{S}, s{s_t0}, -v{m[u]}'); a(f'v_fma_f32 v{S+2}, v{S+2}, s{s_t0}, -v{m[u]}')
        for u in range(4):
            S = Sg(u); a(f'v_exp_f32 v{S}, v{S}'); a(f'v_exp_f32 v{S+2}, v{S+2}')
        Vw = {(0,0): 18, (0,1): 16, (1,0): 22, (1,1): 24}
        for u, (hh, t) in enumerate(units):
            S = Sg(u); P = S + 4
            a(f'v_cvt_pk_bf16_f32 v{S}, v{S}, v{S}'); a(f'v_cvt_pk_bf16_f32 v{S+2}, v{S+2}, v{S+2}')
            first, second = (Ac, Ap) if hh == 0 else (Ap, Ac)
            a(f'v_and_b32 v{P}, v{first}, v{S}'); a(f'v_and_b32 v{P+1}, v{first+1}, v{S+2}')
            a(f'v_and_b32 v{P+2}, v{second}, v{S}'); a(f'v_and_b32 v{P+3}, v{second+1}, v{S+2}')
        for u, (hh, t) in enumerate(units):
            S = Sg(u); P = S + 4
            a(f'v_mfma_f32_16x16x32_bf16 {vr(S,4)}, {vr(ONES,4)}, {vr(P,4)}, 0')
            a(f'v_mfma_f32_16x16x32_bf16 {vr(Qa(hh,t),4)}, {vr(Vw[(hh,t)],4)}, {vr(P,4)}, 0')
        for u in range(4): a(f'v_rcp_f32 v{Sg(u)}, v{Sg(u)}')
        for t in range(2):
            O = WF + 24 + 4*t
            for hh in range(2):
                u = units.index((hh, t)); q = Qa(hh, t)
                for r in range(4): a(f'v_mul_f32 v{q+r}, v{q+r}, v{Sg(u)}')
                a(f'v_cvt_pk_bf16_f32 v{O+2*hh}, v{q}, v{q+1}'); a(f'v_cvt_pk_bf16_f32 v{O+2*hh+1}, v{q+2}, v{q+3}')
            for it in self.hstore(O, t, 14, 'fin'): self.do(a, it)
    def breads(self, i):
        buf = WF + (i & 1)*16; L = []
        TA = v_T
        for ct in range(4): L.append(f'v_add_u32 v{TA+ct}, {bslot(i)}, v{v_KP+ct}')
        for ct in range(4):
            for rd in range(2): L.append(f'ds_read_b64_tr_b16 {vr(buf+4*ct+2*rd,2)}, v{TA+ct} offset:{rd*2048}')
        return L
    def p3(self, a):
        lane = v_hv; T0, T1, T2, T3 = v_T+4, v_T+5, v_T+6, v_T+7
        a(f'v_lshrrev_b32 v{T0}, 2, v{lane}'); a(f'v_lshlrev_b32 v{T0}, 7, v{T0}'); a(f'v_and_b32 v{T1}, 3, v{lane}'); a(f'v_lshl_add_u32 v{T0}, v{T1}, 3, v{T0}')
        a(f'v_bfe_u32 v{T1}, v{lane}, 3, 2'); a(f'v_lshl_add_u32 v{T0}, v{T1}, 5, v{T0}'); a(f's_lshl_b32 s{s_t0}, s{s_r}, 12'); a(f'v_add_u32 v{v_KP}, s{s_t0}, v{T0}')
        for ct in (1, 2, 3): a(f'v_xor_b32 v{v_KP+ct}, {ct*32}, v{v_KP}')
        for x in self.breads(0): a(x)
        a.wait(lg0=True); a('s_barrier')
        self.dstamp(a, 5)
        XR = ACC0
        for i in range(18):
            misc = []; reads = self.breads(i+1) if i < 17 else []
            pre = reads[:4]; reads = reads[4:]
            for x in pre: a(x)
            if i + 10 < 18: misc += [self.bdma(i+10, 0), self.bdma(i+10, 1)]
            if i == 1:
                misc.append([lambda a: a.wait(vm_tok=self.tok['fin']), lambda a: self.flag(a, 2), f's_add_u32 s{s_pl}, s{s_pl}, 128',
                             lambda a: self.poll_issue(a, v_P, v_pl, sWS, f's{s_pl}')])
            if i == 3:
                misc.append([lambda a: self.poll_check(a, v_P, v_pl, sWS, f's{s_pl}', 0xff), lambda a: self.dstamp(a, 6)] + sum((self.aload(n) for n in range(8, 24)), []))
            if i == 6: misc.append([f's_add_u32 s{s_pl}, s{s_pl}, 128', lambda a: self.poll_issue(a, v_P, v_pl, sWS, f's{s_pl}')])
            if i == 8:
                misc.append([lambda a: self.poll_check(a, v_P, v_pl, sWS, f's{s_pl}', 0xff), lambda a: self.dstamp(a, 7)] + sum((self.aload(n) for n in range(24, 36)), []))
                misc.append([f'v_lshrrev_b32 v{T0}, 3, v{lane}', f'v_and_b32 v{T1}, 7, v{lane}', f'v_lshlrev_b32 v{T1}, 4, v{T1}', f'v_lshl_add_u32 v{v_xe}, v{T0}, 10, v{T1}',
                             f's_lshl_b32 s{s_wo0}, s{s_rb64}, 16', f's_lshl_b32 s{s_t0}, s{s_ct}, 7', f's_add_u32 s{s_wo0}, s{s_wo0}, s{s_t0}',
                             f's_lshl_b32 s{s_t0}, s{s_w}, 13', f's_add_u32 s{s_wo0}, s{s_wo0}, s{s_t0}',
                             f'buffer_load_dwordx4 {vr(XR,4)}, v{v_xe}, {srd(sX)}, s{s_wo0} offen'])
            buf = WF + (i & 1)*16; mf = []
            for ct in range(4):
                for t in range(2):
                    acc = ACC1 + (ct*2+t)*4; n = 2*i + t
                    mf.append(f'v_mfma_f32_16x16x32_bf16 {vr(acc,4)}, {vr(buf+4*ct,4)}, {ar((n % 32)*4,4)}, {0 if i == 0 else vr(acc,4)}')
            self.step(a, mf, reads, misc, [], 0, [('B', i+2, 0), ('B', i+2, 1)], barrier=(i < 17))
        self.dstamp(a, 8)
        SCR = 49152
        a(f'v_and_b32 v{T0}, 15, v{lane}'); a(f'v_lshrrev_b32 v{T1}, 4, v{lane}'); a(f'v_and_b32 v{T2}, 7, v{lane}'); a(f'v_xor_b32 v{T1}, v{T1}, v{T2}')
        a(f'v_lshlrev_b32 v{T1}, 4, v{T1}'); a(f'v_lshl_add_u32 v{T0}, v{T0}, 8, v{T1}')
        a(f's_lshl_b32 s{s_t0}, s{s_r}, 14'); a(f's_lshl_b32 s{s_t1}, s{s_c}, 13'); a(f's_add_u32 s{s_t0}, s{s_t0}, s{s_t1}'); a(f's_add_u32 s{s_t0}, s{s_t0}, {SCR}')
        a(f'v_add_u32 v{v_KP}, s{s_t0}, v{T0}'); a(f'v_xor_b32 v{v_KP+1}, 64, v{v_KP}')
        for ct in range(4):
            for t in range(2):
                a(f'ds_write_b128 v{v_KP + (ct & 1)}, {vr(ACC1 + (ct*2+t)*4, 4)} offset:{t*4096 + (ct >> 1)*128}')
        a(f'v_lshrrev_b32 v{T0}, 3, v{lane}'); a(f'v_lshlrev_b32 v{T1}, 1, v{T2}'); a(f'v_xor_b32 v{T1}, v{T1}, v{T0}'); a(f'v_lshlrev_b32 v{T1}, 4, v{T1}')
        a(f'v_lshl_add_u32 v{T0}, v{T0}, 8, v{T1}'); a(f's_lshl_b32 s{s_t0}, s{s_w}, 11'); a(f's_add_u32 s{s_t0}, s{s_t0}, {SCR}')
        a(f'v_add_u32 v{v_KP+2}, s{s_t0}, v{T0}'); a(f'v_xor_b32 v{v_KP+3}, 16, v{v_KP+2}')
        R = 8
        for j in range(4):
            a(f'v_lshlrev_b32 v{R+2*j}, 16, v{XR+j}'); a(f'v_and_b32 v{R+2*j+1}, 0xffff0000, v{XR+j}')
        a.wait(lg0=True); a('s_barrier')
        for k in range(4):
            for hf in range(2): a(f'ds_read_b128 {vr(WF+8*k+4*hf,4)}, v{v_KP+2+hf} offset:{k*16384}')
        for k in range(4):
            for j in range(8): a(f'v_add_f32 v{R+j}, v{R+j}, v{WF+8*k+j}')
        for j in range(4): a(f'v_cvt_pk_bf16_f32 v{XR+j}, v{R+2*j}, v{R+2*j+1}')
        a(f'buffer_store_dwordx4 {vr(XR,4)}, v{v_xe}, {srd(sOUT)}, s{s_wo0} offen')
    def finish(self, a):
        if self.diag:
            a.wait(vm0=True)
            a(f's_memtime s[{s_st}:{s_st+1}]'); a(f's_memrealtime s[{s_m}:{s_m+1}]'); a.wait(lg0=True)
            a(f's_lshl_b32 s{s_t0}, s2, 3'); a(f's_add_u32 s{s_t0}, s{s_t0}, s{s_w}'); a(f's_lshl_b32 s{s_t0}, s{s_t0}, 6'); a(f's_add_u32 s{s_t0}, s{s_t0}, {STAMP}')
            regs = [0] + [s_st+2+i for i in range(10)] + [s_st, 3, s_m]
            for i, s in enumerate(regs):
                a(f'v_mov_b32 v0, s{s}'); a(f'buffer_store_dword v0, v{v_fl}, {srd(sWS)}, s{s_t0} offen offset:{4*i}')
        a('s_endpgm')
    def build(self):
        self.tok = {}
        a = Asm()
        self.prologue(a)
        a(f's_cmp_ge_u32 s{s_ty}, 2'); a('s_cbranch_scc1 L_typeB')
        parts = [a]
        base_tok = dict(self.tok)
        for typ in 'AB':
            b = a.fork(); self.tok = dict(base_tok)
            if typ == 'B': b.raw('.p2align 6'); b.label('L_typeB')
            self.p1(b, typ)
            if typ == 'A': self.attention(b)
            else: self.half_epi(b)
            self.p3(b)
            self.finish(b)
            parts.append(b)
        hdr = open('parallel_sum__sliding_local_dilated__glu_gated_swiglu__prompt.s.ref').read().split('\n')
        H = [l for l in hdr if l.startswith(';') and '@launch' not in l]
        H.append('; @launch grid=(256,1,1) block=(512,1,1) lds=163840')
        H += ['.amdgcn_target "amdgcn-amd-amdhsa--gfx950"', '.text', f'.globl {KN}', '.p2align 8', f'.type {KN},@function', f'{KN}:']
        T = ['L_end:', '    s_endpgm'] + self.slow
        T += ['.section .rodata,"a"', '.p2align 6', f'.amdhsa_kernel {KN}', '  .amdhsa_next_free_vgpr 256', '  .amdhsa_next_free_sgpr 102',
              '  .amdhsa_accum_offset 128', '  .amdhsa_group_segment_fixed_size 0', '  .amdhsa_kernarg_size 80', '  .amdhsa_user_sgpr_count 2',
              '  .amdhsa_user_sgpr_kernarg_segment_ptr 1', '  .amdhsa_system_sgpr_workgroup_id_x 1', '.end_amdhsa_kernel']
        sys.stderr.write('instr: ' + ' '.join(f'{p.ninst}(+{p.nnop} nops)' for p in parts) + '\n')
        return '\n'.join(H) + '\n' + ''.join(p.text() for p in parts) + '\n'.join(T) + '\n'

if __name__ == '__main__':
    out = sys.argv[1]; diag = 'diag' in sys.argv[2:]
    g = Gen(diag=diag)
    open(out, 'w').write(g.build())
```

```python
import re

REG = re.compile(r'(?<![\w.])([vas])(?:(\d+)|\[(\d+):(\d+)\])(?![\w])')
TRANS = ('v_exp_f32', 'v_log_f32', 'v_rcp_f32', 'v_rsq_f32', 'v_sqrt_f32')

def regs_of(tok):
    out = []
    tok = tok.strip()
    if tok in ('vcc',): return [('s', 'vcc')]
    if tok in ('vcc_lo', 'vcc_hi'): return [('s', 'vcc')]
    if tok == 'm0': return [('s', 'm0')]
    if tok == 'exec': return [('s', 'exec')]
    for m in REG.finditer(tok):
        k = m.group(1)
        if m.group(2) is not None: out.append((k, int(m.group(2))))
        else: out.extend((k, i) for i in range(int(m.group(3)), int(m.group(4)) + 1))
    return out

class Ins:
    __slots__ = ('text', 'op', 'w', 'r', 'kind', 'passes', 'srcc', 'srcab', 'dpp', 'states', 'wide', 'data')
    def __init__(self, text):
        self.text = text
        t = text.split(';')[0].strip()
        sp = t.split(None, 1)
        op = sp[0]; self.op = op
        base = re.sub(r'_(e32|e64|dpp|sdwa)$', '', op)
        rest = sp[1] if len(sp) > 1 else ''
        ops = [o.strip() for o in rest.split(',')] if rest else []
        if ops:
            last = ops[-1].split()
            ops[-1] = last[0] if last else ''
            mods = ' '.join(last[1:])
        else: mods = ''
        self.w = []; self.r = []; self.passes = 0; self.srcc = []; self.srcab = []; self.dpp = False
        self.states = 1; self.wide = False; self.data = []
        R = [regs_of(o) for o in ops]
        flat = lambda L: [x for l in L for x in l]
        if op.startswith('v_mfma'):
            self.kind = 'mfma'
            self.passes = 2 if '4x4x4' in op else (8 if '32x32' in op else 4)
            self.w = R[0]; self.srcab = R[1] + R[2]; self.srcc = R[3]; self.r = self.srcab + self.srcc
        elif op.startswith('v_'):
            self.kind = 'trans' if base in TRANS else 'valu'
            self.dpp = op.endswith('_dpp')
            if base.startswith('v_permlane'):
                self.kind = 'perm'; self.w = R[0] + R[1]; self.r = R[0] + R[1]
            elif base.startswith('v_cmp'):
                self.w = R[0]; self.r = flat(R[1:])
            elif base in ('v_fmac_f32', 'v_dot2c_f32_bf16'):
                self.w = R[0]; self.r = flat(R)
            elif base in ('v_readfirstlane_b32', 'v_readlane_b32'):
                self.kind = 'rfl'; self.w = R[0]; self.r = flat(R[1:])
            elif base in ('v_add_co_u32', 'v_addc_co_u32'):
                self.w = R[0] + R[1]; self.r = flat(R[2:])
            else:
                self.w = R[0]; self.r = flat(R[1:])
                if self.dpp: self.r = self.r + R[0]
        elif op.startswith('ds_read') or op.startswith('ds_bpermute'):
            self.kind = 'ds'; self.w = R[0]; self.r = flat(R[1:])
        elif op.startswith('ds_write'):
            self.kind = 'ds'; self.r = flat(R)
        elif op.startswith('buffer_load'):
            self.kind = 'vmem'
            if re.search(r'\blds\b', mods): self.r = flat(R) + [('s', 'm0')]; self.kind = 'dma'
            else: self.w = R[0]; self.r = flat(R[1:])
        elif op.startswith('buffer_store') or op.startswith('buffer_atomic'):
            self.kind = 'vmem'; self.r = flat(R); self.data = R[0]
            self.wide = op.endswith('x4') or op.endswith('x3')
        elif op == 's_nop':
            self.kind = 'nop'; self.states = int(ops[0]) + 1
        elif op.startswith('s_load') or op.startswith('s_buffer_load') or op.startswith('s_memtime') or op.startswith('s_memrealtime'):
            self.kind = 'smem'; self.w = R[0]; self.r = flat(R[1:])
        elif op.startswith('s_cmp') or op.startswith('s_bitcmp') or op in ('s_waitcnt', 's_barrier', 's_endpgm', 's_setprio', 's_sleep') or op.startswith('s_cbranch') or op == 's_branch':
            self.kind = 'salu'; self.r = flat(R)
        elif op.startswith('s_'):
            self.kind = 'salu'; self.w = R[0]; self.r = flat(R[1:])
        else:
            raise ValueError('unknown op ' + text)

VALUK = ('valu', 'trans', 'perm', 'rfl')
def need_states(p, c):
    n = 0
    pw = set(p.w); cr = set(c.r); cw = set(c.w)
    if p.kind in VALUK:
        vw = {x for x in pw if x[0] in 'va'}; sw = {x for x in pw if x[0] == 's'}
        if c.kind == 'mfma' and vw & cr: n = max(n, 2)
        if c.kind in VALUK and c.dpp and vw & cr: n = max(n, 2)
        if c.kind == 'perm' and vw & cr: n = max(n, 2)
        if c.kind == 'rfl' and vw & cr: n = max(n, 1)
        if p.kind == 'trans' and c.kind in ('valu', 'perm', 'rfl', 'mfma', 'vmem', 'ds') and vw & cr: n = max(n, 1)
        if sw & cr:
            if c.kind in VALUK: n = max(n, 2)
            if c.kind in ('vmem', 'dma'): n = max(n, 5)
            if c.kind in ('salu', 'smem'): n = max(n, 2)
    if p.kind == 'mfma':
        big = {2: 5, 4: 8, 8: 12}[p.passes]
        if c.kind == 'mfma':
            if pw & set(c.srcab): n = max(n, big)
            if pw & set(c.srcc):
                if list(p.w) == list(c.srcc) and p.passes == c.passes: n = max(n, 2 if p.passes == 2 else 0)
                else: n = max(n, {2: 4, 4: 6, 8: 10}[p.passes])
            elif pw & cw: n = max(n, big)
        elif c.kind in VALUK or c.kind in ('vmem', 'dma', 'ds'):
            if pw & (cr | cw): n = max(n, big)
        if c.kind in VALUK and set(p.srcc) & cw: n = max(n, {2: 1, 4: 3, 8: 7}[p.passes])
        if c.kind in ('ds', 'vmem') and set(p.srcc) & cw: n = max(n, {2: 1, 4: 3, 8: 7}[p.passes])
    if p.kind == 'salu':
        if ('s', 'm0') in pw and c.kind == 'dma': n = max(n, 1)
    if p.kind == 'vmem' and p.wide and set(p.data) & cw:
        n = max(n, 2 if c.kind in VALUK or c.kind == 'mfma' else 1)
    return n

class Asm:
    def __init__(self):
        self.out = []
        self.hist = []
        self.lg = []
        self.vm = []
        self.nid = 0
        self.smem_pending = False
        self.nnop = 0
        self.ninst = 0
        self.bar_out = set()
        self.bar_id = 0
    def raw(self, s): self.out.append(s)
    def comment(self, s): self.out.append('    ; ' + s)
    def fork(self):
        a = Asm(); a.hist = list(self.hist); a.lg = list(self.lg); a.vm = list(self.vm); a.nid = self.nid
        a.smem_pending = self.smem_pending; a.bar_out = set(self.bar_out); a.bar_id = self.bar_id
        return a
    def barrier(self):
        self._push(Ins('s_barrier'))
        self.bar_out = {t for t, _ in self.vm} | {t for t, _ in self.lg}; self.bar_id = self.nid
    def retired(self, tok):
        return tok not in {t for t, _ in self.vm} and tok not in {t for t, _ in self.lg}
    def done_at_barrier(self, tok):
        return tok <= self.bar_id and tok not in self.bar_out
    def _push(self, ins):
        need = 0; dist = 0
        for p in reversed(self.hist):
            k = need_states(p, ins) - dist
            if k > need: need = k
            dist += p.states
            if dist >= 20: break
        while need > 0:
            k = min(need, 16)
            nop = Ins(f's_nop {k-1}'); self.hist.append(nop); self.out.append('    ' + nop.text); need -= k; self.nnop += 1
        self.hist.append(ins); self.hist = self.hist[-40:]
        self.out.append('    ' + ins.text); self.ninst += 1
    def _wait(self, vm=None, lg=None):
        parts = []
        if vm is not None:
            vm = min(vm, 63)
            if len(self.vm) > vm:
                parts.append(f'vmcnt({vm})'); self.vm = self.vm[len(self.vm) - vm:] if vm else []
        if lg is not None:
            lg = min(lg, 15)
            if len(self.lg) > lg or (lg == 0 and self.smem_pending):
                parts.append(f'lgkmcnt({lg})'); self.lg = self.lg[len(self.lg) - lg:] if lg else []
                if lg == 0: self.smem_pending = False
        if parts: self._push(Ins('s_waitcnt ' + ' '.join(parts)))
    def wait(self, vm_tok=None, lg0=False, vm0=False, lg_tok=None):
        vm = None
        if vm0: vm = 0
        elif vm_tok is not None:
            toks = vm_tok if isinstance(vm_tok, (list, tuple)) else [vm_tok]
            idx = [i for i, (t, _) in enumerate(self.vm) if t in toks]
            if idx: vm = len(self.vm) - 1 - max(idx)
        lg = 0 if lg0 else None
        if lg is None and lg_tok:
            idx = [i for i, (t, _) in enumerate(self.lg) if t in lg_tok]
            if idx: lg = 0 if self.smem_pending else len(self.lg) - 1 - max(idx)
        self._wait(vm=vm, lg=lg)
    def __call__(self, text, track=True):
        ins = Ins(text)
        touched = set(ins.r) | set(ins.w)
        vm = lg = None
        for i, (t, w) in enumerate(self.vm):
            if w & touched: vm = len(self.vm) - 1 - i
        for i, (t, w) in enumerate(self.lg):
            if w & touched: lg = len(self.lg) - 1 - i
        if lg is not None and self.smem_pending: lg = 0
        if vm is not None or lg is not None: self._wait(vm=vm, lg=lg)
        self._push(ins)
        tok = None
        if track:
            self.nid += 1; tok = self.nid
            if ins.kind in ('vmem', 'dma'): self.vm.append((tok, set(ins.w)))
            elif ins.kind == 'ds': self.lg.append((tok, set(ins.w)))
            elif ins.kind == 'smem': self.smem_pending = True
        return tok
    def label(self, name):
        self.out.append(name + ':')
    def settle(self, n=12):
        self._push(Ins(f's_nop {n-1}'))
    def text(self): return '\n'.join(self.out) + '\n'
```

```python
import sys, struct, math
from asmlib import Asm, Ins

KN = 'parallel_sum__sliding_local_dilated__glu_gated_swiglu__prompt_kernel'
def f2u(x): return struct.unpack('<I', struct.pack('<f', x))[0]

HALO = 0xA00000; FLAGS = 0xC00000; WSSZ = 0xD00000; STAMP = 0xD00000
OOB = 0x40000000
LOG2E = 1.4426950408889634

sX, sW0, sW1, sW2, sB2, sBo, sWS, sDBG, sOUT = 24, 28, 32, 36, 40, 44, 48, 52, 56
(s_w, s_r, s_c, s_kp, s_rb, s_ty, s_rb64, s_ct, s_t0, s_t1, s_t2, s_t3,
 s_wo0, s_wo1, s_wo2,
 s_wm,
 s_bm,
 s_b2, s_b2h, s_bo,
 s_hst,
 s_fl,
 s_pl,
 s_hl,
 s_hms,
 s_ha,
 s_al,
 s_cnt, s_nl2e, s_xo) = range(60, 90)
s_xq, s_p32 = 10, 11
s_rot, s_wt = 20, 21
s_bg, s_bl = 12, 16
s_m = 4
s_st = 90
def srd(b): return f's[{b}:{b+3}]'

ACC0, ACC1, WF = 0, 32, 64
v_l16, v_tr0, v_tr1, v_trh, v_xe, v_xo, v_wv0, v_wv1, v_wv2, v_bv, v_fl, v_pl, v_P, v_one, v_hv = range(96, 111)
v_KP = 112
v_T = 120
v_P2 = 111
def vr(b, n): return f'v[{b}:{b+n-1}]' if n > 1 else f'v{b}'
def ar(b, n): return f'a[{b}:{b+n-1}]'

RING = 6
def bslot(i):
    i %= 10
    return 49152 + 16384*i if i < 7 else {7: 32768, 8: 0, 9: 16384}[i]
BSTEP = [('w2',128,0),('w2',160,0),('w2',320,0),('w2',352,0),('w2',192,0),('w2',224,0),('w2',384,0),('w2',416,0),
         ('w2',0,0),('w2',32,0),('w2',64,0),('w2',96,0),('w2',256,1),('w2',288,1),('wo',0,0),('wo',32,0),('wo',64,0),('wo',96,0)]

class Gen:
    def __init__(self, diag=False, stop=None, opt=None):
        self.diag = diag; self.stop = stop; self.opt = opt or {}
        self.slow = []; self.nlab = 0; self.nstamp = 0
    def dstamp(self, a, i):
        if not self.diag: return
        a(f's_memtime s[{s_st}:{s_st+1}]'); a(f's_memrealtime s[100:101]'); a.wait(lg0=True)
        d = s_st+2+i if i < 8 else 1
        a(f's_sub_u32 s{s_st}, s{s_st}, s0'); a(f's_sub_u32 s100, s100, s3'); a(f's_pack_ll_b32_b16 s{d}, s{s_st}, s100')
    def poll_issue(self, a, vdst, vaddr, sr, soff):
        return a(f'buffer_load_dword v{vdst}, v{vaddr}, {srd(sr)}, {soff} offen sc1')
    def poll_check(self, a, vdst, vaddr, sr, soff, mask):
        self.nlab += 1; n = self.nlab
        a(f'v_cmp_eq_u32 vcc, 1, v{vdst}')
        a(f's_and_b32 s{s_t0}, vcc_lo, {mask}')
        a(f's_cmp_eq_u32 s{s_t0}, {mask}')
        a(f's_cbranch_scc0 L_slow{n}')
        a.label(f'L_ok{n}')
        S = [f'L_slow{n}:', f'    s_mov_b32 s{s_cnt}, 0', f'L_spin{n}:',
             f'    buffer_load_dword v{vdst}, v{vaddr}, {srd(sr)}, {soff} offen sc1', '    s_waitcnt vmcnt(0)',
             f'    v_cmp_eq_u32 vcc, 1, v{vdst}', '    s_nop 3', f'    s_and_b32 s{s_t0}, vcc_lo, {mask}', f'    s_cmp_eq_u32 s{s_t0}, {mask}',
             f'    s_cbranch_scc1 L_ok{n}', f'    s_add_u32 s{s_cnt}, s{s_cnt}, 1', f'    s_cmp_lt_u32 s{s_cnt}, 0x8000',
             f'    s_cbranch_scc1 L_spin{n}', f'    s_branch L_ok{n}']
        self.slow += S
    def flag(self, a, stage):
        return a(f'buffer_store_dword v{v_one}, v{v_fl}, {srd(sWS)}, s{s_fl} offen offset:{stage*128} sc1')
    def wdma(self, a, slab):
        ch = 0 if slab < 16 else (1 if slab < 32 else 2)
        so = [s_wo0, s_wo1, s_wo2][ch]; vv = [v_wv0, v_wv1, v_wv2][ch]; sr = [sW0, sW1, sW2][ch]
        step = self.wstep[ch]
        k = (slab & 15) if ch < 2 else 2*(slab - 32)
        nt = ' nt' if self.opt.get('wnt', 1) else ''
        L = [f's_add_u32 s{s_wt}, s{s_rot}, {k}', f's_and_b32 s{s_wt}, s{s_wt}, 15', f's_mul_i32 s{s_wt}, s{s_wt}, {step}',
             f's_add_u32 m0, s{s_wm}, {(slab % RING)*8192}', f's_add_u32 s{s_wt}, s{s_wt}, s{so}',
             ('dma', f'buffer_load_dwordx4 v{vv}, {srd(sr)}, s{s_wt} offen{nt} lds', ('W', slab))]
        return L
    def bdma_rot(self, nb):
        G, p = nb >> 2, nb & 3
        if G == 3: return self.bdma(6, p)
        def claim(a):
            for i in (2*G, 2*G+1):
                for b in self.blocks(('B', i)):
                    for t in self.lds_rd.get(b, []): assert self.lds_key[b] == ('B', i) or a.done_at_barrier(t), ('WAR rot', nb)
        return [claim, f's_add_u32 m0, s{s_bl+p}, {bslot(2*G)}', f's_add_u32 s{s_t1}, s{s_bg+p}, {BSTEP[2*G][1]*1024}',
                ('dma', f'buffer_load_dwordx4 v{v_bv}, {srd(sB2)}, s{s_t1} offen lds', ('B', 2*G + (p >> 1), p & 1))]
    def bdma(self, i, n):
        mat, ro, half = BSTEP[i]
        base = {('w2',0): s_b2, ('w2',1): s_b2h, ('wo',0): s_bo}[(mat, half)]
        off = ro*1024 + n*(16384 if half else 8192)
        sr = sB2 if mat == 'w2' else sBo
        return [f's_add_u32 m0, s{s_bm}, {bslot(i) + n*1024}', f's_add_u32 s{s_t1}, s{base}, {off}',
                ('dma', f'buffer_load_dwordx4 v{v_bv}, {srd(sr)}, s{s_t1} offen lds', ('B', i, n))]
    def aload(self, n):
        i, t = n >> 1, n & 1
        return [f's_add_u32 s{s_t2}, s{s_al}, {t*73728 + i*1024}',
                ('dma', f'buffer_load_dwordx4 {ar((n % 32)*4, 4)}, v{v_l16}, {srd(sWS)}, s{s_t2} offen sc1', ('A', n))]
    def do(self, a, it):
        if isinstance(it, str): a(it)
        elif callable(it): it(a)
        elif it[0] == 'dma':
            key = it[2]; blocks = self.blocks(key)
            for b in blocks:
                if self.lds_key.get(b) != key[:2]:
                    for t in self.lds_rd.get(b, []): assert a.done_at_barrier(t), ('WAR on LDS', key, b)
                    self.lds_key[b] = key[:2]; self.lds_rd[b] = []; self.lds_wr[b] = []
            self.tok[key] = a(it[1])
            if self.opt.get('xdma') and key[0] in ('W', 'B') and not (key[0] == 'W' and key[1] < 4): a.out.pop()
            if self.opt.get('xb') and key[0] == 'B': a.out.pop()
            for b in blocks: self.lds_wr[b].append(self.tok[key])
        elif it[0] == 'rd':
            key = it[2]
            for b in self.blocks(key):
                assert self.lds_key.get(b) == key, ('stale LDS read', key, self.lds_key.get(b))
                assert len(self.lds_wr[b]) == (2 if key[0] == 'B' else 1) or key[0] == 'X'
                for t in self.lds_wr[b]: assert a.done_at_barrier(t), ('RAW on LDS', key)
            t = a(it[1])
            if self.opt.get('xrd') and key[0] == 'W': a.out.pop()
            for b in self.blocks(key): self.lds_rd[b].append(t)
        else: raise ValueError(it)
    def blocks(self, key):
        if key == 'fin' or key[0] not in ('W', 'B', 'X'): return []
        if key[0] == 'W': return [key[1] % RING]
        if key[0] == 'X': return [4 + key[1]]
        return [bslot(key[1]) // 8192, bslot(key[1]) // 8192 + 1]
    @staticmethod
    def weight(it):
        if isinstance(it, str):
            if it.startswith('s_'): return 0 if f's{s_t3},' in it else 1
            return 2 if it.split()[0].replace('_e32','').replace('_e64','') in ('v_exp_f32','v_rcp_f32','v_rsq_f32') else 1
        return 0
    def prologue(self, a):
        a('s_cmp_ge_u32 s2, 256'); a('s_cbranch_scc1 L_end')
        a('s_load_dwordx16 s[4:19], s[0:1], 0'); a('s_load_dwordx4 s[20:23], s[0:1], 64')
        if self.diag: a(f's_memrealtime s[{s_st}:{s_st+1}]'); a(f's_memtime s[{s_st+2}:{s_st+3}]')
        if self.opt.get('cpf', 1):
            a(f's_getpc_b64 s[{sW0}:{sW0+1}]'); a.label('L_pc')
            a(f's_lshr_b32 s{s_t0}, s2, 3'); a(f's_lshl_b32 s{s_t0}, s{s_t0}, 11')
            a(f's_and_b32 s{sW0+1}, s{sW0+1}, 0xffff'); a(f's_mov_b32 s{sW0+2}, L_codeend-L_pc'); a(f's_mov_b32 s{sW0+3}, 0x20000')
            a('v_lshlrev_b32 v2, 7, v0'); a('v_lshrrev_b32 v3, 4, v0'); a('v_lshl_add_u32 v2, v3, 20, v2')
            a(f'buffer_load_dword v{v_P2}, v2, {srd(sW0)}, s{s_t0} offen')
        a('v_lshrrev_b32 v1, 6, v0'); a('v_and_b32 v0, 63, v0')
        a(f'v_readfirstlane_b32 s{s_w}, v1')
        a(f's_and_b32 s{s_t0}, s2, 7'); a(f's_lshr_b32 s{s_t1}, s2, 3')
        a(f's_and_b32 s{s_kp}, s{s_t0}, 3'); a(f's_and_b32 s{s_ty}, s{s_t1}, 3')
        a(f's_lshr_b32 s{s_rb}, s{s_t0}, 2'); a(f's_lshl_b32 s{s_rb}, s{s_rb}, 3'); a(f's_lshr_b32 s{s_t2}, s{s_t1}, 2'); a(f's_add_u32 s{s_rb}, s{s_rb}, s{s_t2}')
        a(f's_lshl_b32 s{s_rb64}, s{s_t0}, 2'); a(f's_lshr_b32 s{s_t2}, s{s_t1}, 3'); a(f's_add_u32 s{s_rb64}, s{s_rb64}, s{s_t2}')
        a(f's_and_b32 s{s_ct}, s{s_t1}, 7')
        a(f's_lshr_b32 s{s_r}, s{s_w}, 1'); a(f's_and_b32 s{s_c}, s{s_w}, 1')
        g, c16, T0, T1, T2 = v_T, v_T+1, v_T+2, v_T+3, v_T+4
        a(f'v_lshrrev_b32 v{g}, 4, v0'); a(f'v_and_b32 v{c16}, 15, v0')
        a(f'v_lshlrev_b32 v{v_l16}, 4, v0')
        a(f's_and_b32 s{s_t2}, s{s_rb}, {7 if self.opt.get("rot", 1) else 0}'); a(f's_lshl_b32 s{s_t2}, s{s_t2}, 7')
        a(f'v_lshlrev_b32 v{T0}, 10, v{g}'); a(f'v_lshl_add_u32 v{T1}, v{c16}, 4, s{s_t2}'); a(f'v_mov_b32 v{T2}, 0x3ff')
        for i in range(4):
            if i: a(f'v_add_u32 v{T1}, 0x100, v{T1}')
            a(f'v_and_or_b32 v{60+i}, v{T1}, v{T2}, v{T0}')
        a(f's_lshl_b32 s{s_xo}, s{s_rb}, 17'); a(f's_lshl_b32 s{s_t0}, s{s_w}, 14'); a(f's_add_u32 s{s_xo}, s{s_xo}, s{s_t0}')
        a(f'v_mov_b32 v{v_hv}, v0')
        a.wait(lg0=True)
        if self.diag: a(f's_mov_b32 s3, s{s_st}'); a(f's_mov_b32 s0, s{s_st+2}')
        if self.opt.get('probe'):
            a(f's_mov_b32 s{sX}, s10'); a(f's_and_b32 s{sX+1}, s11, 0xffff'); a(f's_mov_b32 s{sX+2}, {2048*1024}'); a(f's_mov_b32 s{sX+3}, 0x20000')
            a(f's_cmp_lg_u32 s{s_w}, 0'); a('s_cbranch_scc1 L_noprobe')
            a(f's_lshl_b32 s{s_t0}, s2, 13'); a('v_mov_b32 v2, 0')
            for i in range(self.opt['probe']):
                a(f'buffer_load_dword v3, v2, {srd(sX)}, s{s_t0} offen'); a.wait(vm0=True); a(f's_add_u32 s{s_t0}, s{s_t0}, 256')
            a.label('L_noprobe'); a.barrier()
        a(f's_mov_b32 s{sX}, s4'); a(f's_and_b32 s{sX+1}, s5, 0xffff'); a(f's_mov_b32 s{sX+2}, {2048*1024}'); a(f's_mov_b32 s{sX+3}, 0x20000')
        def xload(q):
            L = []
            for i in range(4):
                g_ = []
                if i == 0: g_ = [f's_add_u32 s{s_xq}, s{s_ty}, {q}', f's_and_b32 s{s_xq}, s{s_xq}, 3', f's_lshl_b32 s{s_xq}, s{s_xq}, 12', f's_add_u32 s{s_xq}, s{s_xq}, s{s_xo}']
                L.append(g_ + [f'buffer_load_dwordx4 {vr(16*q+4*i,4)}, v{60+i}, {srd(sX)}, s{s_xq} offen' + (' nt' if self.opt.get('xnt', 0) else '')])
            return L
        for grp in xload(0):
            for x in grp: a(x)
        lane = v_hv
        def mk(d, p, n):
            a(f's_mov_b32 s{d}, s{p}'); a(f's_and_b32 s{d+1}, s{p+1}, 0xffff'); a(f's_mov_b32 s{d+2}, {n}'); a(f's_mov_b32 s{d+3}, 0x20000')
        mk(sWS, 22, WSSZ + (0x100000 if self.diag else 0))
        a(f's_cmp_eq_u32 s{s_c}, 0'); a(f's_cselect_b32 s{sW1}, s12, s14'); a(f's_cselect_b32 s{sW1+1}, s13, s15')
        a(f's_and_b32 s{sW1+1}, s{sW1+1}, 0xffff'); a(f's_mov_b32 s{sW1+2}, {512*3584}'); a(f's_mov_b32 s{sW1+3}, 0x20000')
        a(f's_and_b32 s7, s7, 0xffff')
        a(f's_cmp_lt_u32 s{s_ty}, 2')
        for d in (sW0, sW2):
            a(f's_cselect_b32 s{d}, s6, s{sW1}'); a(f's_cselect_b32 s{d+1}, s7, s{sW1+1}'); a(f's_cselect_b32 s{d+2}, {512*3072}, s{sW1+2}'); a(f's_mov_b32 s{d+3}, 0x20000')
        a(f's_mov_b32 s{s_t3}, 3584'); a(f's_cselect_b32 s{s_t3}, 3072, s{s_t3}')
        a(f's_and_b32 s{s_t0}, s{s_r}, 1'); a(f's_lshl_b32 s{s_t0}, s{s_t0}, 2')
        a(f'v_and_b32 v{T0}, 1, v{g}'); a(f'v_lshlrev_b32 v{T0}, 1, v{T0}'); a(f'v_or_b32 v{T0}, s{s_t0}, v{T0}')
        a(f'v_and_b32 v{T1}, 7, v{lane}'); a(f'v_xor_b32 v{T0}, v{T0}, v{T1}'); a(f'v_lshlrev_b32 v{T0}, 4, v{T0}')
        a(f'v_lshrrev_b32 v{T2}, 3, v{lane}')
        a(f'v_mad_u32_u24 v{v_wv0}, v{T2}, s{s_t3}, v{T0}')
        a(f'v_mul_u32_u24 v{v_wv1}, 3584, v{T2}'); a(f'v_add_u32 v{v_wv1}, v{v_wv1}, v{T0}')
        a(f's_mul_i32 s{s_wo0}, s{s_r}, s{s_t3}'); a(f's_lshl_b32 s{s_wo0}, s{s_wo0}, 3')
        a(f's_lshl_b32 s{s_t0}, s{s_kp}, 1'); a(f's_add_u32 s{s_t0}, s{s_t0}, s{s_ty}'); a(f's_lshl_b32 s{s_t0}, s{s_t0}, 7')
        a(f's_lshl_b32 s{s_t1}, s{s_c}, 10'); a(f's_add_u32 s{s_t1}, s{s_t1}, s{s_t0}'); a(f's_add_u32 s{s_t1}, s{s_t1}, 1024')
        a(f's_mul_i32 s{s_t2}, s{s_kp}, 896')
        a(f's_mul_i32 s{s_cnt}, s{s_ty}, 384'); a(f's_add_u32 s{s_cnt}, s{s_cnt}, s{s_t2}'); a(f's_sub_u32 s{s_cnt}, s{s_cnt}, 512')
        a(f's_cmp_lt_u32 s{s_ty}, 2'); a(f's_cselect_b32 s{s_t1}, s{s_t1}, s{s_cnt}')
        a(f's_add_u32 s{s_wo0}, s{s_wo0}, s{s_t1}')
        a(f's_lshl_b32 s{s_wm}, s{s_c}, 12'); a(f's_lshl_b32 s{s_t1}, s{s_r}, 10'); a(f's_add_u32 s{s_wm}, s{s_wm}, s{s_t1}')
        a(f's_lshl_b32 s{s_p32}, s{s_t3}, 5')
        a(f's_or_b32 s{s_t1}, s{s_kp}, s{s_ty}'); a(f's_cmp_lg_u32 s{s_t1}, 0'); a('s_cbranch_scc1 L_nolead')
        for i in range(4): a(f'v_mov_b32 v{WF+i}, 0')
        a(f's_lshl_b32 s{s_t1}, s{s_rb}, 13'); a(f's_lshl_b32 s{s_hl}, s{s_w}, 10'); a(f's_add_u32 s{s_t1}, s{s_t1}, s{s_hl}'); a(f's_add_u32 s{s_t1}, s{s_t1}, {FLAGS}')
        a(f'buffer_store_dwordx4 {vr(WF,4)}, v{v_l16}, {srd(sWS)}, s{s_t1} offen sc1', track=False)
        a('s_nop 1')
        a.label('L_nolead')
        self.wstep = [f's{s_p32}', 0, 0]
        ringpre = [self.wdma(a, slab) for slab in range(4)]
        a(f's_mul_i32 s{s_wo1}, s{s_r}, {8*3584}')
        a(f's_lshl_b32 s{s_t1}, s{s_ty}, 7'); a(f's_add_u32 s{s_t1}, s{s_t1}, s{s_t2}')
        a(f's_add_u32 s{s_cnt}, s{s_cnt}, 128')
        a(f's_cmp_lt_u32 s{s_ty}, 2'); a(f's_cselect_b32 s{s_t1}, s{s_t1}, s{s_cnt}'); a(f's_add_u32 s{s_wo1}, s{s_wo1}, s{s_t1}')
        a(f's_lshl_b32 s{s_t1}, s{s_c}, 2'); a(f's_add_u32 s{s_t1}, s{s_t1}, s{s_r}'); a(f's_mul_i32 s{s_t1}, s{s_t1}, {8*3072}'); a(f's_add_u32 s{s_t1}, s{s_t1}, s{s_t0}')
        a(f's_mul_i32 s{s_cnt}, s{s_r}, {16*3584}'); a(f's_add_u32 s{s_cnt}, s{s_cnt}, s{s_t2}'); a(f's_lshl_b32 s{s_t3}, s{s_ty}, 6'); a(f's_add_u32 s{s_cnt}, s{s_cnt}, s{s_t3}'); a(f's_add_u32 s{s_cnt}, s{s_cnt}, {512-128}')
        a(f's_cmp_lt_u32 s{s_ty}, 2'); a(f's_cselect_b32 s{s_wo2}, s{s_t1}, s{s_cnt}')
        mk(sB2, 16, 1792*1024); mk(sBo, 8, 512*1024); mk(sDBG, 20, 256); mk(sOUT, 18, 2048*1024)
        a(f's_and_b32 s{s_rot}, s{s_rb}, {7 if self.opt.get("rot", 1) else 0}'); a(f's_lshl_b32 s{s_rot}, s{s_rot}, 1')
        a(f'v_lshrrev_b32 v{T0}, 5, v{lane}'); a(f'v_lshlrev_b32 v{T0}, 1, v{T0}'); a(f'v_and_b32 v{T1}, 3, v{lane}'); a(f'v_xor_b32 v{T0}, v{T0}, v{T1}'); a(f'v_lshlrev_b32 v{T0}, 4, v{T0}')
        a(f'v_lshrrev_b32 v{T2}, 2, v{lane}'); a(f'v_mul_u32_u24 v{v_wv2}, 3584, v{T2}'); a(f'v_add_u32 v{v_wv2}, v{v_wv2}, v{T0}')
        r4 = v_T+5; fz = v_T+6
        a(f'v_and_b32 v{r4}, 3, v{T2}')
        a(f'v_lshrrev_b32 v{fz}, 1, v{r4}'); a(f'v_and_b32 v{T0}, 1, v{g}'); a(f'v_lshl_or_b32 v{fz}, v{T0}, 1, v{fz}')
        a(f'v_lshl_add_u32 v{T2}, v{g}, 3, v{r4}')
        a(f's_lshl_b32 s{s_t0}, s{s_c}, 1')
        a(f'v_xor_b32 v{v_tr0}, s{s_t0}, v{fz}'); a(f'v_lshlrev_b32 v{v_tr0}, 5, v{v_tr0}'); a(f'v_lshl_add_u32 v{v_tr0}, v{T2}, 7, v{v_tr0}'); a(f'v_lshl_add_u32 v{v_tr0}, v{T1}, 3, v{v_tr0}')
        a(f'v_xor_b32 v{v_tr1}, 32, v{v_tr0}')
        a(f'v_xor_b32 v{v_trh}, s{s_c}, v{T0}'); a(f'v_lshlrev_b32 v{v_trh}, 5, v{v_trh}'); a(f'v_lshl_add_u32 v{v_trh}, v{T2}, 6, v{v_trh}'); a(f'v_lshl_add_u32 v{v_trh}, v{T1}, 3, v{v_trh}')
        a(f's_lshl_b32 s{s_t0}, s{s_r}, 11'); a(f's_add_u32 s{s_t0}, s{s_t0}, 32768')
        a(f'v_xor_b32 v{v_xe}, v{c16}, v{g}'); a(f'v_lshlrev_b32 v{v_xe}, 4, v{v_xe}'); a(f'v_lshl_add_u32 v{v_xe}, v{g}, 8, v{v_xe}'); a(f'v_add_u32 v{v_xe}, s{s_t0}, v{v_xe}')
        a(f'v_xor_b32 v{v_xo}, 64, v{v_xe}')
        a(f'v_and_b32 v{T0}, 7, v{lane}'); a(f'v_lshlrev_b32 v{T2}, 1, v{g}'); a(f'v_xor_b32 v{T0}, v{T0}, v{T2}'); a(f'v_lshlrev_b32 v{T0}, 4, v{T0}')
        a(f'v_lshrrev_b32 v{T2}, 3, v{lane}'); a(f'v_lshl_add_u32 v{v_bv}, v{T2}, 10, v{T0}'); a(f's_lshl_b32 s{s_t0}, s{s_ct}, 7'); a(f'v_add_u32 v{v_bv}, s{s_t0}, v{v_bv}')
        a(f's_lshl_b32 s{s_bm}, s{s_w}, 11')
        a(f's_mul_i32 s{s_t0}, s{s_r}, {448*1024}')
        a(f's_lshl_b32 s{s_t1}, s{s_c}, 14'); a(f's_add_u32 s{s_b2}, s{s_t0}, s{s_t1}')
        a(f's_lshl_b32 s{s_t2}, s{s_c}, 13'); a(f's_add_u32 s{s_b2h}, s{s_t0}, s{s_t2}')
        a(f's_lshl_b32 s{s_bo}, s{s_r}, 17'); a(f's_add_u32 s{s_bo}, s{s_bo}, s{s_t1}')
        a(f'v_mov_b32 v{T0}, {OOB}')
        a(f'v_cmp_eq_u32 vcc, 0, v{lane}'); a(f'v_cndmask_b32 v{v_fl}, v{T0}, v{lane}, vcc')
        a(f'v_lshlrev_b32 v{T2}, 2, v{lane}'); a(f'v_cmp_gt_u32 vcc, 16, v{lane}'); a(f'v_cndmask_b32 v{v_pl}, v{T0}, v{T2}, vcc')
        a(f'v_mov_b32 v{v_one}, 1')
        a(f's_lshl_b32 s{s_t0}, s{s_rb}, 2'); a(f's_add_u32 s{s_t0}, s{s_t0}, s{s_r}')
        a(f's_mul_i32 s{s_hst}, s{s_t0}, {2*73728}'); a(f's_mul_i32 s{s_t1}, s{s_kp}, {18*1024}'); a(f's_add_u32 s{s_hst}, s{s_hst}, s{s_t1}')
        a(f's_lshl_b32 s{s_t1}, s{s_ty}, 1'); a(f's_add_u32 s{s_t1}, s{s_t1}, s{s_c}')
        a(f's_lshl_b32 s{s_fl}, s{s_t0}, 2'); a(f's_add_u32 s{s_fl}, s{s_fl}, s{s_kp}'); a(f's_lshl_b32 s{s_fl}, s{s_fl}, 9'); a(f's_lshl_b32 s{s_t2}, s{s_t1}, 2')
        a(f's_add_u32 s{s_fl}, s{s_fl}, s{s_t2}'); a(f's_add_u32 s{s_fl}, s{s_fl}, {FLAGS}')
        a(f's_sub_u32 s{s_hl}, s{s_fl}, {2048-384}')
        a(f's_lshl_b32 s{s_t2}, s{s_kp}, 2'); a(f's_add_u32 s{s_t2}, s{s_t2}, s{s_t1}'); a(f's_lshl_b32 s{s_ha}, s{s_t0}, 4'); a(f's_add_u32 s{s_ha}, s{s_ha}, s{s_t2}')
        a(f's_lshl_b32 s{s_ha}, s{s_ha}, 11'); a(f's_add_u32 s{s_ha}, s{s_ha}, {HALO}')
        a(f's_cmp_eq_u32 s{s_t0}, 0'); a(f's_cselect_b32 s{s_hms}, 0, 1')
        a(f's_lshl_b32 s{s_t0}, s{s_rb64}, 1'); a(f's_add_u32 s{s_t0}, s{s_t0}, s{s_c}')
        a(f's_mul_i32 s{s_al}, s{s_t0}, {2*73728}'); a(f's_mul_i32 s{s_t1}, s{s_r}, {18*1024}'); a(f's_add_u32 s{s_al}, s{s_al}, s{s_t1}')
        a(f's_lshl_b32 s{s_pl}, s{s_t0}, 2'); a(f's_add_u32 s{s_pl}, s{s_pl}, s{s_r}'); a(f's_lshl_b32 s{s_pl}, s{s_pl}, 9'); a(f's_add_u32 s{s_pl}, s{s_pl}, {FLAGS}')
        a(f's_mov_b32 s{s_nl2e}, {hex(f2u(-LOG2E))}')
        M0r, M1r, ONE, WB = v_KP, v_KP+1, v_KP+2, v_KP+4
        for k, m in enumerate((0x2222222222222222, 0x4444444444444444, 0x8888888888888888, 0x1111111111111111)):
            a(f's_mov_b32 s{12+2*k}, {hex(m & 0xffffffff)}'); a(f's_mov_b32 s{12+2*k+1}, {hex(m >> 32)}')
        sm = lambda k: f's[{12+2*k}:{12+2*k+1}]'
        a(f'v_mov_b32 v{T0}, 0xffff'); a(f'v_mov_b32 v{T1}, 0xffff0000')
        a(f'v_cndmask_b32 v{M0r}, 0, v{T0}, {sm(3)}'); a(f'v_cndmask_b32 v{M0r}, v{M0r}, v{T1}, {sm(0)}')
        a(f'v_cndmask_b32 v{M1r}, 0, v{T0}, {sm(1)}'); a(f'v_cndmask_b32 v{M1r}, v{M1r}, v{T1}, {sm(2)}')
        a(f'v_mov_b32 v{ONE}, 0x3f803f80'); a(f'v_mov_b32 v{ONE+1}, 0x3f803f80')
        a(f'v_lshrrev_b32 v{T0}, 2, v{c16}'); a(f'v_lshlrev_b32 v{T0}, 13, v{T0}'); a(f'v_and_b32 v{T1}, 3, v{c16}'); a(f'v_lshl_add_u32 v{T0}, v{T1}, 8, v{T0}')
        a(f's_lshl_b32 s{s_t0}, s{s_w}, 10'); a(f's_add_u32 s{s_t0}, s{s_t0}, 32768'); a(f'v_add_u32 v{WB}, s{s_t0}, v{T0}')
        a(f'v_and_b32 v{T0}, 7, v{c16}'); a(f'v_xor_b32 v{T0}, v{T0}, v{g}'); a(f'v_lshlrev_b32 v{WB+3}, 4, v{T0}')
        self.dstamp(a, 0)
        for grp in xload(1):
            for x in grp: a(x)
        S, Q = v_T, v_T+4
        warm = []
        if self.opt.get('bwarm', 1):
            a(f'v_lshlrev_b32 v{v_P}, 7, v{lane}'); a(f'v_mov_b32 v{T0}, {OOB}'); a(f'v_cmp_gt_u32 vcc, 7, v{lane}'); a(f'v_cndmask_b32 v{v_P}, v{T0}, v{v_P}, vcc')
            a(f's_lshl_b32 s22, s2, 3'); a(f's_add_u32 s22, s22, s{s_w}'); a(f's_lshl_b32 s23, s22, 8'); a(f's_mul_i32 s22, s22, 896')
            warm = [[f'buffer_load_dword v{v_P2}, v{v_P}, {srd(sB2)}, s22 offen'],
                    [f'v_lshrrev_b32 v0, 1, v{lane}', f'v_lshl_add_u32 v{v_P}, v0, 20, v{v_P}', f'buffer_load_dword v{v_P}, v{v_P}, {srd(sBo)}, s23 offen']]
        spr = [xload(2), xload(3), ringpre, warm]
        for q in range(4):
            X = 16*q
            sp = list(spr[q])
            def sprinkle():
                if sp:
                    for x in sp.pop(0): self.do(a, x)
            for u in range(8):
                xp = vr(X+2*u, 2)
                a(f'v_mfma_f32_4x4x4_16b_bf16 {vr(S,4)}, {vr(ONE,2)}, {xp}, {vr(S,4) if u else 0}')
                a(f'v_mfma_f32_4x4x4_16b_bf16 {vr(Q,4)}, {xp}, {xp}, {vr(Q,4) if u else 0}')
            a(f's_add_u32 s{s_t0}, s{s_ty}, {q}'); a(f's_and_b32 s{s_t0}, s{s_t0}, 3'); a(f's_lshl_b32 s{s_t0}, s{s_t0}, 6')
            a(f'v_xor_b32 v{WB+1}, s{s_t0}, v{WB+3}'); a(f'v_add_u32 v{WB+1}, v{WB+1}, v{WB}'); a(f'v_add_u32 v{WB+2}, 0x10000, v{WB+1}')
            sprinkle()
            for k in range(3): a(f'v_cndmask_b32 v{Q}, v{Q}, v{Q+1+k}, {sm(k)}')
            for ro in (8, 4, 2, 1):
                a(f'v_add_f32_dpp v{S}, v{S}, v{S} row_ror:{ro} row_mask:0xf bank_mask:0xf')
                a(f'v_add_f32_dpp v{Q}, v{Q}, v{Q} row_ror:{ro} row_mask:0xf bank_mask:0xf')
            a(f'v_mul_f32 v{S}, {hex(f2u(1/512))}, v{S}')
            a(f'v_mul_f32 v{S+1}, v{S}, v{S}')
            a(f'v_mov_b32 v{S+2}, {hex(f2u(1/512))}')
            a(f'v_fma_f32 v{Q}, v{Q}, v{S+2}, -v{S+1}')
            a(f'v_max_f32 v{Q}, 0, v{Q}'); a(f'v_add_f32 v{Q}, {hex(f2u(1e-5))}, v{Q}')
            a(f'v_rsq_f32 v{Q}, v{Q}')
            a(f'v_cvt_pk_bf16_f32 v{Q+1}, v{Q}, v{Q}')
            a(f'v_mul_f32_e64 v{S}, -v{S}, v{Q}')
            a(f'v_and_b32 v{Q+2}, 0xffff0000, v{Q+1}'); a(f'v_sub_f32 v{Q+2}, v{Q}, v{Q+2}')
            a(f'v_cvt_pk_bf16_f32 v{Q+3}, v{Q+2}, v{Q+2}')
            a(f'v_and_b32 v{Q}, v{M0r}, v{Q+1}'); a(f'v_and_b32 v{Q+1}, v{M1r}, v{Q+1}')
            a(f'v_and_b32 v{Q+2}, v{M0r}, v{Q+3}'); a(f'v_and_b32 v{Q+3}, v{M1r}, v{Q+3}')
            for k in (1, 2, 3): a(f'v_mov_b32 v{S+k}, v{S}')
            D = lambda u: WF + 4*u
            hi = lambda u: f'v_mfma_f32_4x4x4_16b_bf16 {vr(D(u),4)}, {vr(Q,2)}, {vr(X+2*u,2)}, {vr(S,4)}'
            lo = lambda u: f'v_mfma_f32_4x4x4_16b_bf16 {vr(D(u),4)}, {vr(Q+2,2)}, {vr(X+2*u,2)}, {vr(D(u),4)}'
            cv = lambda u: [f'v_cvt_pk_bf16_f32 v{X+2*u}, v{D(u)}, v{D(u)+1}', f'v_cvt_pk_bf16_f32 v{X+2*u+1}, v{D(u)+2}, v{D(u)+3}']
            wr = lambda i: f'ds_write_b128 v{WB+1+(i>>1)}, {vr(X+4*i,4)} offset:{(i&1)*32768}'
            sprinkle()
            for u in range(4): a(hi(u))
            for u in range(4): a(lo(u))
            for u in range(4, 8): a(hi(u))
            sprinkle()
            for u in range(4):
                a(lo(u+4))
                for x in cv(u): a(x)
                if u & 1: a(wr(u >> 1))
            sprinkle()
            for u in range(4, 8):
                for x in cv(u): a(x)
                if u & 1: a(wr(u >> 1))
        a.wait(vm_tok=[self.tok[('W', 0)]], lg0=True)
        a.barrier()
        self.dstamp(a, 1)
        a(f's_or_b32 s{s_t1}, s{s_kp}, s{s_ty}'); a(f's_or_b32 s{s_t1}, s{s_t1}, s{s_w}'); a(f's_cmp_lg_u32 s{s_t1}, 0'); a('s_cbranch_scc1 L_nolead2')
        a(f's_lshl_b32 s{s_t1}, s{s_rb}, 2')
        a(f'buffer_store_dword v{v_one}, v{v_fl}, {srd(sDBG)}, s{s_t1} offen sc1', track=False)
        a.label('L_nolead2')
    def wreads(self, s, typ):
        buf = WF + (s & 1)*16; base = (s % RING)*8192; L = []
        for f in range(4):
            p, tf = f >> 1, f & 1
            for rd in range(2):
                if s >= 32 and typ == 'B': addr, off = v_trh, base + p*4096 + tf*2048 + rd*256
                else: addr, off = (v_tr1 if tf else v_tr0), base + p*4096 + rd*512
                L.append(('rd', f'ds_read_b64_tr_b16 {vr(buf+4*f+2*rd,2)}, v{addr} offset:{off}', ('W', s)))
        return L
    def xreads(self, s):
        L = []
        if s == 8: L += [f'v_add_u32 v{v_xe}, 0x10000, v{v_xe}']
        if s == 9: L += [f'v_add_u32 v{v_xo}, 0x10000, v{v_xo}']
        for t in range(2):
            L.append(('rd', f'ds_read_b128 {ar((2*s+t)*4,4)}, v{v_xo if s & 1 else v_xe} offset:{(s & 7)*8192 + t*1024}', ('X', s)))
        return L
    def mfmas(self, s, typ):
        buf = WF + (s & 1)*16; L = []
        for f in range(4):
            p, tf = f >> 1, f & 1
            for t in range(2):
                w = vr(buf+4*f, 4)
                if s < 32:
                    ks = s & 15; first = ks == 0
                    if s < 16 and typ == 'A': acc = ACC0 + (16 if p == 0 else 0) + (tf*2+t)*4
                    else: acc = (ACC0 if s < 16 else ACC1) + (f*2+t)*4
                    swap = (s < 16 and typ == 'A' and p == 1)
                else:
                    u, cidx = (p, tf) if typ == 'A' else (tf, p)
                    ks = 2*(s-32) + u; first = ks == 0; acc = ACC0 + (cidx*2+t)*4; swap = False
                x = ar((2*ks+t)*4, 4)
                A, B = (x, w) if swap else (w, x)
                L.append(f'v_mfma_f32_16x16x32_bf16 {vr(acc,4)}, {A}, {B}, {0 if first else vr(acc,4)}')
        return L
    def silu_batch(self, G, U, O, T):
        L = [f'v_mul_f32 v{T+r}, s{s_nl2e}, v{G+r}' for r in range(4)]
        for r in range(4): L += [f'v_exp_f32 v{T+r}, v{T+r}', f'v_mul_f32 v{U+r}, v{G+r}, v{U+r}']
        L += [f'v_add_f32 v{T+r}, 1.0, v{T+r}' for r in range(4)]
        L += [f'v_rcp_f32 v{T+r}, v{T+r}' for r in range(4)]
        L += [f'v_mul_f32 v{U+r}, v{U+r}, v{T+r}' for r in range(4)]
        L += [f'v_cvt_pk_bf16_f32 v{O}, v{U}, v{U+1}', f'v_cvt_pk_bf16_f32 v{O+1}, v{U+2}, v{U+3}']
        return L
    def hstore(self, regs, t, istep, key):
        return [f's_add_u32 s{s_t3}, s{s_xo}, {t*73728 + istep*1024}',
                ('dma', f'buffer_store_dwordx4 {vr(regs,4)}, v{v_l16}, {srd(sWS)}, s{s_t3} offen sc1', key)]
    def ffn_epi(self, acc, istep, key):
        L = []
        for t in range(2):
            O = acc + t*4
            for tf in range(2):
                L += self.silu_batch(acc + (tf*2+t)*4, acc + ((2+tf)*2+t)*4, O + 2*tf, v_T + 4*tf)
            L += self.hstore(O, t, istep, (key, t))
        return L
    def kv_epi(self):
        L = []
        K = lambda hh, t: ACC0 + 16 + (hh*2+t)*4
        V = lambda hh, t: ACC0 + (hh*2+t)*4
        pk = lambda d, s: [f'v_cvt_pk_bf16_f32 v{d}, v{s}, v{s+1}', f'v_cvt_pk_bf16_f32 v{d+1}, v{s+2}, v{s+3}']
        L += pk(v_KP, K(0,1)) + pk(v_KP+2, K(1,1))
        L += [('dma', f'buffer_store_dwordx4 {vr(v_KP,4)}, v{v_l16}, {srd(sWS)}, s{s_ha} offen sc1', ('halo', 0))]
        L += pk(v_T, V(0,1)) + pk(v_T+2, V(1,1))
        L += [('dma', f'buffer_store_dwordx4 {vr(v_T,4)}, v{v_l16}, {srd(sWS)}, s{s_ha} offen offset:1024 sc1', ('halo', 1))]
        L += pk(v_KP+4, K(0,0)) + pk(v_KP+6, K(1,0))
        L += pk(16, V(0,1)) + pk(18, V(0,0)) + pk(24, V(1,0)) + pk(26, V(1,1))
        return L
    def step(self, a, mf, reads, misc, valu, quota, endwait, barrier=True, lazy=False, xr=()):
        reads = list(reads); misc = list(misc); xr = list(xr)
        used = 0
        rp = [int(c) for c in str(self.opt.get('rp', 12111110))]
        vp = [int(c) for c in str(self.opt.get('vp', 1111111))]
        order = [0, 2, 4, 1, 3, 5, 6]
        slot = {g: [] for g in range(8)}
        for n, grp in enumerate(misc): slot[sorted(order[:len(misc)])[n] if len(misc) <= 7 else min(n, 6)].append(grp)
        toks = []
        for k, m in enumerate(mf):
            a(m)
            for _ in range(rp[k]):
                if reads: self.do(a, reads.pop(0)); toks.append(a.nid)
            if k in (4, 5):
                while xr:
                    it = xr.pop(0); self.do(a, it)
                    if not isinstance(it, str): break
            for grp in slot[k]:
                for it in grp: self.do(a, it)
            if k < 7:
                lim = quota*sum(vp[:k+1])/sum(vp)
                while valu and used + self.weight(valu[0]) <= lim + 0.01:
                    it = valu.pop(0); used += self.weight(it); self.do(a, it)
            if lazy and k == 3: a.wait(lg_tok=self.prev_toks)
            if lazy and k == 6: a.wait(vm_tok=[self.tok[k_] for k_ in endwait if k_ in self.tok], lg_tok=toks[:4])
        assert not reads and not xr
        self.prev_toks = toks
        if not lazy: a.wait(vm_tok=[self.tok[k] for k in endwait if k in self.tok], lg0=True)
        if barrier:
            a.barrier()
            if self.opt.get('xbar'): a.out.pop()
    def p1(self, a, typ):
        self.wstep = [32*(3072 if typ == 'A' else 3584), 32*3584, 32*(3072 if typ == 'A' else 3584)]
        if typ == 'A': a(f'v_mov_b32 v{v_wv2}, v{v_wv0}')
        a(f's_and_b32 s{s_t0}, s{s_ty}, 1'); a(f's_lshl_b32 s{s_t0}, s{s_t0}, 1'); a(f's_add_u32 s{s_t0}, s{s_t0}, s{s_c}'); a(f's_lshl_b32 s{s_t0}, s{s_t0}, 10')
        a(f's_add_u32 s{s_xo}, s{s_hst}, s{s_t0}')
        for x in self.wreads(0, typ) + self.xreads(0) + self.xreads(1): self.do(a, x)
        a.wait(vm_tok=[self.tok[('W', 1)]], lg0=True); a.barrier()
        valu = []
        nb = 0; self.prev_toks = []
        for p in range(4):
            valu += [f's_add_u32 s22, s{s_rb64}, {p}', f's_and_b32 s22, s22, {3 if self.opt.get("brot", 1) else 0}'] + ([] if self.opt.get("brot", 1) else [f's_mov_b32 s22, {p}'])
            valu += [f's_lshr_b32 s23, s22, 1', f's_and_b32 s22, s22, 1',
                     f's_lshl_b32 s{s_bg+p}, s23, 15', f's_lshl_b32 s{s_bl+p}, s23, 14', f's_lshl_b32 s23, s22, 13', f's_lshl_b32 s22, s22, 10',
                     f's_add_u32 s{s_bg+p}, s{s_bg+p}, s23', f's_add_u32 s{s_bl+p}, s{s_bl+p}, s22',
                     f's_add_u32 s{s_bg+p}, s{s_bg+p}, s{s_b2}', f's_add_u32 s{s_bl+p}, s{s_bl+p}, s{s_bm}']
        lazy = self.opt.get('lazy', 1)
        D = RING - lazy
        for s in range(40):
            misc = []; reads = []
            if s < 39: reads += self.wreads(s+1, typ)
            xr = self.xreads(s+2) if s + 2 < 16 else []
            if s == 0: misc += [self.wdma(a, k) for k in range(4, D)]
            if s + D < 40: misc.append(self.wdma(a, s + D))
            if s >= 5 and s % 2 == 1 and nb < 14: misc.append(self.bdma_rot(nb)); nb += 1
            if s == 11: misc.append([lambda a: self.poll_issue(a, v_P, v_pl, sDBG, 0)])
            if s == 15: misc.append([lambda a: self.poll_check(a, v_P, v_pl, sDBG, 0, 0xffff)])
            quota = 16
            if s == 16:
                valu += self.kv_epi() if typ == 'A' else self.ffn_epi(ACC0, 0, 'h0')
            if 16 <= s < 32: quota = self.opt.get('q1', 14)
            if typ == 'A' and s == 21: misc.append([lambda a: a.wait(vm_tok=self.tok[('halo', 1)]), lambda a: self.flag(a, 3)])
            if typ == 'B' and s == 29: misc.append([lambda a: a.wait(vm_tok=self.tok[('h0', 1)]), lambda a: self.flag(a, 0)])
            if s == 32:
                assert not valu
                valu += self.ffn_epi(ACC1, 8 if typ == 'A' else 4, 'h1')
                self.dstamp(a, 3)
            if s == 16: self.dstamp(a, 2)
            if s >= 32: quota = 17
            if typ == 'A' and s == 28: misc.append([lambda a: self.poll_issue(a, v_P2, v_pl, sWS, f's{s_hl}')])
            if typ == 'A' and s == 31:
                misc.append([lambda a: self.poll_check(a, v_P2, v_pl, sWS, f's{s_hl}', f's{s_hms}'),
                             f's_cmp_eq_u32 s{s_hms}, 0', f's_cselect_b32 s{s_t1}, {OOB}, s{s_ha}', f's_sub_u32 s{s_t1}, s{s_t1}, 32768',
                             f'buffer_load_dwordx4 {vr(28,4)}, v{v_l16}, {srd(sWS)}, s{s_t1} offen sc1',
                             f'buffer_load_dwordx4 {vr(20,4)}, v{v_l16}, {srd(sWS)}, s{s_t1} offen offset:1024 sc1'])
            p0 = self.opt.get('p0', 33)
            if s == p0: misc.append([lambda a: self.poll_issue(a, v_P, v_pl, sWS, f's{s_pl}')])
            if s == p0 + 3: misc.append([lambda a: self.poll_check(a, v_P, v_pl, sWS, f's{s_pl}', 0xf0)])
            if p0 + 3 <= s < p0 + 7: misc += [self.aload(2*(s-p0-3)), self.aload(2*(s-p0-3)+1)]
            if s - lazy in (35, 36): misc.append(self.bdma(7, s-lazy-35))
            if s - lazy in (37, 38): misc.append(self.bdma(8, s-lazy-37))
            if s - lazy == 39: misc += [self.bdma(9, 0), self.bdma(9, 1)]
            self.step(a, self.mfmas(s, typ), reads, misc, valu, quota, [('W', s+2)], barrier=(s < 39 or lazy), lazy=lazy, xr=xr)
        for it in valu: self.do(a, it)
        if lazy:
            for n in range(2):
                for it in self.bdma(9, n): self.do(a, it)
        self.dstamp(a, 4)
    def half_epi(self, a):
        X = WF
        for t in range(2):
            for x in self.silu_batch(ACC0 + t*4, ACC0 + (2+t)*4, X + 2*t, v_T + 4*t): a(x)
            if t == 0:
                a.wait(vm_tok=self.tok[('h1', 1)]); self.flag(a, 1)
        a(f'v_permlane32_swap_b32 v{X}, v{X+2}'); a(f'v_permlane32_swap_b32 v{X+1}, v{X+3}')
        a(f'v_lshrrev_b32 v{v_T}, 5, v{v_hv}'); a(f'v_mul_u32_u24 v{v_T}, {73728-512}, v{v_T}'); a(f'v_add_u32 v{v_T}, v{v_T}, v{v_l16}')
        a(f's_and_b32 s{s_t0}, s{s_ty}, 1'); a(f's_lshl_b32 s{s_t0}, s{s_t0}, 1'); a(f's_add_u32 s{s_t0}, s{s_t0}, s{s_c}'); a(f's_lshl_b32 s{s_t0}, s{s_t0}, 9')
        a(f's_add_u32 s{s_t0}, s{s_t0}, s{s_hst}'); a(f's_add_u32 s{s_t0}, s{s_t0}, {12*1024}')
        self.tok['fin'] = a(f'buffer_store_dwordx4 {vr(X,4)}, v{v_T}, {srd(sWS)}, s{s_t0} offen sc1')
    def attention(self, a):
        cur = [0]*4; prv = [0]*4
        for l in range(64):
            t, g = l & 15, l >> 4
            for r in range(4):
                i = 4*g + r
                if (i ^ t) & 1: continue
                if i <= t: cur[r] |= 1 << l
                else: prv[r] |= 1 << l
        sm = lambda k: f's[{s_m+2*k}:{s_m+2*k+1}]'
        def setm(k, m): a(f's_mov_b32 s{s_m+2*k}, {hex(m & 0xffffffff)}'); a(f's_mov_b32 s{s_m+2*k+1}, {hex(m >> 32)}')
        for r in range(4): setm(r, cur[r]); setm(4+r, prv[r])
        setm(8, cur[0] | cur[1]); setm(9, cur[2] | cur[3])
        Mc, Mp, Mp0, Ac, Ap, ONES, NEG, HM = WF, WF+4, WF+8, WF+12, WF+14, WF+16, WF+20, WF+21
        a(f'v_mov_b32 v{NEG}, {hex(f2u(-1e30))}')
        for r in range(4): a(f'v_cndmask_b32 v{Mc+r}, v{NEG}, 0, {sm(r)}')
        for r in range(4): a(f'v_cndmask_b32 v{Mp+r}, v{NEG}, 0, {sm(4+r)}')
        a(f's_cmp_eq_u32 s{s_hms}, 0'); a(f's_cselect_b64 {sm(0)}, 0, -1')
        for r in range(4): a(f'v_cndmask_b32 v{Mp0+r}, v{NEG}, v{Mp+r}, {sm(0)}')
        Qa = lambda hh, t: ACC0 + (hh*2+t)*4
        units = [(0,0),(1,0),(0,1),(1,1)]
        for hh, t in units:
            q = Qa(hh, t); a(f'v_cvt_pk_bf16_f32 v{q}, v{q}, v{q+1}'); a(f'v_cvt_pk_bf16_f32 v{q+1}, v{q+2}, v{q+3}')
        Kc = lambda hh, t: v_KP + (4 if t == 0 else 0) + 2*hh
        Kp = lambda hh, t: 28 + 2*hh if t == 0 else Kc(hh, 0)
        Sg = lambda u: ACC1 + 8*u
        for u, (hh, t) in enumerate(units):
            a(f'v_mfma_f32_16x16x16_bf16 {vr(Sg(u)+4,4)}, {vr(Kc(hh,t),2)}, {vr(Qa(hh,t),2)}, {vr(Mc,4)}')
        for u, (hh, t) in reversed(list(enumerate(units))):
            a(f'v_mfma_f32_16x16x16_bf16 {vr(Sg(u),4)}, {vr(Kp(hh,t),2)}, {vr(Qa(hh,t),2)}, {vr(Mp0 if t == 0 else Mp,4)}')
        a.wait(vm_tok=self.tok[('h1', 1)]); self.flag(a, 1)
        a(f's_mov_b32 s{s_m+2}, 0xaaaaaaaa'); a(f's_mov_b32 s{s_m+3}, 0xaaaaaaaa')
        a(f'v_mov_b32 v{HM}, 0xffff'); a(f'v_mov_b32 v{NEG}, 0xffff0000'); a(f'v_cndmask_b32 v{HM}, v{HM}, v{NEG}, {sm(1)}')
        for d in range(2): a(f'v_cndmask_b32 v{Ac+d}, 0, v{HM}, {sm(8+d)}')
        for d in range(2): a(f'v_xor_b32 v{Ap+d}, v{HM}, v{Ac+d}')
        for i in range(4): a(f'v_mov_b32 v{ONES+i}, 0x3f803f80')
        m = [v_T+u for u in range(4)]
        for u in (3, 2, 1, 0):
            S = Sg(u)
            a(f'v_max3_f32 v{S}, v{S}, v{S+1}, v{S+4}'); a(f'v_max3_f32 v{S+2}, v{S+2}, v{S+3}, v{S+6}')
            a(f'v_max_f32 v{S}, v{S}, v{S+5}'); a(f'v_max_f32 v{S+2}, v{S+2}, v{S+7}')
            a(f'v_max_f32 v{m[u]}, v{S}, v{S+2}')
        c = 0.25*LOG2E
        a(f's_mov_b32 s{s_t0}, {hex(f2u(c))}')
        a(f'v_permlane32_swap_b32 v{m[2]}, v{m[3]}'); a(f'v_permlane32_swap_b32 v{m[0]}, v{m[1]}')
        a(f'v_max_f32 v{m[2]}, v{m[2]}, v{m[3]}'); a(f'v_max_f32 v{m[0]}, v{m[0]}, v{m[1]}')
        a(f'v_permlane16_swap_b32 v{m[0]}, v{m[2]}')
        a(f'v_max_f32 v{m[0]}, v{m[0]}, v{m[2]}')
        a(f'v_mul_f32 v{m[2]}, s{s_t0}, v{m[0]}'); a(f'v_mul_f32 v{m[0]}, s{s_t0}, v{m[0]}')
        a(f'v_permlane16_swap_b32 v{m[0]}, v{m[2]}')
        a(f'v_mov_b32 v{m[1]}, v{m[0]}'); a(f'v_mov_b32 v{m[3]}, v{m[2]}')
        a(f'v_permlane32_swap_b32 v{m[0]}, v{m[1]}'); a(f'v_permlane32_swap_b32 v{m[2]}, v{m[3]}')
        for u in range(4):
            S = Sg(u)
            a(f'v_fma_f32 v{S}, v{S}, s{s_t0}, -v{m[u]}'); a(f'v_fma_f32 v{S+2}, v{S+2}, s{s_t0}, -v{m[u]}')
        for u in range(4):
            S = Sg(u); a(f'v_exp_f32 v{S}, v{S}'); a(f'v_exp_f32 v{S+2}, v{S+2}')
        Vw = {(0,0): 18, (0,1): 16, (1,0): 22, (1,1): 24}
        for u, (hh, t) in enumerate(units):
            S = Sg(u); P = S + 4
            a(f'v_cvt_pk_bf16_f32 v{S}, v{S}, v{S}'); a(f'v_cvt_pk_bf16_f32 v{S+2}, v{S+2}, v{S+2}')
            first, second = (Ac, Ap) if hh == 0 else (Ap, Ac)
            a(f'v_and_b32 v{P}, v{first}, v{S}'); a(f'v_and_b32 v{P+1}, v{first+1}, v{S+2}')
            a(f'v_and_b32 v{P+2}, v{second}, v{S}'); a(f'v_and_b32 v{P+3}, v{second+1}, v{S+2}')
        for u, (hh, t) in enumerate(units):
            S = Sg(u); P = S + 4
            a(f'v_mfma_f32_16x16x32_bf16 {vr(S,4)}, {vr(ONES,4)}, {vr(P,4)}, 0')
            a(f'v_mfma_f32_16x16x32_bf16 {vr(Qa(hh,t),4)}, {vr(Vw[(hh,t)],4)}, {vr(P,4)}, 0')
        for u in range(4): a(f'v_rcp_f32 v{Sg(u)}, v{Sg(u)}')
        for t in range(2):
            O = WF + 24 + 4*t
            for hh in range(2):
                u = units.index((hh, t)); q = Qa(hh, t)
                for r in range(4): a(f'v_mul_f32 v{q+r}, v{q+r}, v{Sg(u)}')
                a(f'v_cvt_pk_bf16_f32 v{O+2*hh}, v{q}, v{q+1}'); a(f'v_cvt_pk_bf16_f32 v{O+2*hh+1}, v{q+2}, v{q+3}')
            for it in self.hstore(O, t, 14, 'fin'): self.do(a, it)
    def breads(self, i):
        buf = WF + (i & 1)*16; L = []
        TA = v_T
        for ct in range(4): L.append(f'v_add_u32 v{TA+ct}, {bslot(i)}, v{v_KP+ct}')
        for ct in range(4):
            for rd in range(2): L.append(('rd', f'ds_read_b64_tr_b16 {vr(buf+4*ct+2*rd,2)}, v{TA+ct} offset:{rd*2048}', ('B', i)))
        return L
    def p3(self, a):
        lane = v_hv; T0, T1, T2, T3 = v_T+4, v_T+5, v_T+6, v_T+7
        a(f'v_lshrrev_b32 v{T0}, 2, v{lane}'); a(f'v_lshlrev_b32 v{T0}, 7, v{T0}'); a(f'v_and_b32 v{T1}, 3, v{lane}'); a(f'v_lshl_add_u32 v{T0}, v{T1}, 3, v{T0}')
        a(f'v_bfe_u32 v{T1}, v{lane}, 3, 2'); a(f'v_lshl_add_u32 v{T0}, v{T1}, 5, v{T0}'); a(f's_lshl_b32 s{s_t0}, s{s_r}, 12'); a(f'v_add_u32 v{v_KP}, s{s_t0}, v{T0}')
        for ct in (1, 2, 3): a(f'v_xor_b32 v{v_KP+ct}, {ct*32}, v{v_KP}')
        for x in self.breads(0): self.do(a, x)
        a.wait(lg0=True); a.barrier()
        self.dstamp(a, 5)
        XR = ACC0
        c1 = self.opt.get('c1', 1); c2 = self.opt.get('c2', 7); pace = self.opt.get('pace', 4)
        na = 8
        a(f's_add_u32 s{s_pl}, s{s_pl}, 128'); self.poll_issue(a, v_P, v_pl, sWS, f's{s_pl}')
        for i in range(18):
            misc = []; reads = self.breads(i+1) if i < 17 else []
            pre = reads[:4]; reads = reads[4:]
            for x in pre: a(x)
            n = 0
            if i == c1:
                misc.append([lambda a: a.wait(vm_tok=self.tok['fin']), lambda a: self.flag(a, 2),
                             lambda a: self.poll_check(a, v_P, v_pl, sWS, f's{s_pl}', 0xff), lambda a: self.dstamp(a, 6)])
            if i == c2 - 2: misc.append([f's_add_u32 s{s_pl}, s{s_pl}, 128', lambda a: self.poll_issue(a, v_P, v_pl, sWS, f's{s_pl}')])
            if i == c2:
                misc.append([lambda a: self.poll_check(a, v_P, v_pl, sWS, f's{s_pl}', 0xff), lambda a: self.dstamp(a, 7)])
            lim = 8 if i < c1 else (24 if i < c2 else 36)
            nA = min(lim - na, pace if i + 10 < 18 else pace + 2)
            for k in range(0, nA, 2):
                misc.append(self.aload(na) + self.aload(na+1)); na += 2
            if i + 10 < 18: misc.append(self.bdma(i+10, 0) + self.bdma(i+10, 1))
            if i == 12:
                misc.append([f'v_lshrrev_b32 v{T0}, 3, v{lane}', f'v_and_b32 v{T1}, 7, v{lane}', f'v_lshlrev_b32 v{T1}, 4, v{T1}', f'v_lshl_add_u32 v{v_xe}, v{T0}, 10, v{T1}',
                             f's_lshl_b32 s{s_wo0}, s{s_rb64}, 16', f's_lshl_b32 s{s_t0}, s{s_ct}, 7', f's_add_u32 s{s_wo0}, s{s_wo0}, s{s_t0}',
                             f's_lshl_b32 s{s_t0}, s{s_w}, 13', f's_add_u32 s{s_wo0}, s{s_wo0}, s{s_t0}',
                             f'buffer_load_dwordx4 {vr(XR,4)}, v{v_xe}, {srd(sX)}, s{s_wo0} offen'])
            assert na >= 2*i + 2 + 2*nA*0 and ('A', 2*i+1) in self.tok
            buf = WF + (i & 1)*16; mf = []
            for ct in range(4):
                for t in range(2):
                    acc = ACC1 + (ct*2+t)*4; n = 2*i + t
                    mf.append(f'v_mfma_f32_16x16x32_bf16 {vr(acc,4)}, {vr(buf+4*ct,4)}, {ar((n % 32)*4,4)}, {0 if i == 0 else vr(acc,4)}')
            self.step(a, mf, reads, misc, [], 0, [('B', i+2, 0), ('B', i+2, 1)], barrier=(i < 17))
        self.dstamp(a, 8)
        SCR = 49152
        a(f'v_and_b32 v{T0}, 15, v{lane}'); a(f'v_lshrrev_b32 v{T1}, 4, v{lane}'); a(f'v_and_b32 v{T2}, 7, v{lane}'); a(f'v_xor_b32 v{T1}, v{T1}, v{T2}')
        a(f'v_lshlrev_b32 v{T1}, 4, v{T1}'); a(f'v_lshl_add_u32 v{T0}, v{T0}, 8, v{T1}')
        a(f's_lshl_b32 s{s_t0}, s{s_r}, 14'); a(f's_lshl_b32 s{s_t1}, s{s_c}, 13'); a(f's_add_u32 s{s_t0}, s{s_t0}, s{s_t1}'); a(f's_add_u32 s{s_t0}, s{s_t0}, {SCR}')
        a(f'v_add_u32 v{v_KP}, s{s_t0}, v{T0}'); a(f'v_xor_b32 v{v_KP+1}, 64, v{v_KP}')
        for ct in range(4):
            for t in range(2):
                a(f'ds_write_b128 v{v_KP + (ct & 1)}, {vr(ACC1 + (ct*2+t)*4, 4)} offset:{t*4096 + (ct >> 1)*128}')
        a(f'v_lshrrev_b32 v{T0}, 3, v{lane}'); a(f'v_lshlrev_b32 v{T1}, 1, v{T2}'); a(f'v_xor_b32 v{T1}, v{T1}, v{T0}'); a(f'v_lshlrev_b32 v{T1}, 4, v{T1}')
        a(f'v_lshl_add_u32 v{T0}, v{T0}, 8, v{T1}'); a(f's_lshl_b32 s{s_t0}, s{s_w}, 11'); a(f's_add_u32 s{s_t0}, s{s_t0}, {SCR}')
        a(f'v_add_u32 v{v_KP+2}, s{s_t0}, v{T0}'); a(f'v_xor_b32 v{v_KP+3}, 16, v{v_KP+2}')
        R = 8
        for j in range(4):
            a(f'v_lshlrev_b32 v{R+2*j}, 16, v{XR+j}'); a(f'v_and_b32 v{R+2*j+1}, 0xffff0000, v{XR+j}')
        a.wait(lg0=True); a.barrier()
        for k in range(4):
            for hf in range(2): a(f'ds_read_b128 {vr(WF+8*k+4*hf,4)}, v{v_KP+2+hf} offset:{k*16384}')
        for k in range(4):
            for j in range(8): a(f'v_add_f32 v{R+j}, v{R+j}, v{WF+8*k+j}')
        for j in range(4): a(f'v_cvt_pk_bf16_f32 v{XR+j}, v{R+2*j}, v{R+2*j+1}')
        a(f'buffer_store_dwordx4 {vr(XR,4)}, v{v_xe}, {srd(sOUT)}, s{s_wo0} offen')
    def finish(self, a):
        if self.diag:
            a.wait(vm0=True)
            a(f's_memtime s[{s_st}:{s_st+1}]'); a(f's_memrealtime s[{s_m}:{s_m+1}]'); a.wait(lg0=True)
            a(f's_lshl_b32 s{s_t0}, s2, 3'); a(f's_add_u32 s{s_t0}, s{s_t0}, s{s_w}'); a(f's_lshl_b32 s{s_t0}, s{s_t0}, 6'); a(f's_add_u32 s{s_t0}, s{s_t0}, {STAMP}')
            regs = [0] + [s_st+2+i for i in range(8)] + [1, 1] + [s_st, 3, s_m]
            for i, s in enumerate(regs):
                a(f'v_mov_b32 v0, s{s}'); a(f'buffer_store_dword v0, v{v_fl}, {srd(sWS)}, s{s_t0} offen offset:{4*i}')
        a('s_endpgm')
    def build(self):
        self.tok = {}; self.lds_key = {4+k: ('X', k) for k in range(16)}; self.lds_rd = {4+k: [] for k in range(16)}; self.lds_wr = {4+k: [] for k in range(16)}
        a = Asm()
        self.prologue(a)
        a(f's_cmp_ge_u32 s{s_ty}, 2'); a('s_cbranch_scc1 L_typeB')
        parts = [a]
        import copy
        base = copy.deepcopy((self.tok, self.lds_key, self.lds_rd, self.lds_wr))
        for typ in 'AB':
            b = a.fork(); self.tok, self.lds_key, self.lds_rd, self.lds_wr = copy.deepcopy(base)
            if typ == 'B': b.raw('.p2align 6'); b.label('L_typeB')
            self.p1(b, typ)
            if typ == 'A': self.attention(b)
            else: self.half_epi(b)
            self.p3(b)
            self.finish(b)
            parts.append(b)
        hdr = open('parallel_sum__sliding_local_dilated__glu_gated_swiglu__prompt.s.ref').read().split('\n')
        H = [l for l in hdr if l.startswith(';') and '@launch' not in l]
        H.append('; @launch grid=(256,1,1) block=(512,1,1) lds=163840')
        H += ['.amdgcn_target "amdgcn-amd-amdhsa--gfx950"', '.text', f'.globl {KN}', '.p2align 8', f'.type {KN},@function', f'{KN}:']
        T = ['L_end:', '    s_endpgm'] + self.slow + ['L_codeend:']
        T += ['.section .rodata,"a"', '.p2align 6', f'.amdhsa_kernel {KN}', '  .amdhsa_next_free_vgpr 256', '  .amdhsa_next_free_sgpr 102',
              '  .amdhsa_accum_offset 128', '  .amdhsa_group_segment_fixed_size 0', '  .amdhsa_kernarg_size 80', '  .amdhsa_user_sgpr_count 2',
              '  .amdhsa_user_sgpr_kernarg_segment_ptr 1', '  .amdhsa_system_sgpr_workgroup_id_x 1', '.end_amdhsa_kernel']
        sys.stderr.write('instr: ' + ' '.join(f'{p.ninst}(+{p.nnop} nops)' for p in parts) + '\n')
        return '\n'.join(H) + '\n' + ''.join(p.text() for p in parts) + '\n'.join(T) + '\n'

if __name__ == '__main__':
    out = sys.argv[1]; diag = 'diag' in sys.argv[2:]
    opt = {k: int(v) for k, v in (x.split('=') for x in sys.argv[2:] if '=' in x)}
    g = Gen(diag=diag, opt=opt)
    open(out, 'w').write(g.build())
```

```python
import sys, struct, math
from asmlib import Asm, Ins

KN = 'parallel_sum__sliding_local_dilated__glu_gated_swiglu__prompt_kernel'
def f2u(x): return struct.unpack('<I', struct.pack('<f', x))[0]

HALO = 0xA00000; FLAGS = 0xC00000; WSSZ = 0xD00000; STAMP = 0xD00000
OOB = 0x40000000
LOG2E = 1.4426950408889634

sX, sW0, sW1, sW2, sB2, sBo, sWS, sDBG, sOUT = 24, 28, 32, 36, 40, 44, 48, 52, 56
(s_w, s_r, s_c, s_kp, s_rb, s_ty, s_rb64, s_ct, s_t0, s_t1, s_t2, s_t3,
 s_wo0, s_wo1, s_wo2,
 s_wm,
 s_bm,
 s_b2, s_b2h, s_bo,
 s_hst,
 s_fl,
 s_pl,
 s_hl,
 s_hms,
 s_ha,
 s_al,
 s_cnt, s_nl2e, s_xo) = range(60, 90)
s_xq, s_p32 = 10, 11
s_rot, s_wt = 20, 21
s_bg, s_bl = 12, 16
s_m = 4
s_st = 90
def srd(b): return f's[{b}:{b+3}]'

ACC0, ACC1, WF = 0, 32, 64
v_l16, v_tr0, v_tr1, v_trh, v_xe, v_xo, v_wv0, v_wv1, v_wv2, v_bv, v_fl, v_pl, v_P, v_one, v_hv = range(96, 111)
v_KP = 112
v_T = 120
v_P2 = 111
def vr(b, n): return f'v[{b}:{b+n-1}]' if n > 1 else f'v{b}'
def ar(b, n): return f'a[{b}:{b+n-1}]'

RING = 6
def bslot(i):
    i %= 10
    return 49152 + 16384*i if i < 7 else {7: 32768, 8: 0, 9: 16384}[i]
BSTEP = [('w2',128,0),('w2',160,0),('w2',320,0),('w2',352,0),('w2',192,0),('w2',224,0),('w2',384,0),('w2',416,0),
         ('w2',0,0),('w2',32,0),('w2',64,0),('w2',96,0),('w2',256,1),('w2',288,1),('wo',0,0),('wo',32,0),('wo',64,0),('wo',96,0)]

class Gen:
    def __init__(self, diag=False, stop=None, opt=None):
        self.diag = diag; self.stop = stop; self.opt = opt or {}
        self.slow = []; self.nlab = 0; self.nstamp = 0
    def dstamp(self, a, i):
        if not self.diag: return
        a(f's_memtime s[{s_st}:{s_st+1}]'); a(f's_memrealtime s[100:101]'); a.wait(lg0=True)
        d = s_st+2+i if i < 8 else 1
        a(f's_sub_u32 s{s_st}, s{s_st}, s0'); a(f's_sub_u32 s100, s100, s3'); a(f's_pack_ll_b32_b16 s{d}, s{s_st}, s100')
    def poll_issue(self, a, vdst, vaddr, sr, soff):
        return a(f'buffer_load_dword v{vdst}, v{vaddr}, {srd(sr)}, {soff} offen sc1')
    def poll_check(self, a, vdst, vaddr, sr, soff, mask):
        self.nlab += 1; n = self.nlab
        a(f'v_cmp_eq_u32 vcc, 1, v{vdst}')
        a(f's_and_b32 s{s_t0}, vcc_lo, {mask}')
        a(f's_cmp_eq_u32 s{s_t0}, {mask}')
        a(f's_cbranch_scc0 L_slow{n}')
        a.label(f'L_ok{n}')
        S = [f'L_slow{n}:', f'    s_mov_b32 s{s_cnt}, 0', f'L_spin{n}:',
             f'    buffer_load_dword v{vdst}, v{vaddr}, {srd(sr)}, {soff} offen sc1', '    s_waitcnt vmcnt(0)',
             f'    v_cmp_eq_u32 vcc, 1, v{vdst}', '    s_nop 3', f'    s_and_b32 s{s_t0}, vcc_lo, {mask}', f'    s_cmp_eq_u32 s{s_t0}, {mask}',
             f'    s_cbranch_scc1 L_ok{n}', f'    s_add_u32 s{s_cnt}, s{s_cnt}, 1', f'    s_cmp_lt_u32 s{s_cnt}, 0x8000',
             f'    s_cbranch_scc1 L_spin{n}', f'    s_branch L_ok{n}']
        self.slow += S
    def flag(self, a, stage):
        return a(f'buffer_store_dword v{v_one}, v{v_fl}, {srd(sWS)}, s{s_fl} offen offset:{stage*128} sc1')
    def wdma(self, a, slab):
        ch = 0 if slab < 16 else (1 if slab < 32 else 2)
        so = [s_wo0, s_wo1, s_wo2][ch]; vv = [v_wv0, v_wv1, v_wv2][ch]; sr = [sW0, sW1, sW2][ch]
        step = self.wstep[ch]
        k = (slab & 15) if ch < 2 else 2*(slab - 32)
        nt = ' nt' if self.opt.get('wnt', 0) else ''
        L = [f's_add_u32 s{s_wt}, s{s_rot}, {k}', f's_and_b32 s{s_wt}, s{s_wt}, 15', f's_mul_i32 s{s_wt}, s{s_wt}, {step}',
             f's_add_u32 m0, s{s_wm}, {(slab % RING)*8192}', f's_add_u32 s{s_wt}, s{s_wt}, s{so}',
             ('dma', f'buffer_load_dwordx4 v{vv}, {srd(sr)}, s{s_wt} offen{nt} lds', ('W', slab))]
        return L
    def bdma_rot(self, nb):
        G, p = nb >> 2, nb & 3
        if G == 3: return self.bdma(6, p)
        def claim(a):
            for i in (2*G, 2*G+1):
                for b in self.blocks(('B', i)):
                    for t in self.lds_rd.get(b, []): assert self.lds_key[b] == ('B', i) or a.done_at_barrier(t), ('WAR rot', nb)
        return [claim, f's_add_u32 m0, s{s_bl+p}, {bslot(2*G)}', f's_add_u32 s{s_t1}, s{s_bg+p}, {BSTEP[2*G][1]*1024}',
                ('dma', f'buffer_load_dwordx4 v{v_bv}, {srd(sB2)}, s{s_t1} offen lds', ('B', 2*G + (p >> 1), p & 1))]
    def bdma(self, i, n):
        mat, ro, half = BSTEP[i]
        base = {('w2',0): s_b2, ('w2',1): s_b2h, ('wo',0): s_bo}[(mat, half)]
        off = ro*1024 + n*(16384 if half else 8192)
        sr = sB2 if mat == 'w2' else sBo
        return [f's_add_u32 m0, s{s_bm}, {bslot(i) + n*1024}', f's_add_u32 s{s_t1}, s{base}, {off}',
                ('dma', f'buffer_load_dwordx4 v{v_bv}, {srd(sr)}, s{s_t1} offen lds', ('B', i, n))]
    def aload(self, n):
        i, t = n >> 1, n & 1
        return [f's_add_u32 s{s_t2}, s{s_al}, {t*73728 + i*1024}',
                ('dma', f'buffer_load_dwordx4 {ar((n % 32)*4, 4)}, v{v_l16}, {srd(sWS)}, s{s_t2} offen sc1', ('A', n))]
    def do(self, a, it):
        if isinstance(it, str): a(it)
        elif callable(it): it(a)
        elif it[0] == 'dma':
            key = it[2]; blocks = self.blocks(key)
            for b in blocks:
                if self.lds_key.get(b) != key[:2]:
                    for t in self.lds_rd.get(b, []): assert a.done_at_barrier(t), ('WAR on LDS', key, b)
                    self.lds_key[b] = key[:2]; self.lds_rd[b] = []; self.lds_wr[b] = []
            self.tok[key] = a(it[1])
            if self.opt.get('xdma') and key[0] in ('W', 'B') and not (key[0] == 'W' and key[1] < 4): a.out.pop()
            if self.opt.get('xb') and key[0] == 'B': a.out.pop()
            for b in blocks: self.lds_wr[b].append(self.tok[key])
        elif it[0] == 'rd':
            key = it[2]
            for b in self.blocks(key):
                assert self.lds_key.get(b) == key, ('stale LDS read', key, self.lds_key.get(b))
                assert len(self.lds_wr[b]) == (2 if key[0] == 'B' else 1) or key[0] == 'X'
                for t in self.lds_wr[b]: assert a.done_at_barrier(t), ('RAW on LDS', key)
            t = a(it[1])
            if self.opt.get('xrd') and key[0] == 'W': a.out.pop()
            for b in self.blocks(key): self.lds_rd[b].append(t)
        else: raise ValueError(it)
    def blocks(self, key):
        if key == 'fin' or key[0] not in ('W', 'B', 'X'): return []
        if key[0] == 'W': return [key[1] % RING]
        if key[0] == 'X': return [4 + key[1]]
        return [bslot(key[1]) // 8192, bslot(key[1]) // 8192 + 1]
    @staticmethod
    def weight(it):
        if isinstance(it, str):
            if it.startswith('s_'): return 0 if f's{s_t3},' in it else 1
            return 2 if it.split()[0].replace('_e32','').replace('_e64','') in ('v_exp_f32','v_rcp_f32','v_rsq_f32') else 1
        return 0
    def prologue(self, a):
        a('s_cmp_ge_u32 s2, 256'); a('s_cbranch_scc1 L_end')
        a('s_load_dwordx16 s[4:19], s[0:1], 0'); a('s_load_dwordx4 s[20:23], s[0:1], 64')
        if self.diag: a(f's_memrealtime s[{s_st}:{s_st+1}]'); a(f's_memtime s[{s_st+2}:{s_st+3}]')
        if self.opt.get('cpf', 1):
            a(f's_getpc_b64 s[{sW0}:{sW0+1}]'); a.label('L_pc')
            a(f's_lshr_b32 s{s_t0}, s2, 3'); a(f's_lshl_b32 s{s_t0}, s{s_t0}, 11')
            a(f's_and_b32 s{sW0+1}, s{sW0+1}, 0xffff'); a(f's_mov_b32 s{sW0+2}, L_codeend-L_pc'); a(f's_mov_b32 s{sW0+3}, 0x20000')
            a('v_lshlrev_b32 v2, 7, v0'); a('v_lshrrev_b32 v3, 4, v0'); a('v_lshl_add_u32 v2, v3, 20, v2')
            a(f'buffer_load_dword v{v_P2}, v2, {srd(sW0)}, s{s_t0} offen')
        a('v_lshrrev_b32 v1, 6, v0'); a('v_and_b32 v0, 63, v0')
        a(f'v_readfirstlane_b32 s{s_w}, v1')
        a(f's_and_b32 s{s_t0}, s2, 7'); a(f's_lshr_b32 s{s_t1}, s2, 3')
        a(f's_and_b32 s{s_kp}, s{s_t0}, 3'); a(f's_and_b32 s{s_ty}, s{s_t1}, 3')
        a(f's_lshr_b32 s{s_rb}, s{s_t0}, 2'); a(f's_lshl_b32 s{s_rb}, s{s_rb}, 3'); a(f's_lshr_b32 s{s_t2}, s{s_t1}, 2'); a(f's_add_u32 s{s_rb}, s{s_rb}, s{s_t2}')
        a(f's_lshl_b32 s{s_rb64}, s{s_t0}, 2'); a(f's_lshr_b32 s{s_t2}, s{s_t1}, 3'); a(f's_add_u32 s{s_rb64}, s{s_rb64}, s{s_t2}')
        a(f's_and_b32 s{s_ct}, s{s_t1}, 7')
        a(f's_lshr_b32 s{s_r}, s{s_w}, 1'); a(f's_and_b32 s{s_c}, s{s_w}, 1')
        g, c16, T0, T1, T2 = v_T, v_T+1, v_T+2, v_T+3, v_T+4
        a(f'v_lshrrev_b32 v{g}, 4, v0'); a(f'v_and_b32 v{c16}, 15, v0')
        a(f'v_lshlrev_b32 v{v_l16}, 4, v0')
        a(f's_and_b32 s{s_t2}, s{s_rb}, {7 if self.opt.get("rot", 1) else 0}'); a(f's_lshl_b32 s{s_t2}, s{s_t2}, 7')
        a(f'v_lshlrev_b32 v{T0}, 10, v{g}'); a(f'v_lshl_add_u32 v{T1}, v{c16}, 4, s{s_t2}'); a(f'v_mov_b32 v{T2}, 0x3ff')
        for i in range(4):
            if i: a(f'v_add_u32 v{T1}, 0x100, v{T1}')
            a(f'v_and_or_b32 v{60+i}, v{T1}, v{T2}, v{T0}')
        a(f's_lshl_b32 s{s_xo}, s{s_rb}, 17'); a(f's_lshl_b32 s{s_t0}, s{s_w}, 14'); a(f's_add_u32 s{s_xo}, s{s_xo}, s{s_t0}')
        a(f'v_mov_b32 v{v_hv}, v0')
        a.wait(lg0=True)
        if self.diag: a(f's_mov_b32 s3, s{s_st}'); a(f's_mov_b32 s0, s{s_st+2}')
        if self.opt.get('probe'):
            a(f's_mov_b32 s{sX}, s10'); a(f's_and_b32 s{sX+1}, s11, 0xffff'); a(f's_mov_b32 s{sX+2}, {2048*1024}'); a(f's_mov_b32 s{sX+3}, 0x20000')
            a(f's_cmp_lg_u32 s{s_w}, 0'); a('s_cbranch_scc1 L_noprobe')
            a(f's_lshl_b32 s{s_t0}, s2, 13'); a('v_mov_b32 v2, 0')
            for i in range(self.opt['probe']):
                a(f'buffer_load_dword v3, v2, {srd(sX)}, s{s_t0} offen'); a.wait(vm0=True); a(f's_add_u32 s{s_t0}, s{s_t0}, 256')
            a.label('L_noprobe'); a.barrier()
        a(f's_mov_b32 s{sX}, s4'); a(f's_and_b32 s{sX+1}, s5, 0xffff'); a(f's_mov_b32 s{sX+2}, {2048*1024}'); a(f's_mov_b32 s{sX+3}, 0x20000')
        def xload(q):
            L = []
            for i in range(4):
                g_ = []
                if i == 0: g_ = [f's_add_u32 s{s_xq}, s{s_ty}, {q}', f's_and_b32 s{s_xq}, s{s_xq}, 3', f's_lshl_b32 s{s_xq}, s{s_xq}, 12', f's_add_u32 s{s_xq}, s{s_xq}, s{s_xo}']
                L.append(g_ + [f'buffer_load_dwordx4 {vr(16*q+4*i,4)}, v{60+i}, {srd(sX)}, s{s_xq} offen' + (' nt' if self.opt.get('xnt', 0) else '')])
            return L
        for grp in xload(0):
            for x in grp: a(x)
        lane = v_hv
        def mk(d, p, n):
            a(f's_mov_b32 s{d}, s{p}'); a(f's_and_b32 s{d+1}, s{p+1}, 0xffff'); a(f's_mov_b32 s{d+2}, {n}'); a(f's_mov_b32 s{d+3}, 0x20000')
        mk(sWS, 22, WSSZ + (0x100000 if self.diag else 0))
        a(f's_cmp_eq_u32 s{s_c}, 0'); a(f's_cselect_b32 s{sW1}, s12, s14'); a(f's_cselect_b32 s{sW1+1}, s13, s15')
        a(f's_and_b32 s{sW1+1}, s{sW1+1}, 0xffff'); a(f's_mov_b32 s{sW1+2}, {512*3584}'); a(f's_mov_b32 s{sW1+3}, 0x20000')
        a(f's_and_b32 s7, s7, 0xffff')
        a(f's_cmp_lt_u32 s{s_ty}, 2')
        for d in (sW0, sW2):
            a(f's_cselect_b32 s{d}, s6, s{sW1}'); a(f's_cselect_b32 s{d+1}, s7, s{sW1+1}'); a(f's_cselect_b32 s{d+2}, {512*3072}, s{sW1+2}'); a(f's_mov_b32 s{d+3}, 0x20000')
        a(f's_mov_b32 s{s_t3}, 3584'); a(f's_cselect_b32 s{s_t3}, 3072, s{s_t3}')
        a(f's_and_b32 s{s_t0}, s{s_r}, 1'); a(f's_lshl_b32 s{s_t0}, s{s_t0}, 2')
        a(f'v_and_b32 v{T0}, 1, v{g}'); a(f'v_lshlrev_b32 v{T0}, 1, v{T0}'); a(f'v_or_b32 v{T0}, s{s_t0}, v{T0}')
        a(f'v_and_b32 v{T1}, 7, v{lane}'); a(f'v_xor_b32 v{T0}, v{T0}, v{T1}'); a(f'v_lshlrev_b32 v{T0}, 4, v{T0}')
        a(f'v_lshrrev_b32 v{T2}, 3, v{lane}')
        a(f'v_mad_u32_u24 v{v_wv0}, v{T2}, s{s_t3}, v{T0}')
        a(f'v_mul_u32_u24 v{v_wv1}, 3584, v{T2}'); a(f'v_add_u32 v{v_wv1}, v{v_wv1}, v{T0}')
        a(f's_mul_i32 s{s_wo0}, s{s_r}, s{s_t3}'); a(f's_lshl_b32 s{s_wo0}, s{s_wo0}, 3')
        a(f's_lshl_b32 s{s_t0}, s{s_kp}, 1'); a(f's_add_u32 s{s_t0}, s{s_t0}, s{s_ty}'); a(f's_lshl_b32 s{s_t0}, s{s_t0}, 7')
        a(f's_lshl_b32 s{s_t1}, s{s_c}, 10'); a(f's_add_u32 s{s_t1}, s{s_t1}, s{s_t0}'); a(f's_add_u32 s{s_t1}, s{s_t1}, 1024')
        a(f's_mul_i32 s{s_t2}, s{s_kp}, 896')
        a(f's_mul_i32 s{s_cnt}, s{s_ty}, 384'); a(f's_add_u32 s{s_cnt}, s{s_cnt}, s{s_t2}'); a(f's_sub_u32 s{s_cnt}, s{s_cnt}, 512')
        a(f's_cmp_lt_u32 s{s_ty}, 2'); a(f's_cselect_b32 s{s_t1}, s{s_t1}, s{s_cnt}')
        a(f's_add_u32 s{s_wo0}, s{s_wo0}, s{s_t1}')
        a(f's_lshl_b32 s{s_wm}, s{s_c}, 12'); a(f's_lshl_b32 s{s_t1}, s{s_r}, 10'); a(f's_add_u32 s{s_wm}, s{s_wm}, s{s_t1}')
        a(f's_lshl_b32 s{s_p32}, s{s_t3}, 5')
        a(f's_or_b32 s{s_t1}, s{s_kp}, s{s_ty}'); a(f's_cmp_lg_u32 s{s_t1}, 0'); a('s_cbranch_scc1 L_nolead')
        for i in range(4): a(f'v_mov_b32 v{WF+i}, 0')
        a(f's_lshl_b32 s{s_t1}, s{s_rb}, 13'); a(f's_lshl_b32 s{s_hl}, s{s_w}, 10'); a(f's_add_u32 s{s_t1}, s{s_t1}, s{s_hl}'); a(f's_add_u32 s{s_t1}, s{s_t1}, {FLAGS}')
        a(f'buffer_store_dwordx4 {vr(WF,4)}, v{v_l16}, {srd(sWS)}, s{s_t1} offen sc1', track=False)
        a('s_nop 1')
        a.label('L_nolead')
        self.wstep = [f's{s_p32}', 0, 0]
        ringpre = [self.wdma(a, slab) for slab in range(4)]
        a(f's_mul_i32 s{s_wo1}, s{s_r}, {8*3584}')
        a(f's_lshl_b32 s{s_t1}, s{s_ty}, 7'); a(f's_add_u32 s{s_t1}, s{s_t1}, s{s_t2}')
        a(f's_add_u32 s{s_cnt}, s{s_cnt}, 128')
        a(f's_cmp_lt_u32 s{s_ty}, 2'); a(f's_cselect_b32 s{s_t1}, s{s_t1}, s{s_cnt}'); a(f's_add_u32 s{s_wo1}, s{s_wo1}, s{s_t1}')
        a(f's_lshl_b32 s{s_t1}, s{s_c}, 2'); a(f's_add_u32 s{s_t1}, s{s_t1}, s{s_r}'); a(f's_mul_i32 s{s_t1}, s{s_t1}, {8*3072}'); a(f's_add_u32 s{s_t1}, s{s_t1}, s{s_t0}')
        a(f's_mul_i32 s{s_cnt}, s{s_r}, {16*3584}'); a(f's_add_u32 s{s_cnt}, s{s_cnt}, s{s_t2}'); a(f's_lshl_b32 s{s_t3}, s{s_ty}, 6'); a(f's_add_u32 s{s_cnt}, s{s_cnt}, s{s_t3}'); a(f's_add_u32 s{s_cnt}, s{s_cnt}, {512-128}')
        a(f's_cmp_lt_u32 s{s_ty}, 2'); a(f's_cselect_b32 s{s_wo2}, s{s_t1}, s{s_cnt}')
        mk(sB2, 16, 1792*1024); mk(sBo, 8, 512*1024); mk(sDBG, 20, 256); mk(sOUT, 18, 2048*1024)
        a(f's_and_b32 s{s_rot}, s{s_rb}, {7 if self.opt.get("rot", 1) else 0}'); a(f's_lshl_b32 s{s_rot}, s{s_rot}, 1')
        a(f'v_lshrrev_b32 v{T0}, 5, v{lane}'); a(f'v_lshlrev_b32 v{T0}, 1, v{T0}'); a(f'v_and_b32 v{T1}, 3, v{lane}'); a(f'v_xor_b32 v{T0}, v{T0}, v{T1}'); a(f'v_lshlrev_b32 v{T0}, 4, v{T0}')
        a(f'v_lshrrev_b32 v{T2}, 2, v{lane}'); a(f'v_mul_u32_u24 v{v_wv2}, 3584, v{T2}'); a(f'v_add_u32 v{v_wv2}, v{v_wv2}, v{T0}')
        r4 = v_T+5; fz = v_T+6
        a(f'v_and_b32 v{r4}, 3, v{T2}')
        a(f'v_lshrrev_b32 v{fz}, 1, v{r4}'); a(f'v_and_b32 v{T0}, 1, v{g}'); a(f'v_lshl_or_b32 v{fz}, v{T0}, 1, v{fz}')
        a(f'v_lshl_add_u32 v{T2}, v{g}, 3, v{r4}')
        a(f's_lshl_b32 s{s_t0}, s{s_c}, 1')
        a(f'v_xor_b32 v{v_tr0}, s{s_t0}, v{fz}'); a(f'v_lshlrev_b32 v{v_tr0}, 5, v{v_tr0}'); a(f'v_lshl_add_u32 v{v_tr0}, v{T2}, 7, v{v_tr0}'); a(f'v_lshl_add_u32 v{v_tr0}, v{T1}, 3, v{v_tr0}')
        a(f'v_xor_b32 v{v_tr1}, 32, v{v_tr0}')
        a(f'v_xor_b32 v{v_trh}, s{s_c}, v{T0}'); a(f'v_lshlrev_b32 v{v_trh}, 5, v{v_trh}'); a(f'v_lshl_add_u32 v{v_trh}, v{T2}, 6, v{v_trh}'); a(f'v_lshl_add_u32 v{v_trh}, v{T1}, 3, v{v_trh}')
        a(f's_lshl_b32 s{s_t0}, s{s_r}, 11'); a(f's_add_u32 s{s_t0}, s{s_t0}, 32768')
        a(f'v_xor_b32 v{v_xe}, v{c16}, v{g}'); a(f'v_lshlrev_b32 v{v_xe}, 4, v{v_xe}'); a(f'v_lshl_add_u32 v{v_xe}, v{g}, 8, v{v_xe}'); a(f'v_add_u32 v{v_xe}, s{s_t0}, v{v_xe}')
        a(f'v_xor_b32 v{v_xo}, 64, v{v_xe}')
        a(f'v_and_b32 v{T0}, 7, v{lane}'); a(f'v_lshlrev_b32 v{T2}, 1, v{g}'); a(f'v_xor_b32 v{T0}, v{T0}, v{T2}'); a(f'v_lshlrev_b32 v{T0}, 4, v{T0}')
        a(f'v_lshrrev_b32 v{T2}, 3, v{lane}'); a(f'v_lshl_add_u32 v{v_bv}, v{T2}, 10, v{T0}'); a(f's_lshl_b32 s{s_t0}, s{s_ct}, 7'); a(f'v_add_u32 v{v_bv}, s{s_t0}, v{v_bv}')
        a(f's_lshl_b32 s{s_bm}, s{s_w}, 11')
        a(f's_mul_i32 s{s_t0}, s{s_r}, {448*1024}')
        a(f's_lshl_b32 s{s_t1}, s{s_c}, 14'); a(f's_add_u32 s{s_b2}, s{s_t0}, s{s_t1}')
        a(f's_lshl_b32 s{s_t2}, s{s_c}, 13'); a(f's_add_u32 s{s_b2h}, s{s_t0}, s{s_t2}')
        a(f's_lshl_b32 s{s_bo}, s{s_r}, 17'); a(f's_add_u32 s{s_bo}, s{s_bo}, s{s_t1}')
        a(f'v_mov_b32 v{T0}, {OOB}')
        a(f'v_cmp_eq_u32 vcc, 0, v{lane}'); a(f'v_cndmask_b32 v{v_fl}, v{T0}, v{lane}, vcc')
        a(f'v_lshlrev_b32 v{T2}, 2, v{lane}'); a(f'v_cmp_gt_u32 vcc, 16, v{lane}'); a(f'v_cndmask_b32 v{v_pl}, v{T0}, v{T2}, vcc')
        a(f'v_mov_b32 v{v_one}, 1')
        a(f's_lshl_b32 s{s_t0}, s{s_rb}, 2'); a(f's_add_u32 s{s_t0}, s{s_t0}, s{s_r}')
        a(f's_mul_i32 s{s_hst}, s{s_t0}, {2*73728}'); a(f's_mul_i32 s{s_t1}, s{s_kp}, {18*1024}'); a(f's_add_u32 s{s_hst}, s{s_hst}, s{s_t1}')
        a(f's_lshl_b32 s{s_t1}, s{s_ty}, 1'); a(f's_add_u32 s{s_t1}, s{s_t1}, s{s_c}')
        a(f's_lshl_b32 s{s_fl}, s{s_t0}, 2'); a(f's_add_u32 s{s_fl}, s{s_fl}, s{s_kp}'); a(f's_lshl_b32 s{s_fl}, s{s_fl}, 9'); a(f's_lshl_b32 s{s_t2}, s{s_t1}, 2')
        a(f's_add_u32 s{s_fl}, s{s_fl}, s{s_t2}'); a(f's_add_u32 s{s_fl}, s{s_fl}, {FLAGS}')
        a(f's_sub_u32 s{s_hl}, s{s_fl}, {2048-384}')
        a(f's_lshl_b32 s{s_t2}, s{s_kp}, 2'); a(f's_add_u32 s{s_t2}, s{s_t2}, s{s_t1}'); a(f's_lshl_b32 s{s_ha}, s{s_t0}, 4'); a(f's_add_u32 s{s_ha}, s{s_ha}, s{s_t2}')
        a(f's_lshl_b32 s{s_ha}, s{s_ha}, 11'); a(f's_add_u32 s{s_ha}, s{s_ha}, {HALO}')
        a(f's_cmp_eq_u32 s{s_t0}, 0'); a(f's_cselect_b32 s{s_hms}, 0, 1')
        a(f's_lshl_b32 s{s_t0}, s{s_rb64}, 1'); a(f's_add_u32 s{s_t0}, s{s_t0}, s{s_c}')
        a(f's_mul_i32 s{s_al}, s{s_t0}, {2*73728}'); a(f's_mul_i32 s{s_t1}, s{s_r}, {18*1024}'); a(f's_add_u32 s{s_al}, s{s_al}, s{s_t1}')
        a(f's_lshl_b32 s{s_pl}, s{s_t0}, 2'); a(f's_add_u32 s{s_pl}, s{s_pl}, s{s_r}'); a(f's_lshl_b32 s{s_pl}, s{s_pl}, 9'); a(f's_add_u32 s{s_pl}, s{s_pl}, {FLAGS}')
        a(f's_mov_b32 s{s_nl2e}, {hex(f2u(-LOG2E))}')
        M0r, M1r, ONE, WB = v_KP, v_KP+1, v_KP+2, v_KP+4
        for k, m in enumerate((0x2222222222222222, 0x4444444444444444, 0x8888888888888888, 0x1111111111111111)):
            a(f's_mov_b32 s{12+2*k}, {hex(m & 0xffffffff)}'); a(f's_mov_b32 s{12+2*k+1}, {hex(m >> 32)}')
        sm = lambda k: f's[{12+2*k}:{12+2*k+1}]'
        a(f'v_mov_b32 v{T0}, 0xffff'); a(f'v_mov_b32 v{T1}, 0xffff0000')
        a(f'v_cndmask_b32 v{M0r}, 0, v{T0}, {sm(3)}'); a(f'v_cndmask_b32 v{M0r}, v{M0r}, v{T1}, {sm(0)}')
        a(f'v_cndmask_b32 v{M1r}, 0, v{T0}, {sm(1)}'); a(f'v_cndmask_b32 v{M1r}, v{M1r}, v{T1}, {sm(2)}')
        a(f'v_mov_b32 v{ONE}, 0x3f803f80'); a(f'v_mov_b32 v{ONE+1}, 0x3f803f80')
        a(f'v_lshrrev_b32 v{T0}, 2, v{c16}'); a(f'v_lshlrev_b32 v{T0}, 13, v{T0}'); a(f'v_and_b32 v{T1}, 3, v{c16}'); a(f'v_lshl_add_u32 v{T0}, v{T1}, 8, v{T0}')
        a(f's_lshl_b32 s{s_t0}, s{s_w}, 10'); a(f's_add_u32 s{s_t0}, s{s_t0}, 32768'); a(f'v_add_u32 v{WB}, s{s_t0}, v{T0}')
        a(f'v_and_b32 v{T0}, 7, v{c16}'); a(f'v_xor_b32 v{T0}, v{T0}, v{g}'); a(f'v_lshlrev_b32 v{WB+3}, 4, v{T0}')
        self.dstamp(a, 0)
        for grp in xload(1):
            for x in grp: a(x)
        S, Q = v_T, v_T+4
        warm = []
        if self.opt.get('bwarm', 1):
            a(f'v_lshlrev_b32 v{v_P}, 7, v{lane}'); a(f'v_mov_b32 v{T0}, {OOB}'); a(f'v_cmp_gt_u32 vcc, 7, v{lane}'); a(f'v_cndmask_b32 v{v_P}, v{T0}, v{v_P}, vcc')
            a(f's_lshl_b32 s22, s2, 3'); a(f's_add_u32 s22, s22, s{s_w}'); a(f's_lshl_b32 s23, s22, 8'); a(f's_mul_i32 s22, s22, 896')
            warm = [[f'buffer_load_dword v{v_P2}, v{v_P}, {srd(sB2)}, s22 offen'],
                    [f'v_lshrrev_b32 v0, 1, v{lane}', f'v_lshl_add_u32 v{v_P}, v0, 20, v{v_P}', f'buffer_load_dword v{v_P}, v{v_P}, {srd(sBo)}, s23 offen']]
        spr = [xload(2), xload(3), ringpre, warm]
        for q in range(4):
            X = 16*q
            sp = list(spr[q])
            def sprinkle():
                if sp:
                    for x in sp.pop(0): self.do(a, x)
            for u in range(8):
                xp = vr(X+2*u, 2)
                a(f'v_mfma_f32_4x4x4_16b_bf16 {vr(S,4)}, {vr(ONE,2)}, {xp}, {vr(S,4) if u else 0}')
                a(f'v_mfma_f32_4x4x4_16b_bf16 {vr(Q,4)}, {xp}, {xp}, {vr(Q,4) if u else 0}')
            a(f's_add_u32 s{s_t0}, s{s_ty}, {q}'); a(f's_and_b32 s{s_t0}, s{s_t0}, 3'); a(f's_lshl_b32 s{s_t0}, s{s_t0}, 6')
            a(f'v_xor_b32 v{WB+1}, s{s_t0}, v{WB+3}'); a(f'v_add_u32 v{WB+1}, v{WB+1}, v{WB}'); a(f'v_add_u32 v{WB+2}, 0x10000, v{WB+1}')
            sprinkle()
            for k in range(3): a(f'v_cndmask_b32 v{Q}, v{Q}, v{Q+1+k}, {sm(k)}')
            for ro in (8, 4, 2, 1):
                a(f'v_add_f32_dpp v{S}, v{S}, v{S} row_ror:{ro} row_mask:0xf bank_mask:0xf')
                a(f'v_add_f32_dpp v{Q}, v{Q}, v{Q} row_ror:{ro} row_mask:0xf bank_mask:0xf')
            a(f'v_mul_f32 v{S}, {hex(f2u(1/512))}, v{S}')
            a(f'v_mul_f32 v{S+1}, v{S}, v{S}')
            a(f'v_mov_b32 v{S+2}, {hex(f2u(1/512))}')
            a(f'v_fma_f32 v{Q}, v{Q}, v{S+2}, -v{S+1}')
            a(f'v_max_f32 v{Q}, 0, v{Q}'); a(f'v_add_f32 v{Q}, {hex(f2u(1e-5))}, v{Q}')
            a(f'v_rsq_f32 v{Q}, v{Q}')
            a(f'v_cvt_pk_bf16_f32 v{Q+1}, v{Q}, v{Q}')
            a(f'v_mul_f32_e64 v{S}, -v{S}, v{Q}')
            a(f'v_and_b32 v{Q+2}, 0xffff0000, v{Q+1}'); a(f'v_sub_f32 v{Q+2}, v{Q}, v{Q+2}')
            a(f'v_cvt_pk_bf16_f32 v{Q+3}, v{Q+2}, v{Q+2}')
            a(f'v_and_b32 v{Q}, v{M0r}, v{Q+1}'); a(f'v_and_b32 v{Q+1}, v{M1r}, v{Q+1}')
            a(f'v_and_b32 v{Q+2}, v{M0r}, v{Q+3}'); a(f'v_and_b32 v{Q+3}, v{M1r}, v{Q+3}')
            for k in (1, 2, 3): a(f'v_mov_b32 v{S+k}, v{S}')
            D = lambda u: WF + 4*u
            hi = lambda u: f'v_mfma_f32_4x4x4_16b_bf16 {vr(D(u),4)}, {vr(Q,2)}, {vr(X+2*u,2)}, {vr(S,4)}'
            lo = lambda u: f'v_mfma_f32_4x4x4_16b_bf16 {vr(D(u),4)}, {vr(Q+2,2)}, {vr(X+2*u,2)}, {vr(D(u),4)}'
            cv = lambda u: [f'v_cvt_pk_bf16_f32 v{X+2*u}, v{D(u)}, v{D(u)+1}', f'v_cvt_pk_bf16_f32 v{X+2*u+1}, v{D(u)+2}, v{D(u)+3}']
            wr = lambda i: f'ds_write_b128 v{WB+1+(i>>1)}, {vr(X+4*i,4)} offset:{(i&1)*32768}'
            sprinkle()
            for u in range(4): a(hi(u))
            for u in range(4): a(lo(u))
            for u in range(4, 8): a(hi(u))
            sprinkle()
            for u in range(4):
                a(lo(u+4))
                for x in cv(u): a(x)
                if u & 1: a(wr(u >> 1))
            sprinkle()
            for u in range(4, 8):
                for x in cv(u): a(x)
                if u & 1: a(wr(u >> 1))
        a.wait(vm_tok=[self.tok[('W', 0)]], lg0=True)
        a.barrier()
        self.dstamp(a, 1)
        a(f's_or_b32 s{s_t1}, s{s_kp}, s{s_ty}'); a(f's_or_b32 s{s_t1}, s{s_t1}, s{s_w}'); a(f's_cmp_lg_u32 s{s_t1}, 0'); a('s_cbranch_scc1 L_nolead2')
        a(f's_lshl_b32 s{s_t1}, s{s_rb}, 2')
        a(f'buffer_store_dword v{v_one}, v{v_fl}, {srd(sDBG)}, s{s_t1} offen sc1', track=False)
        a.label('L_nolead2')
    def wreads(self, s, typ):
        buf = WF + (s & 1)*16; base = (s % RING)*8192; L = []
        for f in range(4):
            p, tf = f >> 1, f & 1
            for rd in range(2):
                if s >= 32 and typ == 'B': addr, off = v_trh, base + p*4096 + tf*2048 + rd*256
                else: addr, off = (v_tr1 if tf else v_tr0), base + p*4096 + rd*512
                L.append(('rd', f'ds_read_b64_tr_b16 {vr(buf+4*f+2*rd,2)}, v{addr} offset:{off}', ('W', s)))
        return L
    def xreads(self, s):
        L = []
        if s == 8: L += [f'v_add_u32 v{v_xe}, 0x10000, v{v_xe}']
        if s == 9: L += [f'v_add_u32 v{v_xo}, 0x10000, v{v_xo}']
        for t in range(2):
            L.append(('rd', f'ds_read_b128 {ar((2*s+t)*4,4)}, v{v_xo if s & 1 else v_xe} offset:{(s & 7)*8192 + t*1024}', ('X', s)))
        return L
    def mfmas(self, s, typ):
        buf = WF + (s & 1)*16; L = []
        for f in range(4):
            p, tf = f >> 1, f & 1
            for t in range(2):
                w = vr(buf+4*f, 4)
                if s < 32:
                    ks = s & 15; first = ks == 0
                    if s < 16 and typ == 'A': acc = ACC0 + (16 if p == 0 else 0) + (tf*2+t)*4
                    else: acc = (ACC0 if s < 16 else ACC1) + (f*2+t)*4
                    swap = (s < 16 and typ == 'A' and p == 1)
                else:
                    u, cidx = (p, tf) if typ == 'A' else (tf, p)
                    ks = 2*(s-32) + u; first = ks == 0; acc = ACC0 + (cidx*2+t)*4; swap = False
                x = ar((2*ks+t)*4, 4)
                A, B = (x, w) if swap else (w, x)
                L.append(f'v_mfma_f32_16x16x32_bf16 {vr(acc,4)}, {A}, {B}, {0 if first else vr(acc,4)}')
        return L
    def silu_batch(self, G, U, O, T):
        L = [f'v_mul_f32 v{T+r}, s{s_nl2e}, v{G+r}' for r in range(4)]
        for r in range(4): L += [f'v_exp_f32 v{T+r}, v{T+r}', f'v_mul_f32 v{U+r}, v{G+r}, v{U+r}']
        L += [f'v_add_f32 v{T+r}, 1.0, v{T+r}' for r in range(4)]
        L += [f'v_rcp_f32 v{T+r}, v{T+r}' for r in range(4)]
        L += [f'v_mul_f32 v{U+r}, v{U+r}, v{T+r}' for r in range(4)]
        L += [f'v_cvt_pk_bf16_f32 v{O}, v{U}, v{U+1}', f'v_cvt_pk_bf16_f32 v{O+1}, v{U+2}, v{U+3}']
        return L
    def hstore(self, regs, t, istep, key):
        return [f's_add_u32 s{s_t3}, s{s_xo}, {t*73728 + istep*1024}',
                ('dma', f'buffer_store_dwordx4 {vr(regs,4)}, v{v_l16}, {srd(sWS)}, s{s_t3} offen sc1', key)]
    def ffn_epi(self, acc, istep, key):
        L = []
        for t in range(2):
            O = acc + t*4
            for tf in range(2):
                L += self.silu_batch(acc + (tf*2+t)*4, acc + ((2+tf)*2+t)*4, O + 2*tf, v_T + 4*tf)
            L += self.hstore(O, t, istep, (key, t))
        return L
    def kv_epi(self):
        L = []
        K = lambda hh, t: ACC0 + 16 + (hh*2+t)*4
        V = lambda hh, t: ACC0 + (hh*2+t)*4
        pk = lambda d, s: [f'v_cvt_pk_bf16_f32 v{d}, v{s}, v{s+1}', f'v_cvt_pk_bf16_f32 v{d+1}, v{s+2}, v{s+3}']
        L += pk(v_KP, K(0,1)) + pk(v_KP+2, K(1,1))
        L += [('dma', f'buffer_store_dwordx4 {vr(v_KP,4)}, v{v_l16}, {srd(sWS)}, s{s_ha} offen sc1', ('halo', 0))]
        L += pk(v_T, V(0,1)) + pk(v_T+2, V(1,1))
        L += [('dma', f'buffer_store_dwordx4 {vr(v_T,4)}, v{v_l16}, {srd(sWS)}, s{s_ha} offen offset:1024 sc1', ('halo', 1))]
        L += pk(v_KP+4, K(0,0)) + pk(v_KP+6, K(1,0))
        L += pk(16, V(0,1)) + pk(18, V(0,0)) + pk(24, V(1,0)) + pk(26, V(1,1))
        return L
    def step(self, a, mf, reads, misc, valu, quota, endwait, barrier=True, lazy=False, xr=()):
        reads = list(reads); misc = list(misc); xr = list(xr)
        used = 0
        rp = [int(c) for c in str(self.opt.get('rp', 12111110))]
        vp = [int(c) for c in str(self.opt.get('vp', 1111111))]
        order = [0, 2, 4, 1, 3, 5, 6]
        slot = {g: [] for g in range(8)}
        for n, grp in enumerate(misc): slot[sorted(order[:len(misc)])[n] if len(misc) <= 7 else min(n, 6)].append(grp)
        toks = []
        for k, m in enumerate(mf):
            a(m)
            for _ in range(rp[k]):
                if reads: self.do(a, reads.pop(0)); toks.append(a.nid)
            if k in (4, 5):
                while xr:
                    it = xr.pop(0); self.do(a, it)
                    if not isinstance(it, str): break
            for grp in slot[k]:
                for it in grp: self.do(a, it)
            if k < 7:
                lim = quota*sum(vp[:k+1])/sum(vp)
                while valu and used + self.weight(valu[0]) <= lim + 0.01:
                    it = valu.pop(0); used += self.weight(it); self.do(a, it)
            if lazy and k == 3: a.wait(lg_tok=self.prev_toks)
            if lazy and k == 6: a.wait(vm_tok=[self.tok[k_] for k_ in endwait if k_ in self.tok], lg_tok=toks[:4])
        assert not reads and not xr
        self.prev_toks = toks
        if not lazy: a.wait(vm_tok=[self.tok[k] for k in endwait if k in self.tok], lg0=True)
        if barrier:
            a.barrier()
            if self.opt.get('xbar'): a.out.pop()
    def p1(self, a, typ):
        self.wstep = [32*(3072 if typ == 'A' else 3584), 32*3584, 32*(3072 if typ == 'A' else 3584)]
        if typ == 'A': a(f'v_mov_b32 v{v_wv2}, v{v_wv0}')
        a(f's_and_b32 s{s_t0}, s{s_ty}, 1'); a(f's_lshl_b32 s{s_t0}, s{s_t0}, 1'); a(f's_add_u32 s{s_t0}, s{s_t0}, s{s_c}'); a(f's_lshl_b32 s{s_t0}, s{s_t0}, 10')
        a(f's_add_u32 s{s_xo}, s{s_hst}, s{s_t0}')
        for x in self.wreads(0, typ) + self.xreads(0) + self.xreads(1): self.do(a, x)
        a.wait(vm_tok=[self.tok[('W', 1)]], lg0=True); a.barrier()
        valu = []
        nb = 0; self.prev_toks = []
        for p in range(4):
            valu += [f's_add_u32 s22, s{s_rb64}, {p}', f's_and_b32 s22, s22, {3 if self.opt.get("brot", 1) else 0}'] + ([] if self.opt.get("brot", 1) else [f's_mov_b32 s22, {p}'])
            valu += [f's_lshr_b32 s23, s22, 1', f's_and_b32 s22, s22, 1',
                     f's_lshl_b32 s{s_bg+p}, s23, 15', f's_lshl_b32 s{s_bl+p}, s23, 14', f's_lshl_b32 s23, s22, 13', f's_lshl_b32 s22, s22, 10',
                     f's_add_u32 s{s_bg+p}, s{s_bg+p}, s23', f's_add_u32 s{s_bl+p}, s{s_bl+p}, s22',
                     f's_add_u32 s{s_bg+p}, s{s_bg+p}, s{s_b2}', f's_add_u32 s{s_bl+p}, s{s_bl+p}, s{s_bm}']
        lazy = self.opt.get('lazy', 1)
        D = RING - lazy
        for s in range(40):
            misc = []; reads = []
            if s < 39: reads += self.wreads(s+1, typ)
            xr = self.xreads(s+2) if s + 2 < 16 else []
            if s == 0: misc += [self.wdma(a, k) for k in range(4, D)]
            if s + D < 40: misc.append(self.wdma(a, s + D))
            if s >= 5 and s % 2 == 1 and nb < 14: misc.append(self.bdma_rot(nb)); nb += 1
            if s == 11: misc.append([lambda a: self.poll_issue(a, v_P, v_pl, sDBG, 0)])
            if s == 15: misc.append([lambda a: self.poll_check(a, v_P, v_pl, sDBG, 0, 0xffff)])
            quota = 16
            if s == 16:
                valu += self.kv_epi() if typ == 'A' else self.ffn_epi(ACC0, 0, 'h0')
            if 16 <= s < 32: quota = self.opt.get('q1', 14)
            if typ == 'A' and s == 21: misc.append([lambda a: a.wait(vm_tok=self.tok[('halo', 1)]), lambda a: self.flag(a, 3)])
            if typ == 'B' and s == 29: misc.append([lambda a: a.wait(vm_tok=self.tok[('h0', 1)]), lambda a: self.flag(a, 0)])
            if s == 32:
                assert not valu
                valu += self.ffn_epi(ACC1, 8 if typ == 'A' else 4, 'h1')
                self.dstamp(a, 3)
            if s == 16: self.dstamp(a, 2)
            if s >= 32: quota = 17
            if typ == 'A' and s == 28: misc.append([lambda a: self.poll_issue(a, v_P2, v_pl, sWS, f's{s_hl}')])
            if typ == 'A' and s == 31:
                misc.append([lambda a: self.poll_check(a, v_P2, v_pl, sWS, f's{s_hl}', f's{s_hms}'),
                             f's_cmp_eq_u32 s{s_hms}, 0', f's_cselect_b32 s{s_t1}, {OOB}, s{s_ha}', f's_sub_u32 s{s_t1}, s{s_t1}, 32768',
                             f'buffer_load_dwordx4 {vr(28,4)}, v{v_l16}, {srd(sWS)}, s{s_t1} offen sc1',
                             f'buffer_load_dwordx4 {vr(20,4)}, v{v_l16}, {srd(sWS)}, s{s_t1} offen offset:1024 sc1'])
            p0 = self.opt.get('p0', 33)
            if s == p0: misc.append([lambda a: self.poll_issue(a, v_P, v_pl, sWS, f's{s_pl}')])
            if s == p0 + 3: misc.append([lambda a: self.poll_check(a, v_P, v_pl, sWS, f's{s_pl}', 0xf0)])
            if p0 + 3 <= s < p0 + 7: misc += [self.aload(2*(s-p0-3)), self.aload(2*(s-p0-3)+1)]
            if s - lazy in (35, 36): misc.append(self.bdma(7, s-lazy-35))
            if s - lazy in (37, 38): misc.append(self.bdma(8, s-lazy-37))
            if s - lazy == 39: misc += [self.bdma(9, 0), self.bdma(9, 1)]
            self.step(a, self.mfmas(s, typ), reads, misc, valu, quota, [('W', s+2)], barrier=(s < 39 or lazy), lazy=lazy, xr=xr)
        for it in valu: self.do(a, it)
        if lazy:
            for n in range(2):
                for it in self.bdma(9, n): self.do(a, it)
        self.dstamp(a, 4)
    def half_epi(self, a):
        X = WF
        for t in range(2):
            for x in self.silu_batch(ACC0 + t*4, ACC0 + (2+t)*4, X + 2*t, v_T + 4*t): a(x)
            if t == 0:
                a.wait(vm_tok=self.tok[('h1', 1)]); self.flag(a, 1)
        a(f'v_permlane32_swap_b32 v{X}, v{X+2}'); a(f'v_permlane32_swap_b32 v{X+1}, v{X+3}')
        a(f'v_lshrrev_b32 v{v_T}, 5, v{v_hv}'); a(f'v_mul_u32_u24 v{v_T}, {73728-512}, v{v_T}'); a(f'v_add_u32 v{v_T}, v{v_T}, v{v_l16}')
        a(f's_and_b32 s{s_t0}, s{s_ty}, 1'); a(f's_lshl_b32 s{s_t0}, s{s_t0}, 1'); a(f's_add_u32 s{s_t0}, s{s_t0}, s{s_c}'); a(f's_lshl_b32 s{s_t0}, s{s_t0}, 9')
        a(f's_add_u32 s{s_t0}, s{s_t0}, s{s_hst}'); a(f's_add_u32 s{s_t0}, s{s_t0}, {12*1024}')
        self.tok['fin'] = a(f'buffer_store_dwordx4 {vr(X,4)}, v{v_T}, {srd(sWS)}, s{s_t0} offen sc1')
    def attention(self, a):
        cur = [0]*4; prv = [0]*4
        for l in range(64):
            t, g = l & 15, l >> 4
            for r in range(4):
                i = 4*g + r
                if (i ^ t) & 1: continue
                if i <= t: cur[r] |= 1 << l
                else: prv[r] |= 1 << l
        sm = lambda k: f's[{s_m+2*k}:{s_m+2*k+1}]'
        def setm(k, m): a(f's_mov_b32 s{s_m+2*k}, {hex(m & 0xffffffff)}'); a(f's_mov_b32 s{s_m+2*k+1}, {hex(m >> 32)}')
        for r in range(4): setm(r, cur[r]); setm(4+r, prv[r])
        setm(8, cur[0] | cur[1]); setm(9, cur[2] | cur[3])
        Mc, Mp, Mp0, Ac, Ap, ONES, NEG, HM = WF, WF+4, WF+8, WF+12, WF+14, WF+16, WF+20, WF+21
        a(f'v_mov_b32 v{NEG}, {hex(f2u(-1e30))}')
        for r in range(4): a(f'v_cndmask_b32 v{Mc+r}, v{NEG}, 0, {sm(r)}')
        for r in range(4): a(f'v_cndmask_b32 v{Mp+r}, v{NEG}, 0, {sm(4+r)}')
        a(f's_cmp_eq_u32 s{s_hms}, 0'); a(f's_cselect_b64 {sm(0)}, 0, -1')
        for r in range(4): a(f'v_cndmask_b32 v{Mp0+r}, v{NEG}, v{Mp+r}, {sm(0)}')
        Qa = lambda hh, t: ACC0 + (hh*2+t)*4
        units = [(0,0),(1,0),(0,1),(1,1)]
        for hh, t in units:
            q = Qa(hh, t); a(f'v_cvt_pk_bf16_f32 v{q}, v{q}, v{q+1}'); a(f'v_cvt_pk_bf16_f32 v{q+1}, v{q+2}, v{q+3}')
        Kc = lambda hh, t: v_KP + (4 if t == 0 else 0) + 2*hh
        Kp = lambda hh, t: 28 + 2*hh if t == 0 else Kc(hh, 0)
        Sg = lambda u: ACC1 + 8*u
        for u, (hh, t) in enumerate(units):
            a(f'v_mfma_f32_16x16x16_bf16 {vr(Sg(u)+4,4)}, {vr(Kc(hh,t),2)}, {vr(Qa(hh,t),2)}, {vr(Mc,4)}')
        for u, (hh, t) in reversed(list(enumerate(units))):
            a(f'v_mfma_f32_16x16x16_bf16 {vr(Sg(u),4)}, {vr(Kp(hh,t),2)}, {vr(Qa(hh,t),2)}, {vr(Mp0 if t == 0 else Mp,4)}')
        a.wait(vm_tok=self.tok[('h1', 1)]); self.flag(a, 1)
        a(f's_mov_b32 s{s_m+2}, 0xaaaaaaaa'); a(f's_mov_b32 s{s_m+3}, 0xaaaaaaaa')
        a(f'v_mov_b32 v{HM}, 0xffff'); a(f'v_mov_b32 v{NEG}, 0xffff0000'); a(f'v_cndmask_b32 v{HM}, v{HM}, v{NEG}, {sm(1)}')
        for d in range(2): a(f'v_cndmask_b32 v{Ac+d}, 0, v{HM}, {sm(8+d)}')
        for d in range(2): a(f'v_xor_b32 v{Ap+d}, v{HM}, v{Ac+d}')
        for i in range(4): a(f'v_mov_b32 v{ONES+i}, 0x3f803f80')
        m = [v_T+u for u in range(4)]
        for u in (3, 2, 1, 0):
            S = Sg(u)
            a(f'v_max3_f32 v{S}, v{S}, v{S+1}, v{S+4}'); a(f'v_max3_f32 v{S+2}, v{S+2}, v{S+3}, v{S+6}')
            a(f'v_max_f32 v{S}, v{S}, v{S+5}'); a(f'v_max_f32 v{S+2}, v{S+2}, v{S+7}')
            a(f'v_max_f32 v{m[u]}, v{S}, v{S+2}')
        c = 0.25*LOG2E
        a(f's_mov_b32 s{s_t0}, {hex(f2u(c))}')
        a(f'v_permlane32_swap_b32 v{m[2]}, v{m[3]}'); a(f'v_permlane32_swap_b32 v{m[0]}, v{m[1]}')
        a(f'v_max_f32 v{m[2]}, v{m[2]}, v{m[3]}'); a(f'v_max_f32 v{m[0]}, v{m[0]}, v{m[1]}')
        a(f'v_permlane16_swap_b32 v{m[0]}, v{m[2]}')
        a(f'v_max_f32 v{m[0]}, v{m[0]}, v{m[2]}')
        a(f'v_mul_f32 v{m[2]}, s{s_t0}, v{m[0]}'); a(f'v_mul_f32 v{m[0]}, s{s_t0}, v{m[0]}')
        a(f'v_permlane16_swap_b32 v{m[0]}, v{m[2]}')
        a(f'v_mov_b32 v{m[1]}, v{m[0]}'); a(f'v_mov_b32 v{m[3]}, v{m[2]}')
        a(f'v_permlane32_swap_b32 v{m[0]}, v{m[1]}'); a(f'v_permlane32_swap_b32 v{m[2]}, v{m[3]}')
        for u in range(4):
            S = Sg(u)
            a(f'v_fma_f32 v{S}, v{S}, s{s_t0}, -v{m[u]}'); a(f'v_fma_f32 v{S+2}, v{S+2}, s{s_t0}, -v{m[u]}')
        for u in range(4):
            S = Sg(u); a(f'v_exp_f32 v{S}, v{S}'); a(f'v_exp_f32 v{S+2}, v{S+2}')
        Vw = {(0,0): 18, (0,1): 16, (1,0): 22, (1,1): 24}
        for u, (hh, t) in enumerate(units):
            S = Sg(u); P = S + 4
            a(f'v_cvt_pk_bf16_f32 v{S}, v{S}, v{S}'); a(f'v_cvt_pk_bf16_f32 v{S+2}, v{S+2}, v{S+2}')
            first, second = (Ac, Ap) if hh == 0 else (Ap, Ac)
            a(f'v_and_b32 v{P}, v{first}, v{S}'); a(f'v_and_b32 v{P+1}, v{first+1}, v{S+2}')
            a(f'v_and_b32 v{P+2}, v{second}, v{S}'); a(f'v_and_b32 v{P+3}, v{second+1}, v{S+2}')
        for u, (hh, t) in enumerate(units):
            S = Sg(u); P = S + 4
            a(f'v_mfma_f32_16x16x32_bf16 {vr(S,4)}, {vr(ONES,4)}, {vr(P,4)}, 0')
            a(f'v_mfma_f32_16x16x32_bf16 {vr(Qa(hh,t),4)}, {vr(Vw[(hh,t)],4)}, {vr(P,4)}, 0')
        for u in range(4): a(f'v_rcp_f32 v{Sg(u)}, v{Sg(u)}')
        for t in range(2):
            O = WF + 24 + 4*t
            for hh in range(2):
                u = units.index((hh, t)); q = Qa(hh, t)
                for r in range(4): a(f'v_mul_f32 v{q+r}, v{q+r}, v{Sg(u)}')
                a(f'v_cvt_pk_bf16_f32 v{O+2*hh}, v{q}, v{q+1}'); a(f'v_cvt_pk_bf16_f32 v{O+2*hh+1}, v{q+2}, v{q+3}')
            for it in self.hstore(O, t, 14, 'fin'): self.do(a, it)
    def breads(self, i):
        buf = WF + (i & 1)*16; L = []
        TA = v_T
        for ct in range(4): L.append(f'v_add_u32 v{TA+ct}, {bslot(i)}, v{v_KP+ct}')
        for ct in range(4):
            for rd in range(2): L.append(('rd', f'ds_read_b64_tr_b16 {vr(buf+4*ct+2*rd,2)}, v{TA+ct} offset:{rd*2048}', ('B', i)))
        return L
    def p3(self, a):
        lane = v_hv; T0, T1, T2, T3 = v_T+4, v_T+5, v_T+6, v_T+7
        a(f'v_lshrrev_b32 v{T0}, 2, v{lane}'); a(f'v_lshlrev_b32 v{T0}, 7, v{T0}'); a(f'v_and_b32 v{T1}, 3, v{lane}'); a(f'v_lshl_add_u32 v{T0}, v{T1}, 3, v{T0}')
        a(f'v_bfe_u32 v{T1}, v{lane}, 3, 2'); a(f'v_lshl_add_u32 v{T0}, v{T1}, 5, v{T0}'); a(f's_lshl_b32 s{s_t0}, s{s_r}, 12'); a(f'v_add_u32 v{v_KP}, s{s_t0}, v{T0}')
        for ct in (1, 2, 3): a(f'v_xor_b32 v{v_KP+ct}, {ct*32}, v{v_KP}')
        for x in self.breads(0): self.do(a, x)
        a.wait(lg0=True); a.barrier()
        self.dstamp(a, 5)
        XR = ACC0
        c1 = self.opt.get('c1', 1); c2 = self.opt.get('c2', 7); pace = self.opt.get('pace', 4)
        na = 8
        a(f's_add_u32 s{s_pl}, s{s_pl}, 128'); self.poll_issue(a, v_P, v_pl, sWS, f's{s_pl}')
        for i in range(18):
            misc = []; reads = self.breads(i+1) if i < 17 else []
            pre = reads[:4]; reads = reads[4:]
            for x in pre: a(x)
            n = 0
            if i == c1:
                misc.append([lambda a: a.wait(vm_tok=self.tok['fin']), lambda a: self.flag(a, 2),
                             lambda a: self.poll_check(a, v_P, v_pl, sWS, f's{s_pl}', 0xff), lambda a: self.dstamp(a, 6)])
            if i == c2 - 2: misc.append([f's_add_u32 s{s_pl}, s{s_pl}, 128', lambda a: self.poll_issue(a, v_P, v_pl, sWS, f's{s_pl}')])
            if i == c2:
                misc.append([lambda a: self.poll_check(a, v_P, v_pl, sWS, f's{s_pl}', 0xff), lambda a: self.dstamp(a, 7)])
            lim = 8 if i < c1 else (24 if i < c2 else 36)
            nA = min(lim - na, pace if i + 10 < 18 else pace + 2)
            for k in range(0, nA, 2):
                misc.append(self.aload(na) + self.aload(na+1)); na += 2
            if i + 10 < 18: misc.append(self.bdma(i+10, 0) + self.bdma(i+10, 1))
            if i == 12:
                misc.append([f'v_lshrrev_b32 v{T0}, 3, v{lane}', f'v_and_b32 v{T1}, 7, v{lane}', f'v_lshlrev_b32 v{T1}, 4, v{T1}', f'v_lshl_add_u32 v{v_xe}, v{T0}, 10, v{T1}',
                             f's_lshl_b32 s{s_wo0}, s{s_rb64}, 16', f's_lshl_b32 s{s_t0}, s{s_ct}, 7', f's_add_u32 s{s_wo0}, s{s_wo0}, s{s_t0}',
                             f's_lshl_b32 s{s_t0}, s{s_w}, 13', f's_add_u32 s{s_wo0}, s{s_wo0}, s{s_t0}',
                             f'buffer_load_dwordx4 {vr(XR,4)}, v{v_xe}, {srd(sX)}, s{s_wo0} offen'])
            assert na >= 2*i + 2 + 2*nA*0 and ('A', 2*i+1) in self.tok
            buf = WF + (i & 1)*16; mf = []
            for ct in range(4):
                for t in range(2):
                    acc = ACC1 + (ct*2+t)*4; n = 2*i + t
                    mf.append(f'v_mfma_f32_16x16x32_bf16 {vr(acc,4)}, {vr(buf+4*ct,4)}, {ar((n % 32)*4,4)}, {0 if i == 0 else vr(acc,4)}')
            self.step(a, mf, reads, misc, [], 0, [('B', i+2, 0), ('B', i+2, 1)], barrier=(i < 17))
        self.dstamp(a, 8)
        SCR = 49152
        a(f'v_and_b32 v{T0}, 15, v{lane}'); a(f'v_lshrrev_b32 v{T1}, 4, v{lane}'); a(f'v_and_b32 v{T2}, 7, v{lane}'); a(f'v_xor_b32 v{T1}, v{T1}, v{T2}')
        a(f'v_lshlrev_b32 v{T1}, 4, v{T1}'); a(f'v_lshl_add_u32 v{T0}, v{T0}, 8, v{T1}')
        a(f's_lshl_b32 s{s_t0}, s{s_r}, 14'); a(f's_lshl_b32 s{s_t1}, s{s_c}, 13'); a(f's_add_u32 s{s_t0}, s{s_t0}, s{s_t1}'); a(f's_add_u32 s{s_t0}, s{s_t0}, {SCR}')
        a(f'v_add_u32 v{v_KP}, s{s_t0}, v{T0}'); a(f'v_xor_b32 v{v_KP+1}, 64, v{v_KP}')
        for ct in range(4):
            for t in range(2):
                a(f'ds_write_b128 v{v_KP + (ct & 1)}, {vr(ACC1 + (ct*2+t)*4, 4)} offset:{t*4096 + (ct >> 1)*128}')
        a(f'v_lshrrev_b32 v{T0}, 3, v{lane}'); a(f'v_lshlrev_b32 v{T1}, 1, v{T2}'); a(f'v_xor_b32 v{T1}, v{T1}, v{T0}'); a(f'v_lshlrev_b32 v{T1}, 4, v{T1}')
        a(f'v_lshl_add_u32 v{T0}, v{T0}, 8, v{T1}'); a(f's_lshl_b32 s{s_t0}, s{s_w}, 11'); a(f's_add_u32 s{s_t0}, s{s_t0}, {SCR}')
        a(f'v_add_u32 v{v_KP+2}, s{s_t0}, v{T0}'); a(f'v_xor_b32 v{v_KP+3}, 16, v{v_KP+2}')
        R = 8
        for j in range(4):
            a(f'v_lshlrev_b32 v{R+2*j}, 16, v{XR+j}'); a(f'v_and_b32 v{R+2*j+1}, 0xffff0000, v{XR+j}')
        a.wait(lg0=True); a.barrier()
        for k in range(4):
            for hf in range(2): a(f'ds_read_b128 {vr(WF+8*k+4*hf,4)}, v{v_KP+2+hf} offset:{k*16384}')
        for k in range(4):
            for j in range(8): a(f'v_add_f32 v{R+j}, v{R+j}, v{WF+8*k+j}')
        for j in range(4): a(f'v_cvt_pk_bf16_f32 v{XR+j}, v{R+2*j}, v{R+2*j+1}')
        a(f'buffer_store_dwordx4 {vr(XR,4)}, v{v_xe}, {srd(sOUT)}, s{s_wo0} offen')
    def finish(self, a):
        if self.diag:
            a.wait(vm0=True)
            a(f's_memtime s[{s_st}:{s_st+1}]'); a(f's_memrealtime s[{s_m}:{s_m+1}]'); a.wait(lg0=True)
            a(f's_lshl_b32 s{s_t0}, s2, 3'); a(f's_add_u32 s{s_t0}, s{s_t0}, s{s_w}'); a(f's_lshl_b32 s{s_t0}, s{s_t0}, 6'); a(f's_add_u32 s{s_t0}, s{s_t0}, {STAMP}')
            regs = [0] + [s_st+2+i for i in range(8)] + [1, 1] + [s_st, 3, s_m]
            for i, s in enumerate(regs):
                a(f'v_mov_b32 v0, s{s}'); a(f'buffer_store_dword v0, v{v_fl}, {srd(sWS)}, s{s_t0} offen offset:{4*i}')
            if 'enc' in self.opt:
                i = self.opt['enc']; self.nlab += 1; n = self.nlab
                if i < 0: a(f's_mov_b32 s{s_t1}, 0')
                elif i == 9: a(f's_sub_u32 s{s_t1}, s{s_m}, s3')
                else: a(f's_lshr_b32 s{s_t1}, s{s_st+2+i if i < 8 else 1}, 16')
                a(f's_add_u32 s{s_t1}, s{s_t1}, 4000')
                if 'encwg' in self.opt:
                    a(f's_cmp_eq_u32 s2, {self.opt["encwg"]}'); a(f's_cselect_b32 s{s_t1}, s{s_t1}, 0')
                a.label(f'L_enc{n}')
                a(f's_memrealtime s[{s_st}:{s_st+1}]'); a.wait(lg0=True)
                a(f's_sub_u32 s{s_st}, s{s_st}, s3'); a(f's_cmp_lt_u32 s{s_st}, s{s_t1}'); a(f's_cbranch_scc1 L_enc{n}')
        a('s_endpgm')
    def build(self):
        self.tok = {}; self.lds_key = {4+k: ('X', k) for k in range(16)}; self.lds_rd = {4+k: [] for k in range(16)}; self.lds_wr = {4+k: [] for k in range(16)}
        a = Asm()
        self.prologue(a)
        a(f's_cmp_ge_u32 s{s_ty}, 2'); a('s_cbranch_scc1 L_typeB')
        parts = [a]
        import copy
        base = copy.deepcopy((self.tok, self.lds_key, self.lds_rd, self.lds_wr))
        for typ in 'AB':
            b = a.fork(); self.tok, self.lds_key, self.lds_rd, self.lds_wr = copy.deepcopy(base)
            if typ == 'B': b.raw('.p2align 6'); b.label('L_typeB')
            self.p1(b, typ)
            if typ == 'A': self.attention(b)
            else: self.half_epi(b)
            self.p3(b)
            self.finish(b)
            parts.append(b)
        hdr = open('parallel_sum__sliding_local_dilated__glu_gated_swiglu__prompt.s.ref').read().split('\n')
        H = [l for l in hdr if l.startswith(';') and '@launch' not in l]
        H.append('; @launch grid=(256,1,1) block=(512,1,1) lds=163840')
        H += ['.amdgcn_target "amdgcn-amd-amdhsa--gfx950"', '.text', f'.globl {KN}', '.p2align 8', f'.type {KN},@function', f'{KN}:']
        T = ['L_end:', '    s_endpgm'] + self.slow + ['L_codeend:']
        T += ['.section .rodata,"a"', '.p2align 6', f'.amdhsa_kernel {KN}', '  .amdhsa_next_free_vgpr 256', '  .amdhsa_next_free_sgpr 102',
              '  .amdhsa_accum_offset 128', '  .amdhsa_group_segment_fixed_size 0', '  .amdhsa_kernarg_size 80', '  .amdhsa_user_sgpr_count 2',
              '  .amdhsa_user_sgpr_kernarg_segment_ptr 1', '  .amdhsa_system_sgpr_workgroup_id_x 1', '.end_amdhsa_kernel']
        sys.stderr.write('instr: ' + ' '.join(f'{p.ninst}(+{p.nnop} nops)' for p in parts) + '\n')
        return '\n'.join(H) + '\n' + ''.join(p.text() for p in parts) + '\n'.join(T) + '\n'

if __name__ == '__main__':
    out = sys.argv[1]; diag = 'diag' in sys.argv[2:]
    opt = {k: int(v) for k, v in (x.split('=') for x in sys.argv[2:] if '=' in x)}
    g = Gen(diag=diag, opt=opt)
    open(out, 'w').write(g.build())
```

```python
import sys, struct, math
from asmlib import Asm, Ins

KN = 'parallel_sum__sliding_local_dilated__glu_gated_swiglu__prompt_kernel'
def f2u(x): return struct.unpack('<I', struct.pack('<f', x))[0]

HALO = 0xA00000; FLAGS = 0xC00000; WSSZ = 0xD00000; STAMP = 0xD00000
OOB = 0x40000000
LOG2E = 1.4426950408889634

sX, sW0, sW1, sW2, sB2, sBo, sWS, sDBG, sOUT = 24, 28, 32, 36, 40, 44, 48, 52, 56
(s_w, s_r, s_c, s_kp, s_rb, s_ty, s_rb64, s_ct, s_t0, s_t1, s_t2, s_t3,
 s_wo0, s_wo1, s_wo2,
 s_wm,
 s_bm,
 s_b2, s_b2h, s_bo,
 s_hst,
 s_fl,
 s_pl,
 s_hl,
 s_hms,
 s_ha,
 s_al,
 s_cnt, s_nl2e, s_xo) = range(60, 90)
s_rho, s_xb = 4, 5
s_xq, s_p32 = 10, 11
s_rot, s_wt = 20, 21
s_bg, s_bl = 12, 16
s_m = 4
s_st = 90
def srd(b): return f's[{b}:{b+3}]'

ACC0, ACC1, WF = 0, 32, 64
v_l16, v_tr0, v_tr1, v_trh, v_xe, v_xo, v_wv0, v_wv1, v_wv2, v_bv, v_fl, v_pl, v_P, v_one, v_hv = range(96, 111)
v_KP = 112
v_T = 120
v_P2 = 111
def vr(b, n): return f'v[{b}:{b+n-1}]' if n > 1 else f'v{b}'
def ar(b, n): return f'a[{b}:{b+n-1}]'

RING = 6
def bslot(i):
    i %= 10
    return 49152 + 16384*i if i < 7 else {7: 32768, 8: 0, 9: 16384}[i]
BSTEP = [('w2',128,0),('w2',160,0),('w2',320,0),('w2',352,0),('w2',192,0),('w2',224,0),('w2',384,0),('w2',416,0),
         ('w2',0,0),('w2',32,0),('w2',64,0),('w2',96,0),('w2',256,1),('w2',288,1),('wo',0,0),('wo',32,0),('wo',64,0),('wo',96,0)]

class Gen:
    def __init__(self, diag=False, stop=None, opt=None):
        self.diag = diag; self.stop = stop; self.opt = opt or {}
        self.slow = []; self.nlab = 0; self.nstamp = 0
    def dstamp(self, a, i):
        if not self.diag: return
        a(f's_memtime s[{s_st}:{s_st+1}]'); a(f's_memrealtime s[100:101]'); a.wait(lg0=True)
        d = s_st+2+i if i < 8 else 1
        a(f's_sub_u32 s{s_st}, s{s_st}, s0'); a(f's_sub_u32 s100, s100, s3'); a(f's_pack_ll_b32_b16 s{d}, s{s_st}, s100')
    def fstamp(self, a, i):
        if not (self.diag and self.opt.get('fine')): return
        a(f's_memtime s[{s_st}:{s_st+1}]'); a.wait(lg0=True)
        a(f's_sub_u32 s{s_st}, s{s_st}, s0'); a.raw(f'    v_writelane_b32 v{v_P2}, s{s_st}, {i}')
    def poll_issue(self, a, vdst, vaddr, sr, soff):
        return a(f'buffer_load_dword v{vdst}, v{vaddr}, {srd(sr)}, {soff} offen sc1')
    def poll_check(self, a, vdst, vaddr, sr, soff, mask):
        self.nlab += 1; n = self.nlab
        a(f'v_cmp_eq_u32 vcc, 1, v{vdst}')
        a(f's_and_b32 s{s_t0}, vcc_lo, {mask}')
        a(f's_cmp_eq_u32 s{s_t0}, {mask}')
        a(f's_cbranch_scc0 L_slow{n}')
        a.label(f'L_ok{n}')
        S = [f'L_slow{n}:', f'    s_mov_b32 s{s_cnt}, 0', f'L_spin{n}:',
             f'    buffer_load_dword v{vdst}, v{vaddr}, {srd(sr)}, {soff} offen sc1', '    s_waitcnt vmcnt(0)',
             f'    v_cmp_eq_u32 vcc, 1, v{vdst}', '    s_nop 3', f'    s_and_b32 s{s_t0}, vcc_lo, {mask}', f'    s_cmp_eq_u32 s{s_t0}, {mask}',
             f'    s_cbranch_scc1 L_ok{n}', f'    s_add_u32 s{s_cnt}, s{s_cnt}, 1', f'    s_cmp_lt_u32 s{s_cnt}, 0x8000',
             f'    s_cbranch_scc1 L_spin{n}', f'    s_branch L_ok{n}']
        self.slow += S
    def flag(self, a, stage):
        return a(f'buffer_store_dword v{v_one}, v{v_fl}, {srd(sWS)}, s{s_fl} offen offset:{stage*128} sc1')
    def wdma(self, a, slab):
        ch = 0 if slab < 16 else (1 if slab < 32 else 2)
        so = [s_wo0, s_wo1, s_wo2][ch]; vv = [v_wv0, v_wv1, v_wv2][ch]; sr = [sW0, sW1, sW2][ch]
        step = self.wstep[ch]
        k = (slab & 15) if ch < 2 else 2*(slab - 32)
        nt = ' nt' if self.opt.get('wnt', 0) else ''
        L = [f's_add_u32 s{s_wt}, s{s_rot}, {k}', f's_and_b32 s{s_wt}, s{s_wt}, 15', f's_mul_i32 s{s_wt}, s{s_wt}, {step}',
             f's_add_u32 m0, s{s_wm}, {(slab % RING)*8192}', f's_add_u32 s{s_wt}, s{s_wt}, s{so}',
             ('dma', f'buffer_load_dwordx4 v{vv}, {srd(sr)}, s{s_wt} offen{nt} lds', ('W', slab))]
        return L
    def bdma_rot(self, nb):
        G, p = nb >> 2, nb & 3
        if G == 3: return self.bdma(6, p)
        def claim(a):
            for i in (2*G, 2*G+1):
                for b in self.blocks(('B', i)):
                    for t in self.lds_rd.get(b, []): assert self.lds_key[b] == ('B', i) or a.done_at_barrier(t), ('WAR rot', nb)
        return [claim, f's_add_u32 m0, s{s_bl+p}, {bslot(2*G)}', f's_add_u32 s{s_t1}, s{s_bg+p}, {BSTEP[2*G][1]*1024}',
                ('dma', f'buffer_load_dwordx4 v{v_bv}, {srd(sB2)}, s{s_t1} offen lds', ('B', 2*G + (p >> 1), p & 1))]
    def bdma(self, i, n):
        mat, ro, half = BSTEP[i]
        base = {('w2',0): s_b2, ('w2',1): s_b2h, ('wo',0): s_bo}[(mat, half)]
        off = ro*1024 + n*(16384 if half else 8192)
        sr = sB2 if mat == 'w2' else sBo
        return [f's_add_u32 m0, s{s_bm}, {bslot(i) + n*1024}', f's_add_u32 s{s_t1}, s{base}, {off}',
                ('dma', f'buffer_load_dwordx4 v{v_bv}, {srd(sr)}, s{s_t1} offen lds', ('B', i, n))]
    def aload(self, n):
        i, t = n >> 1, n & 1
        return [f's_add_u32 s{s_t2}, s{s_al}, {t*73728 + i*1024}',
                ('dma', f'buffer_load_dwordx4 {ar((n % 32)*4, 4)}, v{v_l16}, {srd(sWS)}, s{s_t2} offen sc1', ('A', n))]
    def do(self, a, it):
        if isinstance(it, str): a(it)
        elif callable(it): it(a)
        elif it[0] == 'dma':
            key = it[2]; blocks = self.blocks(key)
            for b in blocks:
                if self.lds_key.get(b) != key[:2]:
                    for t in self.lds_rd.get(b, []): assert a.done_at_barrier(t), ('WAR on LDS', key, b)
                    self.lds_key[b] = key[:2]; self.lds_rd[b] = []; self.lds_wr[b] = []
            self.tok[key] = a(it[1])
            if self.opt.get('xdma') and key[0] in ('W', 'B') and not (key[0] == 'W' and key[1] < 4): a.out.pop()
            if self.opt.get('xb') and key[0] == 'B': a.out.pop()
            for b in blocks: self.lds_wr[b].append(self.tok[key])
        elif it[0] == 'rd':
            key = it[2]
            for b in self.blocks(key):
                assert self.lds_key.get(b) == key, ('stale LDS read', key, self.lds_key.get(b))
                assert len(self.lds_wr[b]) == (2 if key[0] == 'B' else 1) or key[0] == 'X'
                for t in self.lds_wr[b]: assert a.done_at_barrier(t), ('RAW on LDS', key)
            t = a(it[1])
            if self.opt.get('xrd') and key[0] == 'W': a.out.pop()
            for b in self.blocks(key): self.lds_rd[b].append(t)
        else: raise ValueError(it)
    def blocks(self, key):
        if key == 'fin' or key[0] not in ('W', 'B', 'X'): return []
        if key[0] == 'W': return [key[1] % RING]
        if key[0] == 'X': return [4 + key[1]]
        return [bslot(key[1]) // 8192, bslot(key[1]) // 8192 + 1]
    @staticmethod
    def weight(it):
        if isinstance(it, str):
            if it.startswith('s_'): return 0 if f's{s_t3},' in it else 1
            return 2 if it.split()[0].replace('_e32','').replace('_e64','') in ('v_exp_f32','v_rcp_f32','v_rsq_f32') else 1
        return 0
    def prologue(self, a):
        a('s_cmp_ge_u32 s2, 256'); a('s_cbranch_scc1 L_end')
        a('s_load_dwordx16 s[4:19], s[0:1], 0'); a('s_load_dwordx4 s[20:23], s[0:1], 64')
        if self.diag: a(f's_memrealtime s[{s_st}:{s_st+1}]'); a(f's_memtime s[{s_st+2}:{s_st+3}]')
        if self.opt.get('cpf', 1):
            a(f's_getpc_b64 s[{sW0}:{sW0+1}]'); a.label('L_pc')
            a(f's_lshr_b32 s{s_t0}, s2, 3'); a(f's_lshl_b32 s{s_t0}, s{s_t0}, 11')
            a(f's_and_b32 s{sW0+1}, s{sW0+1}, 0xffff'); a(f's_mov_b32 s{sW0+2}, L_codeend-L_pc'); a(f's_mov_b32 s{sW0+3}, 0x20000')
            a('v_lshlrev_b32 v2, 7, v0'); a('v_lshrrev_b32 v3, 4, v0'); a('v_lshl_add_u32 v2, v3, 20, v2')
            a(f'buffer_load_dword a127, v2, {srd(sW0)}, s{s_t0} offen')
        a('v_lshrrev_b32 v1, 6, v0'); a('v_and_b32 v0, 63, v0')
        a(f'v_readfirstlane_b32 s{s_w}, v1')
        a(f's_and_b32 s{s_t0}, s2, 7'); a(f's_lshr_b32 s{s_t1}, s2, 3')
        a(f's_and_b32 s{s_kp}, s{s_t0}, 3'); a(f's_and_b32 s{s_ty}, s{s_t1}, 3')
        a(f's_lshr_b32 s{s_rb}, s{s_t0}, 2'); a(f's_lshl_b32 s{s_rb}, s{s_rb}, 3'); a(f's_lshr_b32 s{s_t2}, s{s_t1}, 2'); a(f's_add_u32 s{s_rb}, s{s_rb}, s{s_t2}')
        a(f's_lshl_b32 s{s_rb64}, s{s_t0}, 2'); a(f's_lshr_b32 s{s_t2}, s{s_t1}, 3'); a(f's_add_u32 s{s_rb64}, s{s_rb64}, s{s_t2}')
        a(f's_and_b32 s{s_ct}, s{s_t1}, 7')
        a(f's_lshr_b32 s{s_r}, s{s_w}, 1'); a(f's_and_b32 s{s_c}, s{s_w}, 1')
        g, c16, T0, T1, T2 = WF+8, WF+9, WF+10, WF+11, WF+12
        lane = v_hv
        vX = v_P2 if not self.opt.get('fine') else v_P
        a(f'v_mov_b32 v{v_hv}, v0')
        a(f'v_lshrrev_b32 v{T0}, 3, v0'); a(f'v_and_b32 v{T1}, 7, v0'); a(f'v_lshlrev_b32 v{T1}, 4, v{T1}'); a(f'v_lshl_add_u32 v{vX}, v{T0}, 10, v{T1}')
        a(f's_and_b32 s{s_t2}, s{s_rb}, {7 if self.opt.get("rot", 1) else 0}')
        a(f's_lshl_b32 s{s_xo}, s{s_rb}, 17'); a(f's_lshl_b32 s{s_t0}, s{s_w}, 14'); a(f's_add_u32 s{s_xo}, s{s_xo}, s{s_t0}')
        a(f's_and_b32 s{s_t1}, s{s_ty}, {self.opt.get("xrot", 1)}'); a(f's_lshl_b32 s{s_t0}, s{s_t1}, 13'); a(f's_add_u32 s{s_xo}, s{s_xo}, s{s_t0}')
        a(f's_lshl_b32 s{s_t0}, s{s_t2}, 7'); a(f's_add_u32 s{s_xo}, s{s_xo}, s{s_t0}')
        a(f's_mov_b32 s{sX+2}, {2048*1024}'); a(f's_mov_b32 s{sX+3}, 0x20000')
        a.wait(lg0=True)
        if self.diag: a(f's_mov_b32 s3, s{s_st}'); a(f's_mov_b32 s0, s{s_st+2}')
        a(f's_mov_b32 s{sX}, s4'); a(f's_and_b32 s{sX+1}, s5, 0xffff')
        xnt = ' nt' if self.opt.get('xnt', 0) else ''
        def xload(n):
            i = n & 7; L = []
            if n == 0: return [f'buffer_load_dwordx4 {vr(0,4)}, v{vX}, {srd(sX)}, s{s_xo} offen' + xnt, f's_mov_b32 s{s_rho}, s{s_t2}', f's_sub_u32 s{s_xb}, s{s_xo}, 1024']
            if n == 8: L = [f's_xor_b32 s{s_xo}, s{s_xo}, 8192', f's_sub_u32 s{s_xb}, s{s_xo}, 1024']
            return L + [f's_cmp_ge_u32 s{s_rho}, {8-i}', f's_cselect_b32 s{s_xq}, s{s_xb}, s{s_xo}',
                        f'buffer_load_dwordx4 {vr(4*n,4)}, v{vX}, {srd(sX)}, s{s_xq} offen offset:{128*i}' + xnt]
        n0 = self.opt.get('x0', 5)
        for n in range(n0):
            for x in xload(n): a(x)
        if self.opt.get('lnprio', 0):
            a(f's_cmp_lt_u32 s{s_w}, 4'); a('s_cbranch_scc1 L_np'); a('s_setprio 1'); a.label('L_np')
        real = a
        class Rec:
            def __init__(s): s.ch = [[]]
            def __call__(s, t, track=True): s.ch[-1].append(t if track else (lambda a, t=t: a(t, track=False)))
            def label(s, n): s.ch[-1].append(lambda a, n=n: a.label(n))
            def cut(s): s.ch.append([])
        M0r, M1r, ONE, WB = v_KP, v_KP+1, v_KP+2, v_KP+4
        a(f'v_lshrrev_b32 v{g}, 4, v{lane}'); a(f'v_and_b32 v{c16}, 15, v{lane}'); a(f'v_lshlrev_b32 v{v_l16}, 4, v{lane}')
        a(f'v_mov_b32 v{ONE}, 0x3f803f80'); a(f'v_mov_b32 v{ONE+1}, 0x3f803f80')
        a = Rec()
        def mk(d, p, n):
            a(f's_mov_b32 s{d}, s{p}'); a(f's_and_b32 s{d+1}, s{p+1}, 0xffff'); a(f's_mov_b32 s{d+2}, {n}'); a(f's_mov_b32 s{d+3}, 0x20000')
        mk(sWS, 22, WSSZ + (0x100000 if self.diag else 0))
        a(f's_cmp_eq_u32 s{s_c}, 0'); a(f's_cselect_b32 s{sW1}, s12, s14'); a(f's_cselect_b32 s{sW1+1}, s13, s15')
        a(f's_and_b32 s{sW1+1}, s{sW1+1}, 0xffff'); a(f's_mov_b32 s{sW1+2}, {512*3584}'); a(f's_mov_b32 s{sW1+3}, 0x20000')
        a(f's_and_b32 s7, s7, 0xffff')
        a(f's_cmp_lt_u32 s{s_ty}, 2')
        for d in (sW0, sW2):
            a(f's_cselect_b32 s{d}, s6, s{sW1}'); a(f's_cselect_b32 s{d+1}, s7, s{sW1+1}'); a(f's_cselect_b32 s{d+2}, {512*3072}, s{sW1+2}'); a(f's_mov_b32 s{d+3}, 0x20000')
        a(f's_mov_b32 s{s_t3}, 3584'); a(f's_cselect_b32 s{s_t3}, 3072, s{s_t3}')
        a.cut()
        a(f's_and_b32 s{s_t0}, s{s_r}, 1'); a(f's_lshl_b32 s{s_t0}, s{s_t0}, 2')
        a(f'v_and_b32 v{T0}, 1, v{g}'); a(f'v_lshlrev_b32 v{T0}, 1, v{T0}'); a(f'v_or_b32 v{T0}, s{s_t0}, v{T0}')
        a(f'v_and_b32 v{T1}, 7, v{lane}'); a(f'v_xor_b32 v{T0}, v{T0}, v{T1}'); a(f'v_lshlrev_b32 v{T0}, 4, v{T0}')
        a(f'v_lshrrev_b32 v{T2}, 3, v{lane}')
        a(f'v_mad_u32_u24 v{v_wv0}, v{T2}, s{s_t3}, v{T0}')
        a(f'v_mul_u32_u24 v{v_wv1}, 3584, v{T2}'); a(f'v_add_u32 v{v_wv1}, v{v_wv1}, v{T0}')
        a.cut()
        a(f's_mul_i32 s{s_wo0}, s{s_r}, s{s_t3}'); a(f's_lshl_b32 s{s_wo0}, s{s_wo0}, 3')
        a(f's_lshl_b32 s{s_t0}, s{s_kp}, 1'); a(f's_add_u32 s{s_t0}, s{s_t0}, s{s_ty}'); a(f's_lshl_b32 s{s_t0}, s{s_t0}, 7')
        a(f's_lshl_b32 s{s_t1}, s{s_c}, 10'); a(f's_add_u32 s{s_t1}, s{s_t1}, s{s_t0}'); a(f's_add_u32 s{s_t1}, s{s_t1}, 1024')
        a(f's_mul_i32 s{s_t2}, s{s_kp}, 896')
        a(f's_mul_i32 s{s_cnt}, s{s_ty}, 384'); a(f's_add_u32 s{s_cnt}, s{s_cnt}, s{s_t2}'); a(f's_sub_u32 s{s_cnt}, s{s_cnt}, 512')
        a(f's_cmp_lt_u32 s{s_ty}, 2'); a(f's_cselect_b32 s{s_t1}, s{s_t1}, s{s_cnt}')
        a(f's_add_u32 s{s_wo0}, s{s_wo0}, s{s_t1}')
        a(f's_lshl_b32 s{s_wm}, s{s_c}, 12'); a(f's_lshl_b32 s{s_t1}, s{s_r}, 10'); a(f's_add_u32 s{s_wm}, s{s_wm}, s{s_t1}')
        a(f's_lshl_b32 s{s_p32}, s{s_t3}, 5')
        a.cut()
        a(f's_or_b32 s{s_t1}, s{s_kp}, s{s_ty}'); a(f's_cmp_lg_u32 s{s_t1}, 0'); a('s_cbranch_scc1 L_nolead')
        for i in range(4): a(f'v_mov_b32 v{WF+i}, 0')
        a(f's_lshl_b32 s{s_t1}, s{s_rb}, 13'); a(f's_lshl_b32 s{s_hl}, s{s_w}, 10'); a(f's_add_u32 s{s_t1}, s{s_t1}, s{s_hl}'); a(f's_add_u32 s{s_t1}, s{s_t1}, {FLAGS}')
        a(f'buffer_store_dwordx4 {vr(WF,4)}, v{v_l16}, {srd(sWS)}, s{s_t1} offen sc1', track=False)
        a('s_nop 1')
        a.label('L_nolead')
        self.wstep = [f's{s_p32}', 0, 0]
        ringpre = [self.wdma(a, slab) for slab in range(4)]
        a.cut()
        a(f's_mul_i32 s{s_wo1}, s{s_r}, {8*3584}')
        a(f's_lshl_b32 s{s_t1}, s{s_ty}, 7'); a(f's_add_u32 s{s_t1}, s{s_t1}, s{s_t2}')
        a(f's_add_u32 s{s_cnt}, s{s_cnt}, 128')
        a(f's_cmp_lt_u32 s{s_ty}, 2'); a(f's_cselect_b32 s{s_t1}, s{s_t1}, s{s_cnt}'); a(f's_add_u32 s{s_wo1}, s{s_wo1}, s{s_t1}')
        a(f's_lshl_b32 s{s_t1}, s{s_c}, 2'); a(f's_add_u32 s{s_t1}, s{s_t1}, s{s_r}'); a(f's_mul_i32 s{s_t1}, s{s_t1}, {8*3072}'); a(f's_add_u32 s{s_t1}, s{s_t1}, s{s_t0}')
        a(f's_mul_i32 s{s_cnt}, s{s_r}, {16*3584}'); a(f's_add_u32 s{s_cnt}, s{s_cnt}, s{s_t2}'); a(f's_lshl_b32 s{s_t3}, s{s_ty}, 6'); a(f's_add_u32 s{s_cnt}, s{s_cnt}, s{s_t3}'); a(f's_add_u32 s{s_cnt}, s{s_cnt}, {512-128}')
        a(f's_cmp_lt_u32 s{s_ty}, 2'); a(f's_cselect_b32 s{s_wo2}, s{s_t1}, s{s_cnt}')
        a.cut()
        mk(sB2, 16, 1792*1024); mk(sBo, 8, 512*1024); mk(sDBG, 20, 256); mk(sOUT, 18, 2048*1024)
        a(f's_and_b32 s{s_rot}, s{s_rb}, {7 if self.opt.get("rot", 1) else 0}'); a(f's_lshl_b32 s{s_rot}, s{s_rot}, 1')
        a.cut()
        a(f'v_lshrrev_b32 v{T0}, 5, v{lane}'); a(f'v_lshlrev_b32 v{T0}, 1, v{T0}'); a(f'v_and_b32 v{T1}, 3, v{lane}'); a(f'v_xor_b32 v{T0}, v{T0}, v{T1}'); a(f'v_lshlrev_b32 v{T0}, 4, v{T0}')
        a(f'v_lshrrev_b32 v{T2}, 2, v{lane}'); a(f'v_mul_u32_u24 v{v_wv2}, 3584, v{T2}'); a(f'v_add_u32 v{v_wv2}, v{v_wv2}, v{T0}')
        a.cut()
        r4 = WF+13; fz = WF+14
        a(f'v_and_b32 v{r4}, 3, v{T2}')
        a(f'v_lshrrev_b32 v{fz}, 1, v{r4}'); a(f'v_and_b32 v{T0}, 1, v{g}'); a(f'v_lshl_or_b32 v{fz}, v{T0}, 1, v{fz}')
        a(f'v_lshl_add_u32 v{T2}, v{g}, 3, v{r4}')
        a(f's_lshl_b32 s{s_t0}, s{s_c}, 1')
        a(f'v_xor_b32 v{v_tr0}, s{s_t0}, v{fz}'); a(f'v_lshlrev_b32 v{v_tr0}, 5, v{v_tr0}'); a(f'v_lshl_add_u32 v{v_tr0}, v{T2}, 7, v{v_tr0}'); a(f'v_lshl_add_u32 v{v_tr0}, v{T1}, 3, v{v_tr0}')
        a(f'v_xor_b32 v{v_tr1}, 32, v{v_tr0}')
        a(f'v_xor_b32 v{v_trh}, s{s_c}, v{T0}'); a(f'v_lshlrev_b32 v{v_trh}, 5, v{v_trh}'); a(f'v_lshl_add_u32 v{v_trh}, v{T2}, 6, v{v_trh}'); a(f'v_lshl_add_u32 v{v_trh}, v{T1}, 3, v{v_trh}')
        a.cut()
        a(f's_lshl_b32 s{s_t0}, s{s_r}, 11'); a(f's_add_u32 s{s_t0}, s{s_t0}, 32768')
        a(f'v_xor_b32 v{v_xe}, v{c16}, v{g}'); a(f'v_lshlrev_b32 v{v_xe}, 4, v{v_xe}'); a(f'v_lshl_add_u32 v{v_xe}, v{g}, 8, v{v_xe}'); a(f'v_add_u32 v{v_xe}, s{s_t0}, v{v_xe}')
        a(f'v_xor_b32 v{v_xo}, 64, v{v_xe}')
        a.cut()
        a(f'v_and_b32 v{T0}, 7, v{lane}'); a(f'v_lshlrev_b32 v{T2}, 1, v{g}'); a(f'v_xor_b32 v{T0}, v{T0}, v{T2}'); a(f'v_lshlrev_b32 v{T0}, 4, v{T0}')
        a(f'v_lshrrev_b32 v{T2}, 3, v{lane}'); a(f'v_lshl_add_u32 v{v_bv}, v{T2}, 10, v{T0}'); a(f's_lshl_b32 s{s_t0}, s{s_ct}, 7'); a(f'v_add_u32 v{v_bv}, s{s_t0}, v{v_bv}')
        a.cut()
        a(f's_lshl_b32 s{s_bm}, s{s_w}, 11')
        a(f's_mul_i32 s{s_t0}, s{s_r}, {448*1024}')
        a(f's_lshl_b32 s{s_t1}, s{s_c}, 14'); a(f's_add_u32 s{s_b2}, s{s_t0}, s{s_t1}')
        a(f's_lshl_b32 s{s_t2}, s{s_c}, 13'); a(f's_add_u32 s{s_b2h}, s{s_t0}, s{s_t2}')
        a(f's_lshl_b32 s{s_bo}, s{s_r}, 17'); a(f's_add_u32 s{s_bo}, s{s_bo}, s{s_t1}')
        a.cut()
        a(f'v_mov_b32 v{T0}, {OOB}')
        a(f'v_cmp_eq_u32 vcc, 0, v{lane}'); a(f'v_cndmask_b32 v{v_fl}, v{T0}, v{lane}, vcc')
        a(f'v_lshlrev_b32 v{T2}, 2, v{lane}'); a(f'v_cmp_gt_u32 vcc, 16, v{lane}'); a(f'v_cndmask_b32 v{v_pl}, v{T0}, v{T2}, vcc')
        a(f'v_mov_b32 v{v_one}, 1')
        a.cut()
        a(f's_lshl_b32 s{s_t0}, s{s_rb}, 2'); a(f's_add_u32 s{s_t0}, s{s_t0}, s{s_r}')
        a(f's_mul_i32 s{s_hst}, s{s_t0}, {2*73728}'); a(f's_mul_i32 s{s_t1}, s{s_kp}, {18*1024}'); a(f's_add_u32 s{s_hst}, s{s_hst}, s{s_t1}')
        a(f's_lshl_b32 s{s_t1}, s{s_ty}, 1'); a(f's_add_u32 s{s_t1}, s{s_t1}, s{s_c}')
        a(f's_lshl_b32 s{s_fl}, s{s_t0}, 2'); a(f's_add_u32 s{s_fl}, s{s_fl}, s{s_kp}'); a(f's_lshl_b32 s{s_fl}, s{s_fl}, 9'); a(f's_lshl_b32 s{s_t2}, s{s_t1}, 2')
        a(f's_add_u32 s{s_fl}, s{s_fl}, s{s_t2}'); a(f's_add_u32 s{s_fl}, s{s_fl}, {FLAGS}')
        a.cut()
        a(f's_sub_u32 s{s_hl}, s{s_fl}, {2048-384}')
        a(f's_lshl_b32 s{s_t2}, s{s_kp}, 2'); a(f's_add_u32 s{s_t2}, s{s_t2}, s{s_t1}'); a(f's_lshl_b32 s{s_ha}, s{s_t0}, 4'); a(f's_add_u32 s{s_ha}, s{s_ha}, s{s_t2}')
        a(f's_lshl_b32 s{s_ha}, s{s_ha}, 11'); a(f's_add_u32 s{s_ha}, s{s_ha}, {HALO}')
        a(f's_cmp_eq_u32 s{s_t0}, 0'); a(f's_cselect_b32 s{s_hms}, 0, 1')
        a.cut()
        a(f's_lshl_b32 s{s_t0}, s{s_rb64}, 1'); a(f's_add_u32 s{s_t0}, s{s_t0}, s{s_c}')
        a(f's_mul_i32 s{s_al}, s{s_t0}, {2*73728}'); a(f's_mul_i32 s{s_t1}, s{s_r}, {18*1024}'); a(f's_add_u32 s{s_al}, s{s_al}, s{s_t1}')
        a(f's_lshl_b32 s{s_pl}, s{s_t0}, 2'); a(f's_add_u32 s{s_pl}, s{s_pl}, s{s_r}'); a(f's_lshl_b32 s{s_pl}, s{s_pl}, 9'); a(f's_add_u32 s{s_pl}, s{s_pl}, {FLAGS}')
        a(f's_mov_b32 s{s_nl2e}, {hex(f2u(-LOG2E))}')
        a.cut()
        for k, m in enumerate((0x2222222222222222, 0x4444444444444444, 0x8888888888888888, 0x1111111111111111)):
            a(f's_mov_b32 s{12+2*k}, {hex(m & 0xffffffff)}'); a(f's_mov_b32 s{12+2*k+1}, {hex(m >> 32)}')
        sm = lambda k: f's[{12+2*k}:{12+2*k+1}]'
        a(f'v_mov_b32 v{T0}, 0xffff'); a(f'v_mov_b32 v{T1}, 0xffff0000')
        a(f'v_cndmask_b32 v{M0r}, 0, v{T0}, {sm(3)}'); a(f'v_cndmask_b32 v{M0r}, v{M0r}, v{T1}, {sm(0)}')
        a(f'v_cndmask_b32 v{M1r}, 0, v{T0}, {sm(1)}'); a(f'v_cndmask_b32 v{M1r}, v{M1r}, v{T1}, {sm(2)}')
        a.cut()
        a(f'v_lshrrev_b32 v{T0}, 3, v{lane}'); a(f'v_and_b32 v{T1}, 7, v{lane}'); a(f'v_xor_b32 v{T0}, v{T0}, v{T1}'); a(f'v_lshlrev_b32 v{T0}, 4, v{T0}')
        a(f'v_lshrrev_b32 v{T2}, 2, v{T1}'); a(f'v_lshl_add_u32 v{T0}, v{T2}, 13, v{T0}'); a(f'v_and_b32 v{T1}, 3, v{T1}'); a(f'v_lshl_add_u32 v{T0}, v{T1}, 8, v{T0}')
        a(f's_lshl_b32 s{s_t0}, s{s_w}, 10'); a(f's_and_b32 s{s_t1}, s{s_ty}, {self.opt.get("xrot", 1)}'); a(f's_lshl_b32 s{s_t1}, s{s_t1}, 7'); a(f's_add_u32 s{s_t0}, s{s_t0}, s{s_t1}')
        a(f's_add_u32 s{s_t0}, s{s_t0}, 32768'); a(f'v_add_u32 v{WB}, s{s_t0}, v{T0}'); a(f'v_add_u32 v{WB+1}, 0x10000, v{WB}')
        a(f'v_mov_b32 v{WB+2}, {hex(f2u(1/512))}')
        warm = []
        if self.opt.get('bwarm', 1):
            a.cut()
            vW = WB+3
            a(f'v_lshlrev_b32 v{vW}, 7, v{lane}'); a(f'v_mov_b32 v{T0}, {OOB}'); a(f'v_cmp_gt_u32 vcc, 7, v{lane}'); a(f'v_cndmask_b32 v{vW}, v{T0}, v{vW}, vcc')
            a(f's_lshl_b32 s22, s2, 3'); a(f's_add_u32 s22, s22, s{s_w}'); a(f's_lshl_b32 s23, s22, 8'); a(f's_mul_i32 s22, s22, 896')
            warm = [[f'buffer_load_dword a126, v{vW}, {srd(sB2)}, s22 offen'],
                    [f'v_lshrrev_b32 v0, 1, v{lane}', f'v_lshl_add_u32 v{vW}, v0, 20, v{vW}', f'buffer_load_dword a125, v{vW}, {srd(sBo)}, s23 offen']]
        chunks = a.ch; a = real
        tot = sum(len(c) for c in chunks); done = 0
        while chunks and done < tot*self.opt.get('early', 60)/100:
            c_ = chunks.pop(0); done += len(c_)
            for x in c_: self.do(a, x)
        self.dstamp(a, 0)
        S, Q = v_T, v_T+4
        vq = [xload(n) for n in range(n0, 16)] + ringpre + warm
        def issue():
            if vq:
                for x in vq.pop(0): self.do(a, x)
        for G in range(2):
            X = 32*G
            for u in range(16):
                xp = vr(X+2*u, 2)
                a(f'v_mfma_f32_4x4x4_16b_bf16 {vr(S,4)}, {vr(ONE,2)}, {xp}, {vr(S,4) if u else 0}')
                a(f'v_mfma_f32_4x4x4_16b_bf16 {vr(Q,4)}, {xp}, {xp}, {vr(Q,4) if u else 0}')
                if u & 1:
                    if G == 0:
                        nx = len(vq) - len(ringpre) - len(warm); left = (17 - u)//2
                        keep = self.opt.get('xkeep', 0)
                        for _ in range(max(0, (nx - keep)//left if left > 1 else nx - keep)): issue()
                    elif u >= self.opt.get('wu', 1): issue()
                    if G == 0:
                        left = (15 - u)//2
                        k = len(chunks) if left <= 1 else -(-len(chunks)//left)
                        for _ in range(min(k, len(chunks))):
                            for x in chunks.pop(0): self.do(a, x)
            assert not chunks
            if self.opt.get('fine', 0) & 4: self.fstamp(a, 58 + 2*G)
            if G: a(f'v_xor_b32 v{WB}, 0x80, v{WB}'); a(f'v_xor_b32 v{WB+1}, 0x80, v{WB+1}')
            dp = ['quad_perm:[1,0,3,2]', 'quad_perm:[2,3,0,1]', 'row_half_mirror']
            for k in range(3):
                a(f'v_add_f32_dpp v{S}, v{S}, v{S} {dp[k]} row_mask:0xf bank_mask:0xf')
                a(f'v_cndmask_b32 v{Q}, v{Q}, v{Q+1+k}, {sm(k)}')
            a(f'v_mul_f32 v{S}, v{WB+2}, v{S}')
            for k in range(3):
                a(f'v_add_f32_dpp v{Q}, v{Q}, v{Q} {dp[k]} row_mask:0xf bank_mask:0xf')
                if k == 0: a(f'v_mul_f32 v{S+1}, v{S}, v{S}')
            a(f'v_fma_f32 v{Q}, v{Q}, v{WB+2}, -v{S+1}')
            a(f'v_max_f32 v{Q}, 0, v{Q}'); a(f'v_add_f32 v{Q}, {hex(f2u(1e-5))}, v{Q}')
            a(f'v_rsq_f32 v{Q}, v{Q}')
            a(f'v_cvt_pk_bf16_f32 v{Q+1}, v{Q}, v{Q}')
            D = lambda u: WF + 4*(u & 7)
            hi = lambda u: f'v_mfma_f32_4x4x4_16b_bf16 {vr(D(u),4)}, {vr(Q,2)}, {vr(X+2*u,2)}, {vr(S,4)}'
            lo = lambda u: f'v_mfma_f32_4x4x4_16b_bf16 {vr(D(u),4)}, {vr(Q+2,2)}, {vr(X+2*u,2)}, {vr(D(u),4)}'
            cv = lambda u: [f'v_cvt_pk_bf16_f32 v{X+2*u}, v{D(u)}, v{D(u)+1}', f'v_cvt_pk_bf16_f32 v{X+2*u+1}, v{D(u)+2}, v{D(u)+3}']
            wr = lambda i: f'ds_write_b128 v{WB+(i>>2)}, {vr(X+4*i,4)} offset:{(i&3)*16384}'
            wend = self.opt.get('wend', 0)
            def maybe_issue():
                if G == 1 or len(vq) > len(ringpre) + len(warm) - self.opt.get('wg0', 0): issue()
            if self.opt.get('lo', 1):
                a(f'v_mul_f32_e64 v{S}, -v{S}, v{Q}')
                a(f'v_and_b32 v{Q+2}, 0xffff0000, v{Q+1}'); a(f'v_sub_f32 v{Q+2}, v{Q}, v{Q+2}')
                a(f'v_and_b32 v{Q}, v{M0r}, v{Q+1}'); a(f'v_and_b32 v{Q+1}, v{M1r}, v{Q+1}')
                for k in (1, 2, 3): a(f'v_mov_b32 v{S+k}, v{S}')
                a(f'v_cvt_pk_bf16_f32 v{Q+3}, v{Q+2}, v{Q+2}')
                a(hi(0)); a(f'v_and_b32 v{Q+2}, v{M0r}, v{Q+3}'); a(hi(1)); a(f'v_and_b32 v{Q+3}, v{M1r}, v{Q+3}'); a(hi(2))
                for u in range(19):
                    if u + 3 < 16: a(hi(u+3))
                    if u >= 3: a(cv(u-3)[0])
                    if u < 16: a(lo(u))
                    if u >= 3:
                        a(cv(u-3)[1])
                        if (u-3) & 1 and not wend: a(wr((u-3) >> 1))
                    if u in (2, 6, 10, 14): maybe_issue()
            else:
                a(f'v_and_b32 v{Q+2}, 0xffff0000, v{Q+1}')
                a(f'v_and_b32 v{Q}, v{M0r}, v{Q+1}'); a(f'v_and_b32 v{Q+1}, v{M1r}, v{Q+1}')
                for k in (1, 2, 3, 0): a(f'v_mul_f32_e64 v{S+k}, -v{S}, v{Q+2}')
                for u in range(20):
                    if u < 16: a(hi(u))
                    if u >= 4:
                        for x in cv(u-4): a(x)
                        if (u-4) & 1 and not wend: a(wr((u-4) >> 1))
                    if u in (3, 7, 11, 15): maybe_issue()
            if wend:
                for i in range(8): a(wr(i))
            if self.opt.get('fine', 0) & 4 and G == 0: self.fstamp(a, 59)
        while vq: issue()
        if self.opt.get('lnprio', 0): a('s_setprio 0')
        if self.opt.get('fine', 0) & 4: self.fstamp(a, 62)
        a.wait(vm_tok=[self.tok[('W', 0)]], lg0=True)
        if self.opt.get('fine', 0) & 4: self.fstamp(a, 63)
        a.barrier()
        self.dstamp(a, 1)
        a(f's_or_b32 s{s_t1}, s{s_kp}, s{s_ty}'); a(f's_or_b32 s{s_t1}, s{s_t1}, s{s_w}'); a(f's_cmp_lg_u32 s{s_t1}, 0'); a('s_cbranch_scc1 L_nolead2')
        a(f's_lshl_b32 s{s_t1}, s{s_rb}, 2')
        a(f'buffer_store_dword v{v_one}, v{v_fl}, {srd(sDBG)}, s{s_t1} offen sc1', track=False)
        a.label('L_nolead2')
    def wreads(self, s, typ):
        buf = WF + (s & 1)*16; base = (s % RING)*8192; L = []
        for f in range(4):
            p, tf = f >> 1, f & 1
            for rd in range(2):
                if s >= 32 and typ == 'B': addr, off = v_trh, base + p*4096 + tf*2048 + rd*256
                else: addr, off = (v_tr1 if tf else v_tr0), base + p*4096 + rd*512
                L.append(('rd', f'ds_read_b64_tr_b16 {vr(buf+4*f+2*rd,2)}, v{addr} offset:{off}', ('W', s)))
        return L
    def xreads(self, s):
        L = []
        if s == 8: L += [f'v_add_u32 v{v_xe}, 0x10000, v{v_xe}']
        if s == 9: L += [f'v_add_u32 v{v_xo}, 0x10000, v{v_xo}']
        for t in range(2):
            L.append(('rd', f'ds_read_b128 {ar((2*s+t)*4,4)}, v{v_xo if s & 1 else v_xe} offset:{(s & 7)*8192 + t*1024}', ('X', s)))
        return L
    def mfmas(self, s, typ):
        buf = WF + (s & 1)*16; L = []
        for f in range(4):
            p, tf = f >> 1, f & 1
            for t in range(2):
                w = vr(buf+4*f, 4)
                if s < 32:
                    ks = s & 15; first = ks == 0
                    if s < 16 and typ == 'A': acc = ACC0 + (16 if p == 0 else 0) + (tf*2+t)*4
                    else: acc = (ACC0 if s < 16 else ACC1) + (f*2+t)*4
                    swap = (s < 16 and typ == 'A' and p == 1)
                else:
                    u, cidx = (p, tf) if typ == 'A' else (tf, p)
                    ks = 2*(s-32) + u; first = ks == 0; acc = ACC0 + (cidx*2+t)*4; swap = False
                x = ar((2*ks+t)*4, 4)
                A, B = (x, w) if swap else (w, x)
                L.append(f'v_mfma_f32_16x16x32_bf16 {vr(acc,4)}, {A}, {B}, {0 if first else vr(acc,4)}')
        return L
    def silu_batch(self, G, U, O, T):
        L = [f'v_mul_f32 v{T+r}, s{s_nl2e}, v{G+r}' for r in range(4)]
        for r in range(4): L += [f'v_exp_f32 v{T+r}, v{T+r}', f'v_mul_f32 v{U+r}, v{G+r}, v{U+r}']
        L += [f'v_add_f32 v{T+r}, 1.0, v{T+r}' for r in range(4)]
        L += [f'v_rcp_f32 v{T+r}, v{T+r}' for r in range(4)]
        L += [f'v_mul_f32 v{U+r}, v{U+r}, v{T+r}' for r in range(4)]
        L += [f'v_cvt_pk_bf16_f32 v{O}, v{U}, v{U+1}', f'v_cvt_pk_bf16_f32 v{O+1}, v{U+2}, v{U+3}']
        return L
    def hstore(self, regs, t, istep, key):
        return [f's_add_u32 s{s_t3}, s{s_xo}, {t*73728 + istep*1024}',
                ('dma', f'buffer_store_dwordx4 {vr(regs,4)}, v{v_l16}, {srd(sWS)}, s{s_t3} offen sc1', key)]
    def ffn_epi(self, acc, istep, key):
        L = []
        for t in range(2):
            O = acc + t*4
            for tf in range(2):
                L += self.silu_batch(acc + (tf*2+t)*4, acc + ((2+tf)*2+t)*4, O + 2*tf, v_T + 4*tf)
            L += self.hstore(O, t, istep, (key, t))
        return L
    def kv_epi(self):
        L = []
        K = lambda hh, t: ACC0 + 16 + (hh*2+t)*4
        V = lambda hh, t: ACC0 + (hh*2+t)*4
        pk = lambda d, s: [f'v_cvt_pk_bf16_f32 v{d}, v{s}, v{s+1}', f'v_cvt_pk_bf16_f32 v{d+1}, v{s+2}, v{s+3}']
        L += pk(v_KP, K(0,1)) + pk(v_KP+2, K(1,1))
        L += [('dma', f'buffer_store_dwordx4 {vr(v_KP,4)}, v{v_l16}, {srd(sWS)}, s{s_ha} offen sc1', ('halo', 0))]
        L += pk(v_T, V(0,1)) + pk(v_T+2, V(1,1))
        L += [('dma', f'buffer_store_dwordx4 {vr(v_T,4)}, v{v_l16}, {srd(sWS)}, s{s_ha} offen offset:1024 sc1', ('halo', 1))]
        L += pk(v_KP+4, K(0,0)) + pk(v_KP+6, K(1,0))
        L += pk(16, V(0,1)) + pk(18, V(0,0)) + pk(24, V(1,0)) + pk(26, V(1,1))
        return L
    def step(self, a, mf, reads, misc, valu, quota, endwait, barrier=True, lazy=False, xr=()):
        reads = list(reads); misc = list(misc); xr = list(xr)
        used = 0
        rp = [int(c) for c in str(self.opt.get('rp', 12111110))]
        vp = [int(c) for c in str(self.opt.get('vp', 1111111))]
        order = [0, 2, 4, 1, 3, 5, 6]
        slot = {g: [] for g in range(8)}
        for n, grp in enumerate(misc): slot[sorted(order[:len(misc)])[n] if len(misc) <= 7 else min(n, 6)].append(grp)
        toks = []
        for k, m in enumerate(mf):
            a(m)
            for _ in range(rp[k]):
                if reads: self.do(a, reads.pop(0)); toks.append(a.nid)
            if k in (4, 5):
                while xr:
                    it = xr.pop(0); self.do(a, it)
                    if not isinstance(it, str): break
            for grp in slot[k]:
                for it in grp: self.do(a, it)
            if k < 7:
                lim = quota*sum(vp[:k+1])/sum(vp)
                while valu and used + self.weight(valu[0]) <= lim + 0.01:
                    it = valu.pop(0); used += self.weight(it); self.do(a, it)
            if lazy and k == 3: a.wait(lg_tok=self.prev_toks)
            if lazy and k == 6: a.wait(vm_tok=[self.tok[k_] for k_ in endwait if k_ in self.tok], lg_tok=toks[:4])
        assert not reads and not xr
        self.prev_toks = toks
        if not lazy: a.wait(vm_tok=[self.tok[k] for k in endwait if k in self.tok], lg0=True)
        if barrier:
            a.barrier()
            if self.opt.get('xbar'): a.out.pop()
    def p1(self, a, typ):
        self.wstep = [32*(3072 if typ == 'A' else 3584), 32*3584, 32*(3072 if typ == 'A' else 3584)]
        if typ == 'A': a(f'v_mov_b32 v{v_wv2}, v{v_wv0}')
        a(f's_and_b32 s{s_t0}, s{s_ty}, 1'); a(f's_lshl_b32 s{s_t0}, s{s_t0}, 1'); a(f's_add_u32 s{s_t0}, s{s_t0}, s{s_c}'); a(f's_lshl_b32 s{s_t0}, s{s_t0}, 10')
        a(f's_add_u32 s{s_xo}, s{s_hst}, s{s_t0}')
        for x in self.wreads(0, typ) + self.xreads(0) + self.xreads(1): self.do(a, x)
        a.wait(vm_tok=[self.tok[('W', 1)]], lg0=True); a.barrier()
        valu = []
        nb = 0; self.prev_toks = []
        for p in range(4):
            valu += [f's_add_u32 s22, s{s_rb64}, {p}', f's_and_b32 s22, s22, {3 if self.opt.get("brot", 1) else 0}'] + ([] if self.opt.get("brot", 1) else [f's_mov_b32 s22, {p}'])
            valu += [f's_lshr_b32 s23, s22, 1', f's_and_b32 s22, s22, 1',
                     f's_lshl_b32 s{s_bg+p}, s23, 15', f's_lshl_b32 s{s_bl+p}, s23, 14', f's_lshl_b32 s23, s22, 13', f's_lshl_b32 s22, s22, 10',
                     f's_add_u32 s{s_bg+p}, s{s_bg+p}, s23', f's_add_u32 s{s_bl+p}, s{s_bl+p}, s22',
                     f's_add_u32 s{s_bg+p}, s{s_bg+p}, s{s_b2}', f's_add_u32 s{s_bl+p}, s{s_bl+p}, s{s_bm}']
        lazy = self.opt.get('lazy', 1)
        D = RING - lazy
        for s in range(40):
            misc = []; reads = []
            if s < 39: reads += self.wreads(s+1, typ)
            xr = self.xreads(s+2) if s + 2 < 16 else []
            if s == 0: misc += [self.wdma(a, k) for k in range(4, D)]
            if s + D < 40: misc.append(self.wdma(a, s + D))
            if s >= 5 and s % 2 == 1 and nb < 14: misc.append(self.bdma_rot(nb)); nb += 1
            if s == 8: misc.append([lambda a: self.poll_issue(a, v_P, v_pl, sDBG, 0)])
            if s == 13: misc.append([lambda a: self.poll_check(a, v_P, v_pl, sDBG, 0, 0xffff)])
            quota = 16
            if s == 16:
                valu += self.kv_epi() if typ == 'A' else self.ffn_epi(ACC0, 0, 'h0')
            if 16 <= s < 32: quota = self.opt.get('q1', 17)
            if typ == 'A' and s == 21: misc.append([lambda a: a.wait(vm_tok=self.tok[('halo', 1)]), lambda a: self.flag(a, 3)])
            if typ == 'B' and s == self.opt.get('f0', 28): misc.append([lambda a: a.wait(vm_tok=self.tok[('h0', 1)]), lambda a: self.flag(a, 0)])
            if s == 32:
                assert not valu
                valu += self.ffn_epi(ACC1, 8 if typ == 'A' else 4, 'h1')
                self.dstamp(a, 3)
            if s == 16: self.dstamp(a, 2)
            if s >= 32: quota = 17
            if typ == 'A' and s == 25: misc.append([lambda a: self.poll_issue(a, v_P, v_pl, sWS, f's{s_hl}')])
            if typ == 'A' and s == 30:
                misc.append([lambda a: self.poll_check(a, v_P, v_pl, sWS, f's{s_hl}', f's{s_hms}'),
                             f's_cmp_eq_u32 s{s_hms}, 0', f's_cselect_b32 s{s_t1}, {OOB}, s{s_ha}', f's_sub_u32 s{s_t1}, s{s_t1}, 32768',
                             f'buffer_load_dwordx4 {vr(28,4)}, v{v_l16}, {srd(sWS)}, s{s_t1} offen sc1',
                             f'buffer_load_dwordx4 {vr(20,4)}, v{v_l16}, {srd(sWS)}, s{s_t1} offen offset:1024 sc1'])
            p0 = self.opt.get('p0', 33)
            if s == p0 - 1: misc.append([lambda a: self.poll_issue(a, v_P, v_pl, sWS, f's{s_pl}')])
            if s == p0 + 3: misc.append([lambda a: self.poll_check(a, v_P, v_pl, sWS, f's{s_pl}', 0xf0)])
            if p0 + 3 <= s < p0 + 7: misc += [self.aload(2*(s-p0-3)), self.aload(2*(s-p0-3)+1)]
            if s - lazy in (35, 36): misc.append(self.bdma(7, s-lazy-35))
            if s - lazy in (37, 38): misc.append(self.bdma(8, s-lazy-37))
            if s - lazy == 39: misc += [self.bdma(9, 0), self.bdma(9, 1)]
            if self.opt.get('fine', 0) & 1 and s > 4: self.fstamp(a, s)
            self.step(a, self.mfmas(s, typ), reads, misc, valu, quota, [('W', s+2)], barrier=(s < 39 or lazy), lazy=lazy, xr=xr)
        for it in valu: self.do(a, it)
        if lazy:
            for n in range(2):
                for it in self.bdma(9, n): self.do(a, it)
        self.dstamp(a, 4)
    def half_epi(self, a):
        X = WF
        for t in range(2):
            for x in self.silu_batch(ACC0 + t*4, ACC0 + (2+t)*4, X + 2*t, v_T + 4*t): a(x)
            if t == 0:
                a.wait(vm_tok=self.tok[('h1', 1)]); self.flag(a, 1)
        a(f'v_permlane32_swap_b32 v{X}, v{X+2}'); a(f'v_permlane32_swap_b32 v{X+1}, v{X+3}')
        a(f'v_lshrrev_b32 v{v_T}, 5, v{v_hv}'); a(f'v_mul_u32_u24 v{v_T}, {73728-512}, v{v_T}'); a(f'v_add_u32 v{v_T}, v{v_T}, v{v_l16}')
        a(f's_and_b32 s{s_t0}, s{s_ty}, 1'); a(f's_lshl_b32 s{s_t0}, s{s_t0}, 1'); a(f's_add_u32 s{s_t0}, s{s_t0}, s{s_c}'); a(f's_lshl_b32 s{s_t0}, s{s_t0}, 9')
        a(f's_add_u32 s{s_t0}, s{s_t0}, s{s_hst}'); a(f's_add_u32 s{s_t0}, s{s_t0}, {12*1024}')
        self.tok['fin'] = a(f'buffer_store_dwordx4 {vr(X,4)}, v{v_T}, {srd(sWS)}, s{s_t0} offen sc1')
    def attention(self, a):
        cur = [0]*4; prv = [0]*4
        for l in range(64):
            t, g = l & 15, l >> 4
            for r in range(4):
                i = 4*g + r
                if (i ^ t) & 1: continue
                if i <= t: cur[r] |= 1 << l
                else: prv[r] |= 1 << l
        sm = lambda k: f's[{s_m+2*k}:{s_m+2*k+1}]'
        def setm(k, m): a(f's_mov_b32 s{s_m+2*k}, {hex(m & 0xffffffff)}'); a(f's_mov_b32 s{s_m+2*k+1}, {hex(m >> 32)}')
        for r in range(4): setm(r, cur[r]); setm(4+r, prv[r])
        setm(8, cur[0] | cur[1]); setm(9, cur[2] | cur[3])
        Mc, Mp, Mp0, Ac, Ap, ONES, NEG, HM = WF, WF+4, WF+8, WF+12, WF+14, WF+16, WF+20, WF+21
        a(f'v_mov_b32 v{NEG}, {hex(f2u(-1e30))}')
        for r in range(4): a(f'v_cndmask_b32 v{Mc+r}, v{NEG}, 0, {sm(r)}')
        for r in range(4): a(f'v_cndmask_b32 v{Mp+r}, v{NEG}, 0, {sm(4+r)}')
        a(f's_cmp_eq_u32 s{s_hms}, 0'); a(f's_cselect_b64 {sm(0)}, 0, -1')
        for r in range(4): a(f'v_cndmask_b32 v{Mp0+r}, v{NEG}, v{Mp+r}, {sm(0)}')
        Qa = lambda hh, t: ACC0 + (hh*2+t)*4
        units = [(0,0),(1,0),(0,1),(1,1)]
        for hh, t in units:
            q = Qa(hh, t); a(f'v_cvt_pk_bf16_f32 v{q}, v{q}, v{q+1}'); a(f'v_cvt_pk_bf16_f32 v{q+1}, v{q+2}, v{q+3}')
        Kc = lambda hh, t: v_KP + (4 if t == 0 else 0) + 2*hh
        Kp = lambda hh, t: 28 + 2*hh if t == 0 else Kc(hh, 0)
        Sg = lambda u: ACC1 + 8*u
        for u, (hh, t) in enumerate(units):
            a(f'v_mfma_f32_16x16x16_bf16 {vr(Sg(u)+4,4)}, {vr(Kc(hh,t),2)}, {vr(Qa(hh,t),2)}, {vr(Mc,4)}')
        for u, (hh, t) in reversed(list(enumerate(units))):
            a(f'v_mfma_f32_16x16x16_bf16 {vr(Sg(u),4)}, {vr(Kp(hh,t),2)}, {vr(Qa(hh,t),2)}, {vr(Mp0 if t == 0 else Mp,4)}')
        a.wait(vm_tok=self.tok[('h1', 1)]); self.flag(a, 1)
        a(f's_mov_b32 s{s_m+2}, 0xaaaaaaaa'); a(f's_mov_b32 s{s_m+3}, 0xaaaaaaaa')
        a(f'v_mov_b32 v{HM}, 0xffff'); a(f'v_mov_b32 v{NEG}, 0xffff0000'); a(f'v_cndmask_b32 v{HM}, v{HM}, v{NEG}, {sm(1)}')
        for d in range(2): a(f'v_cndmask_b32 v{Ac+d}, 0, v{HM}, {sm(8+d)}')
        for d in range(2): a(f'v_xor_b32 v{Ap+d}, v{HM}, v{Ac+d}')
        for i in range(4): a(f'v_mov_b32 v{ONES+i}, 0x3f803f80')
        m = [v_T+u for u in range(4)]
        for u in (3, 2, 1, 0):
            S = Sg(u)
            a(f'v_max3_f32 v{S}, v{S}, v{S+1}, v{S+4}'); a(f'v_max3_f32 v{S+2}, v{S+2}, v{S+3}, v{S+6}')
            a(f'v_max_f32 v{S}, v{S}, v{S+5}'); a(f'v_max_f32 v{S+2}, v{S+2}, v{S+7}')
            a(f'v_max_f32 v{m[u]}, v{S}, v{S+2}')
        c = 0.25*LOG2E
        a(f's_mov_b32 s{s_t0}, {hex(f2u(c))}')
        a(f'v_permlane32_swap_b32 v{m[2]}, v{m[3]}'); a(f'v_permlane32_swap_b32 v{m[0]}, v{m[1]}')
        a(f'v_max_f32 v{m[2]}, v{m[2]}, v{m[3]}'); a(f'v_max_f32 v{m[0]}, v{m[0]}, v{m[1]}')
        a(f'v_permlane16_swap_b32 v{m[0]}, v{m[2]}')
        a(f'v_max_f32 v{m[0]}, v{m[0]}, v{m[2]}')
        a(f'v_mul_f32 v{m[2]}, s{s_t0}, v{m[0]}'); a(f'v_mul_f32 v{m[0]}, s{s_t0}, v{m[0]}')
        a(f'v_permlane16_swap_b32 v{m[0]}, v{m[2]}')
        a(f'v_mov_b32 v{m[1]}, v{m[0]}'); a(f'v_mov_b32 v{m[3]}, v{m[2]}')
        a(f'v_permlane32_swap_b32 v{m[0]}, v{m[1]}'); a(f'v_permlane32_swap_b32 v{m[2]}, v{m[3]}')
        for u in range(4):
            S = Sg(u)
            a(f'v_fma_f32 v{S}, v{S}, s{s_t0}, -v{m[u]}'); a(f'v_fma_f32 v{S+2}, v{S+2}, s{s_t0}, -v{m[u]}')
        for u in range(4):
            S = Sg(u); a(f'v_exp_f32 v{S}, v{S}'); a(f'v_exp_f32 v{S+2}, v{S+2}')
        Vw = {(0,0): 18, (0,1): 16, (1,0): 22, (1,1): 24}
        for u, (hh, t) in enumerate(units):
            S = Sg(u); P = S + 4
            a(f'v_cvt_pk_bf16_f32 v{S}, v{S}, v{S}'); a(f'v_cvt_pk_bf16_f32 v{S+2}, v{S+2}, v{S+2}')
            first, second = (Ac, Ap) if hh == 0 else (Ap, Ac)
            a(f'v_and_b32 v{P}, v{first}, v{S}'); a(f'v_and_b32 v{P+1}, v{first+1}, v{S+2}')
            a(f'v_and_b32 v{P+2}, v{second}, v{S}'); a(f'v_and_b32 v{P+3}, v{second+1}, v{S+2}')
        for u, (hh, t) in enumerate(units):
            S = Sg(u); P = S + 4
            a(f'v_mfma_f32_16x16x32_bf16 {vr(S,4)}, {vr(ONES,4)}, {vr(P,4)}, 0')
            a(f'v_mfma_f32_16x16x32_bf16 {vr(Qa(hh,t),4)}, {vr(Vw[(hh,t)],4)}, {vr(P,4)}, 0')
        for u in range(4): a(f'v_rcp_f32 v{Sg(u)}, v{Sg(u)}')
        for t in range(2):
            O = WF + 24 + 4*t
            for hh in range(2):
                u = units.index((hh, t)); q = Qa(hh, t)
                for r in range(4): a(f'v_mul_f32 v{q+r}, v{q+r}, v{Sg(u)}')
                a(f'v_cvt_pk_bf16_f32 v{O+2*hh}, v{q}, v{q+1}'); a(f'v_cvt_pk_bf16_f32 v{O+2*hh+1}, v{q+2}, v{q+3}')
            for it in self.hstore(O, t, 14, 'fin'): self.do(a, it)
    def breads(self, i):
        buf = WF + (i & 1)*16; L = []
        base = bslot(i)
        if not (0 <= base - self.bwin and base - self.bwin + 16384 <= 65536):
            d = (base - self.bwin) & 0xffffffff
            L += [f'v_add_u32 v{v_KP+ct}, {hex(d)}, v{v_KP+ct}' for ct in range(4)]
            self.bwin = base
        for ct in range(4):
            for rd in range(2): L.append(('rd', f'ds_read_b64_tr_b16 {vr(buf+4*ct+2*rd,2)}, v{v_KP+ct} offset:{base - self.bwin + rd*2048}', ('B', i)))
        return L
    def p3(self, a):
        lane = v_hv; T0, T1, T2, T3 = v_T+4, v_T+5, v_T+6, v_T+7
        o = self.opt
        self.bwin = bslot(0)
        a(f'v_lshrrev_b32 v{T0}, 2, v{lane}'); a(f'v_lshlrev_b32 v{T0}, 7, v{T0}'); a(f'v_and_b32 v{T1}, 3, v{lane}'); a(f'v_lshl_add_u32 v{T0}, v{T1}, 3, v{T0}')
        a(f'v_bfe_u32 v{T1}, v{lane}, 3, 2'); a(f'v_lshl_add_u32 v{T0}, v{T1}, 5, v{T0}'); a(f's_lshl_b32 s{s_t0}, s{s_r}, 12'); a(f's_add_u32 s{s_t0}, s{s_t0}, {self.bwin}')
        a(f'v_add_u32 v{v_KP}, s{s_t0}, v{T0}')
        for ct in (1, 2, 3): a(f'v_xor_b32 v{v_KP+ct}, {ct*32}, v{v_KP}')
        for x in self.breads(0): self.do(a, x)
        a.wait(lg0=True); a.barrier()
        self.dstamp(a, 5)
        XR = ACC0
        f2 = o.get('f2', 1); q1 = o.get('pq1', 0); c1 = o.get('c1', 2); q2 = o.get('pq2', 6); c2 = o.get('c2', 9); look = o.get('look', 2)
        lz = o.get('lazy3', 1)
        na = 8; nbb = 10; self.prev_toks = []
        for i in range(18):
            misc = []; reads = self.breads(i+1) if i < 17 else []
            if o.get('fine', 0) & 2: self.fstamp(a, 40 + i)
            pre = [x for x in reads if isinstance(x, str)]; reads = reads[len(pre):]
            for x in pre: a(x)
            if i == f2: misc.append([lambda a: a.wait(vm_tok=self.tok['fin']), lambda a: self.flag(a, 2)])
            if i in (q1, q2): misc.append([f's_add_u32 s{s_pl}, s{s_pl}, 128', lambda a: self.poll_issue(a, v_P, v_pl, sWS, f's{s_pl}')])
            if i in (c1, c2):
                misc.append([lambda a: self.poll_check(a, v_P, v_pl, sWS, f's{s_pl}', 0xff), lambda a, i=i: self.dstamp(a, 6 if i == c1 else 7)])
            lim = 8 if i < c1 else (24 if i < c2 else 36)
            while na < min(lim, 2*(i + look) + 2):
                misc.append(self.aload(na) + self.aload(na+1)); na += 2
            nbmax = 1
            while nbb < 18 and nbmax and (nbb - 10 + lz <= i or nbb == 10) and (nbb < 14 or i >= nbb - o.get('blook', 6)):
                misc.append(self.bdma(nbb, 0) + self.bdma(nbb, 1)); nbb += 1; nbmax -= 1
            if i == 14:
                misc.append([f'v_lshrrev_b32 v{T0}, 3, v{lane}', f'v_and_b32 v{T1}, 7, v{lane}', f'v_lshlrev_b32 v{T1}, 4, v{T1}', f'v_lshl_add_u32 v{v_xe}, v{T0}, 10, v{T1}',
                             f's_lshl_b32 s{s_wo0}, s{s_rb64}, 16', f's_lshl_b32 s{s_t0}, s{s_ct}, 7', f's_add_u32 s{s_wo0}, s{s_wo0}, s{s_t0}',
                             f's_lshl_b32 s{s_t0}, s{s_w}, 13', f's_add_u32 s{s_wo0}, s{s_wo0}, s{s_t0}',
                             f'buffer_load_dwordx4 {vr(XR,4)}, v{v_xe}, {srd(sX)}, s{s_wo0} offen'])
            assert ('A', 2*i+1) in self.tok
            buf = WF + (i & 1)*16; mf = []
            for ct in range(4):
                for t in range(2):
                    acc = ACC1 + (ct*2+t)*4; n = 2*i + t
                    mf.append(f'v_mfma_f32_16x16x32_bf16 {vr(acc,4)}, {vr(buf+4*ct,4)}, {ar((n % 32)*4,4)}, {0 if i == 0 else vr(acc,4)}')
            self.step(a, mf, reads, misc, [], 0, [('B', i+2, 0), ('B', i+2, 1), ('A', 2*i+2), ('A', 2*i+3)], barrier=(i < 17), lazy=lz)
        self.dstamp(a, 8)
        SCR = 49152
        a(f'v_and_b32 v{T0}, 15, v{lane}'); a(f'v_lshrrev_b32 v{T1}, 4, v{lane}'); a(f'v_and_b32 v{T2}, 7, v{lane}'); a(f'v_xor_b32 v{T1}, v{T1}, v{T2}')
        a(f'v_lshlrev_b32 v{T1}, 4, v{T1}'); a(f'v_lshl_add_u32 v{T0}, v{T0}, 8, v{T1}')
        a(f's_lshl_b32 s{s_t0}, s{s_r}, 14'); a(f's_lshl_b32 s{s_t1}, s{s_c}, 13'); a(f's_add_u32 s{s_t0}, s{s_t0}, s{s_t1}'); a(f's_add_u32 s{s_t0}, s{s_t0}, {SCR}')
        a(f'v_add_u32 v{v_KP}, s{s_t0}, v{T0}'); a(f'v_xor_b32 v{v_KP+1}, 64, v{v_KP}')
        for ct in range(4):
            for t in range(2):
                a(f'ds_write_b128 v{v_KP + (ct & 1)}, {vr(ACC1 + (ct*2+t)*4, 4)} offset:{t*4096 + (ct >> 1)*128}')
        a(f'v_lshrrev_b32 v{T0}, 3, v{lane}'); a(f'v_lshlrev_b32 v{T1}, 1, v{T2}'); a(f'v_xor_b32 v{T1}, v{T1}, v{T0}'); a(f'v_lshlrev_b32 v{T1}, 4, v{T1}')
        a(f'v_lshl_add_u32 v{T0}, v{T0}, 8, v{T1}'); a(f's_lshl_b32 s{s_t0}, s{s_w}, 11'); a(f's_add_u32 s{s_t0}, s{s_t0}, {SCR}')
        a(f'v_add_u32 v{v_KP+2}, s{s_t0}, v{T0}'); a(f'v_xor_b32 v{v_KP+3}, 16, v{v_KP+2}')
        R = 8
        for j in range(4):
            a(f'v_lshlrev_b32 v{R+2*j}, 16, v{XR+j}'); a(f'v_and_b32 v{R+2*j+1}, 0xffff0000, v{XR+j}')
        a.wait(lg0=True); a.barrier()
        for k in range(4):
            for hf in range(2): a(f'ds_read_b128 {vr(WF+8*k+4*hf,4)}, v{v_KP+2+hf} offset:{k*16384}')
        for k in range(4):
            for j in range(8): a(f'v_add_f32 v{R+j}, v{R+j}, v{WF+8*k+j}')
        for j in range(4): a(f'v_cvt_pk_bf16_f32 v{XR+j}, v{R+2*j}, v{R+2*j+1}')
        a(f'buffer_store_dwordx4 {vr(XR,4)}, v{v_xe}, {srd(sOUT)}, s{s_wo0} offen')
    def finish(self, a):
        if self.diag:
            a.wait(vm0=True)
            a(f's_memtime s[{s_st}:{s_st+1}]'); a(f's_memrealtime s[{s_m}:{s_m+1}]'); a.wait(lg0=True)
            a(f's_lshl_b32 s{s_t0}, s2, 3'); a(f's_add_u32 s{s_t0}, s{s_t0}, s{s_w}'); a(f's_lshl_b32 s{s_t0}, s{s_t0}, 6'); a(f's_add_u32 s{s_t0}, s{s_t0}, {STAMP}')
            regs = [0] + [s_st+2+i for i in range(8)] + [1, 1] + [s_st, 3, s_m]
            for i, s in enumerate(regs):
                a(f'v_mov_b32 v0, s{s}'); a(f'buffer_store_dword v0, v{v_fl}, {srd(sWS)}, s{s_t0} offen offset:{4*i}')
            if self.opt.get('fine'):
                a(f's_lshl_b32 s{s_t0}, s2, 3'); a(f's_add_u32 s{s_t0}, s{s_t0}, s{s_w}'); a(f's_lshl_b32 s{s_t0}, s{s_t0}, 8'); a(f's_add_u32 s{s_t0}, s{s_t0}, {STAMP+0x40000}')
                a(f'v_lshrrev_b32 v0, 2, v{v_l16}'); a(f'buffer_store_dword v{v_P2}, v0, {srd(sWS)}, s{s_t0} offen')
            if 'enc' in self.opt:
                i = self.opt['enc']; self.nlab += 1; n = self.nlab
                if i < 0: a(f's_mov_b32 s{s_t1}, 0')
                elif i == 9: a(f's_sub_u32 s{s_t1}, s{s_m}, s3')
                else: a(f's_lshr_b32 s{s_t1}, s{s_st+2+i if i < 8 else 1}, 16')
                a(f's_add_u32 s{s_t1}, s{s_t1}, 4000')
                if 'encwg' in self.opt:
                    a(f's_cmp_eq_u32 s2, {self.opt["encwg"]}'); a(f's_cselect_b32 s{s_t1}, s{s_t1}, 0')
                a.label(f'L_enc{n}')
                a(f's_memrealtime s[{s_st}:{s_st+1}]'); a.wait(lg0=True)
                a(f's_sub_u32 s{s_st}, s{s_st}, s3'); a(f's_cmp_lt_u32 s{s_st}, s{s_t1}'); a(f's_cbranch_scc1 L_enc{n}')
        a('s_endpgm')
    def build(self):
        self.tok = {}; self.lds_key = {4+k: ('X', k) for k in range(16)}; self.lds_rd = {4+k: [] for k in range(16)}; self.lds_wr = {4+k: [] for k in range(16)}
        a = Asm()
        self.prologue(a)
        a(f's_cmp_ge_u32 s{s_ty}, 2'); a('s_cbranch_scc1 L_typeB')
        parts = [a]
        import copy
        base = copy.deepcopy((self.tok, self.lds_key, self.lds_rd, self.lds_wr))
        for typ in 'AB':
            b = a.fork(); self.tok, self.lds_key, self.lds_rd, self.lds_wr = copy.deepcopy(base)
            if typ == 'B': b.raw('.p2align 6'); b.label('L_typeB')
            self.p1(b, typ)
            if typ == 'A': self.attention(b)
            else: self.half_epi(b)
            self.p3(b)
            self.finish(b)
            parts.append(b)
        hdr = open('parallel_sum__sliding_local_dilated__glu_gated_swiglu__prompt.s.ref').read().split('\n')
        H = [l for l in hdr if l.startswith(';') and '@launch' not in l]
        H.append('; @launch grid=(256,1,1) block=(512,1,1) lds=163840')
        H += ['.amdgcn_target "amdgcn-amd-amdhsa--gfx950"', '.text', f'.globl {KN}', '.p2align 8', f'.type {KN},@function', f'{KN}:']
        T = ['L_end:', '    s_endpgm'] + self.slow + ['L_codeend:']
        T += ['.section .rodata,"a"', '.p2align 6', f'.amdhsa_kernel {KN}', '  .amdhsa_next_free_vgpr 256', '  .amdhsa_next_free_sgpr 102',
              '  .amdhsa_accum_offset 128', '  .amdhsa_group_segment_fixed_size 0', '  .amdhsa_kernarg_size 80', '  .amdhsa_user_sgpr_count 2',
              '  .amdhsa_user_sgpr_kernarg_segment_ptr 1', '  .amdhsa_system_sgpr_workgroup_id_x 1', '.end_amdhsa_kernel']
        sys.stderr.write('instr: ' + ' '.join(f'{p.ninst}(+{p.nnop} nops)' for p in parts) + '\n')
        return '\n'.join(H) + '\n' + ''.join(p.text() for p in parts) + '\n'.join(T) + '\n'

if __name__ == '__main__':
    out = sys.argv[1]; diag = 'diag' in sys.argv[2:]
    opt = {k: int(v) for k, v in (x.split('=') for x in sys.argv[2:] if '=' in x)}
    g = Gen(diag=diag, opt=opt)
    open(out, 'w').write(g.build())
```

```python
import sys, struct, math, copy
from asmlib import Asm, Ins

KN = 'parallel_sum__sliding_local_dilated__glu_gated_swiglu__prompt_kernel'
def f2u(x): return struct.unpack('<I', struct.pack('<f', x))[0]

HALO = 0xA00000; FLAGS = 0xC00000; STAMP = 0xD00000; WSSZ = 0xE00000
OOB = 0x40000000
LOG2E = 1.4426950408889634
FV = 64

sX, sWF, sWQ, sB2, sBo, sWS, sDBG, sOUT = 24, 28, 32, 36, 40, 44, 48, 52
TAB = 56
REC = ['wo0', 'wo1', 'wo2', 'wm', 'bm', 'b2', 'b2h', 'bo', 'hst', 'hs2', 'fl', 'pl', 'hl', 'hms', 'ha', 'al', 'oo',
       'bg0', 'bg1', 'bg2', 'bg3', 'bl0', 'bl1', 'bl2', 'bl3', 'wa', 'wb', 'lead', 'dbg', 'pf2', 'pfo', 'red']
(s_wo0, s_wo1, s_wo2, s_wm, s_bm, s_b2, s_b2h, s_bo, s_hst, s_hs2, s_fl, s_pl, s_hl, s_hms, s_ha, s_al, s_oo,
 s_bg, _, _, _, s_bl, _, _, _, s_wa, s_wb, s_lead, s_dbg, s_pf2, s_pfo, s_red) = range(TAB, TAB+32)
s_w, s_r, s_c, s_ty, s_t0, s_t1, s_t2, s_t3, s_rot, s_wt, s_xo, s_xm = 4, 5, 6, 7, 8, 9, 10, 11, 13, 14, 15, 16
s_cnt = 7; s_xa = 17; s_nl2e = 21
s_pc = 18
s_m = 72
s_st = 90
CTS = int(([x.split('=')[1] for x in sys.argv if x.startswith('cts=')] + [2])[0])
def record(wg, w):
    xcd, j = wg & 7, wg >> 3
    kp, ty, rb, rb64, ct = xcd & 3, j & 3, (xcd >> 2)*8 + (j >> 2), xcd*4 + (j >> 3), (j + CTS) & 7
    r, c = w >> 1, w & 1; A = ty < 2; R = {}
    R['wo0'] = (896*kp + 128*(2 + ty if A else ty - 2), r*8*3584)
    R['wo1'] = (128*(2*kp+ty) + 1024, r*8*3072 + c*1024) if A else (R['wo0'][0] + 512, R['wo0'][1])
    R['wo2'] = (128*(2*kp+ty), r*8*3072 + c*32*3072) if A else (896*kp + 768 + 64*(ty-2), r*16*3584)
    R['wm'] = (0, c*4096 + r*1024); R['bm'] = (0, w*2048)
    R['b2'] = (ct*128, r*448*1024 + c*16384); R['b2h'] = (ct*128, r*448*1024 + c*8192); R['bo'] = (ct*128, r*128*1024 + c*16384)
    h = 4*rb*2*73728 + kp*18*1024
    R['hst'] = (h + (ty & 1)*2048, r*2*73728 + c*1024); R['hs2'] = (h + (ty & 1)*1024 + 12*1024, r*2*73728 + c*512)
    R['fl'] = (FLAGS - FV + (16*rb + kp)*512 + ty*8, r*2048 + c*4)
    R['pl'] = (FLAGS + 8*rb64*512, c*2048 + r*512)
    R['hl'] = (R['fl'][0] + FV - 2048 + 384, R['fl'][1])
    R['hms'] = (rb, r)
    R['ha'] = (HALO + (64*rb + 4*kp + 2*(ty & 1))*2048, (16*r + c)*2048)
    R['al'] = (2*rb64*2*73728, c*2*73728 + r*18*1024)
    R['oo'] = (rb64*65536 + ct*128, c*32768 + r*32)
    for p in range(4):
        q = (p + rb64) & 3
        R[f'bg{p}'] = ((q >> 1)*32768 + (q & 1)*8192 + R['b2'][0], R['b2'][1]); R[f'bl{p}'] = ((q >> 1)*16384 + (q & 1)*1024, w*2048)
    R['wa'] = (wg*8*896, w*896); R['wb'] = (wg*8*256, w*256)
    R['pf2'] = ((448*(j >> 3) + 192 + 32*(j & 7))*1024, w*4096); R['pfo'] = (j*16*1024, w*2048)
    lead = kp == 0 and ty == 0
    R['lead'] = (FLAGS + rb*8192 if lead else OOB, w*1024)
    R['dbg'] = (rb*4 if lead else OOB, 0 if w == 0 else 4096)
    R['red'] = (rb64*65536 + ct*128, w*8192)
    return [R[k] for k in REC]
def table():
    L = []
    for nm, wg0 in (('A', 0), ('B', 16)):
        L.append(f'.macro rec{nm} ' + ', '.join(f'p{i}' for i in range(32)))
        for w in range(8): L.append('.long ' + ', '.join(f'\\p{i}+{g}' for i, (f, g) in enumerate(record(wg0, w))))
        L.append('.endm')
    L += ['.p2align 7', '.type L_tab,@object', 'L_tab:']
    for wg in range(256): L.append(('recA ' if ((wg >> 3) & 3) < 2 else 'recB ') + ', '.join(str(f) for f, g in record(wg, 0)))
    L.append('.size L_tab, 262144')
    return L
def srd(b): return f's[{b}:{b+3}]'

ACC0, ACC1, WF = 0, 32, 64
v_l16, v_tr0, v_tr1, v_wf, v_wq, v_bv, v_fl, v_pl, v_P, v_b2, v_b3, v_P2, v_ST = range(96, 109)
v_KP = 112; v_T = 120
v_trh = v_KP
v_wh = v_wq
v_xe, v_xo, v_oa, v_rw = v_ST, v_ST+1, v_ST+2, v_ST+3
v_rr = v_pl
XF = 128
ACC3 = 224
NA = 24
def vr(b, n): return f'v[{b}:{b+n-1}]' if n > 1 else f'v{b}'

RING = 6
def bslot(i):
    i %= 10
    return 49152 + 16384*i if i < 7 else {7: 32768, 8: 0, 9: 16384}[i]
BSTEP = [('w2', 32*i, 1 if i >= 12 else 0) for i in range(14)] + [('wo', 32*i, 0) for i in range(4)]

class Gen:
    def __init__(self, diag=False, opt=None):
        self.diag = diag; self.opt = opt or {}
        self.slow = []; self.nlab = 0
    def o(self, k, d): return self.opt.get(k, d)
    def dstamp(self, a, i, force=False):
        if not self.diag: return
        if 'sa' in self.opt and i in (5, 6, 7) and not force: return
        a(f's_memtime s[{s_st}:{s_st+1}]'); a(f's_memrealtime s[100:101]'); a.wait(lg0=True)
        d = s_st+2+i if i < 8 else 1
        a(f's_sub_u32 s{s_st}, s{s_st}, s0'); a(f's_sub_u32 s100, s100, s3'); a(f's_pack_ll_b32_b16 s{d}, s{s_st}, s100')
    def fstamp(self, a, i):
        if not (self.diag and self.opt.get('fine')): return
        a(f's_memtime s[{s_st}:{s_st+1}]'); a.wait(lg0=True)
        a(f's_sub_u32 s{s_st}, s{s_st}, s0'); a.raw(f'    v_writelane_b32 v{v_P2}, s{s_st}, {i}')
    def poll_issue(self, sr, soff, off=0, va=None):
        if self.o('xp', 0) & 5: return []
        return [f'buffer_load_dword v{v_P}, v{v_P}, {srd(sr)}, {soff} offen offset:{off} sc1']
    def poll_check(self, sr, soff, off, mask, va=None):
        if self.o('xp', 0): return []
        idx = {(0, 0xff): 0, (128, 0xf0): 1, (256, 0xf0): 2, (256, 0x0f): 3}.get((off, mask), 4 if isinstance(mask, str) else 5)
        if self.o('xc', 0) >> idx & 1: return []
        if self.o('xm', 0) >> idx & 1: mask = 0
        def f(a):
            self.nlab += 1; n = self.nlab
            a(f'v_cmp_eq_u32 vcc, {FV}, v{v_P}')
            a(f's_and_b32 s{s_t0}, vcc_lo, {mask}'); a(f's_cmp_eq_u32 s{s_t0}, {mask}'); a(f's_cbranch_scc0 L_slow{n}')
            a.label(f'L_ok{n}')
            self.slow += [f'L_slow{n}:', f'    s_mov_b32 s{s_cnt}, 0', f'L_spin{n}:',
                 f'    v_bfe_u32 v{v_P}, v{v_l16}, 2, 6', f'    buffer_load_dword v{v_P}, v{v_P}, {srd(sr)}, {soff} offen offset:{off} sc1', '    s_waitcnt vmcnt(0)',
                 f'    v_cmp_eq_u32 vcc, {FV}, v{v_P}', '    s_nop 3', f'    s_and_b32 s{s_t0}, vcc_lo, {mask}', f'    s_cmp_eq_u32 s{s_t0}, {mask}',
                 f'    s_cbranch_scc1 L_ok{n}', f'    s_add_u32 s{s_cnt}, s{s_cnt}, 1', f'    s_cmp_lt_u32 s{s_cnt}, 0x8000',
                 f'    s_cbranch_scc1 L_spin{n}', f'    s_branch L_ok{n}']
        return [f]
    def spoll_issue(self, d, n, soff, off):
        op = {1: 'dword', 4: 'dwordx4', 8: 'dwordx8'}[n]; dst = f's[{d}:{d+n-1}]' if n > 1 else f's{d}'
        return [lambda a: a(f's_buffer_load_{op} {dst}, {srd(sWS)}, s{soff} offset:{off} glc', track=False)]
    def spoll_check(self, d, n, soff, line, mask, extra=None):
        def f(a):
            self.nlab += 1; k = self.nlab
            a.smem_pending = True; a.wait(lg0=True)
            if n == 8: a(f's_and_b64 s[{d}:{d+1}], s[{d}:{d+1}], s[{d+4}:{d+5}]'); a(f's_and_b64 s[{d+2}:{d+3}], s[{d+2}:{d+3}], s[{d+6}:{d+7}]')
            if n >= 4: a(f's_and_b64 s[{d}:{d+1}], s[{d}:{d+1}], s[{d+2}:{d+3}]'); a(f's_and_b32 s{d}, s{d}, s{d+1}')
            if extra: a(f's_cmp_eq_u32 s{extra}, 0'); a(f's_cselect_b32 s{d}, {FV}, s{d}')
            a(f's_cmp_eq_u32 s{d}, {FV}'); a(f's_cbranch_scc0 L_slow{k}')
            a.label(f'L_ok{k}')
            self.slow += [f'L_slow{k}:', f'    s_mov_b32 s{s_cnt}, 0', f'L_spin{k}:',
                 f'    v_bfe_u32 v{v_P}, v{v_l16}, 2, 6', f'    buffer_load_dword v{v_P}, v{v_P}, {srd(sWS)}, s{soff} offen offset:{line} sc1', '    s_waitcnt vmcnt(0)',
                 f'    v_cmp_eq_u32 vcc, {FV}, v{v_P}', '    s_nop 3', f'    s_and_b32 s{s_t0}, vcc_lo, {mask}', f'    s_cmp_eq_u32 s{s_t0}, {mask}',
                 f'    s_cbranch_scc1 L_ok{k}', f'    s_add_u32 s{s_cnt}, s{s_cnt}, 1', f'    s_cmp_lt_u32 s{s_cnt}, 0x8000',
                 f'    s_cbranch_scc1 L_spin{k}', f'    s_branch L_ok{k}']
        return [f]
    def flag(self, key, stage):
        if self.o('xp', 0) & 3: return []
        if self.o('xf', 0) >> stage & 1: return [f'buffer_store_dword v{v_fl}, v{v_fl}, {srd(sWS)}, s{s_fl} offen offset:{stage*128} sc1']
        return [lambda a: a.wait(vm_tok=self.tok[key]),
                f'buffer_store_dword v{v_fl}, v{v_fl}, {srd(sWS)}, s{s_fl} offen offset:{stage*128} sc1']
    def wsrc(self, slab):
        ch = 0 if slab < 16 else (1 if slab < 32 else 2)
        ffn = self.typ == 'B' or ch == 0
        vv = v_wf if ffn else v_wq
        if self.typ == 'B' and ch == 2: vv = v_wh
        return ch, (sWF if ffn else sWQ), vv, 32*(3584 if ffn else 3072)
    def wprep(self, slab):
        nb = self.o('rlb', 6)
        if slab % nb: return []
        return [[f'v_readlane_b32 s{self.wreg(k)}, v{v_b3}, {k}' for k in range(slab, min(slab + nb, 40))]]
    def wreg(self, slab):
        nb = self.o('rlb', 6)
        return s_wo0 + (slab & 1) if nb == 1 else [56, 57, 58, 12, 13, 88][slab % nb]
    def wdma(self, slab):
        ch, sr, vv, step = self.wsrc(slab)
        return [f's_add_u32 m0, s{s_wm}, {(slab % RING)*8192}',
                ('dma', f'buffer_load_dwordx4 v{vv}, {srd(sr)}, s{self.wreg(slab)} offen lds', ('W', slab))]
    def bdma(self, i, n):
        mat, ro, half = BSTEP[i]
        base = {('w2',0): s_b2, ('w2',1): s_b2h, ('wo',0): s_bo}[(mat, half)]
        off = ro*1024 + n*(16384 if half else 8192)
        if self.o('xb', 0): mat = 'w2'; base = s_b2; off = (i % 7)*32768 + n*8192
        return [f's_add_u32 m0, s{s_bm}, {bslot(i) + n*1024}', f's_add_u32 s{s_t1}, s{base}, {off}',
                ('dma', f'buffer_load_dwordx4 v{v_bv}, {srd(sB2 if mat == "w2" else sBo)}, s{s_t1} offen lds', ('B', i, n))]
    def bdma_rot(self, nb):
        G, p = nb >> 2, nb & 3
        if G == 3: return self.bdma(6, p)
        def claim(a):
            for i in (2*G, 2*G+1):
                for b in self.blocks(('B', i)):
                    for t in self.lds_rd.get(b, []): assert self.lds_key[b] == ('B', i) or a.done_at_barrier(t), ('WAR rot', nb)
        return [f's_add_u32 m0, s{s_bl+p}, {bslot(2*G)}', f's_add_u32 s{s_t1}, s{s_bg+p}, {BSTEP[2*G][1]*1024}', claim,
                ('dma', f'buffer_load_dwordx4 v{v_bv}, {srd(sB2)}, s{s_t1} offen lds', ('B', 2*G + (p >> 1), p & 1))]
    def aslot(self, n): return XF + (n % NA)*4
    def aload(self, n):
        i, t = n >> 1, n & 1
        def chk(a): assert not (set(range(self.aslot(n), self.aslot(n)+4)) & self.busy), ('A slot busy', n)
        if self.o('xa', 0) == 1: i = i & 1
        sc = '' if self.o('xa', 0) == 2 else ' sc1'
        return [f's_add_u32 s{s_t2}, s{s_al}, {t*73728 + i*1024}', chk,
                ('dma', f'buffer_load_dwordx4 {vr(self.aslot(n), 4)}, v{v_l16}, {srd(sWS)}, s{s_t2} offen{sc}', ('A', n))]
    def blocks(self, key):
        if not isinstance(key, tuple) or key[0] not in ('W', 'B', 'X'): return []
        if key[0] == 'W': return [key[1] % RING]
        if key[0] == 'X': return [4 + key[1]]
        return [bslot(key[1]) // 8192, bslot(key[1]) // 8192 + 1]
    def do(self, a, it):
        if isinstance(it, str): a(it)
        elif isinstance(it, list):
            for x in it: self.do(a, x)
        elif callable(it): it(a)
        elif it[0] == 'dma':
            key = it[2]; blocks = self.blocks(key)
            for b in blocks:
                if self.lds_key.get(b) != key[:2]:
                    for t in self.lds_rd.get(b, []): assert a.done_at_barrier(t), ('WAR on LDS', key, b)
                    self.lds_key[b] = key[:2]; self.lds_rd[b] = []; self.lds_wr[b] = []
            self.tok[key] = a(it[1].replace(' sc1', '') if self.o('xs', 0) and 'store' in it[1] else it[1])
            for b in blocks: self.lds_wr[b].append(self.tok[key])
        elif it[0] == 'rd':
            key = it[2]
            for b in self.blocks(key):
                assert self.lds_key.get(b) == key, ('stale LDS read', key, self.lds_key.get(b))
                assert key[0] == 'X' or len(self.lds_wr[b]) == (1 if key[0] == 'W' else 2), key
                for t in self.lds_wr[b]: assert a.done_at_barrier(t), ('RAW on LDS', key)
            t = a(it[1])
            for b in self.blocks(key): self.lds_rd[b].append(t)
        else: raise ValueError(it)
    def weight(self, it):
        if isinstance(it, list): return sum(self.weight(x) for x in it)
        if isinstance(it, str):
            op = it.split()[0].replace('_e32','').replace('_e64','')
            if op.startswith('s_'): return 0.5
            if op.startswith('v_mfma'): return 2
            if op.startswith('ds_'): return 5
            return 2 if op in ('v_exp_f32','v_rcp_f32','v_rsq_f32') else 1
        return 0 if callable(it) else 1
    def xreads(self, s):
        L = []; v = v_xo if s & 1 else v_xe
        pre = [f'v_add_u32 v{v}, 0x10000, v{v}'] if s in (8, 9) else []
        for t in range(2):
            it = ('rd', f'ds_read_b128 {vr(XF+(2*s+t)*4,4)}, v{v} offset:{(s & 7)*8192 + t*1024}', ('X', s))
            L.append(pre + [it] if t == 0 else [it])
        return L
    def prologue(self, a):
        o = self.o
        lane, g, c16, T0, T1, T2, vX, vW = 0, 1, 2, 3, 4, 5, v_oa, 8
        RX = XF + 64
        a(f's_load_dwordx2 s[{sX}:{sX+1}], s[0:1], 0')
        if self.diag: a(f's_memrealtime s[{s_st}:{s_st+1}]'); a(f's_memtime s[{s_st+2}:{s_st+3}]')
        a('s_cmp_ge_u32 s2, 256'); a('s_cbranch_scc1 L_end')
        vR = 7
        a(f's_getpc_b64 s[{sWQ}:{sWQ+1}]'); a.label('L_pc')
        a('v_lshrrev_b32 v1, 6, v0'); a(f'v_and_b32 v{T0}, 31, v0'); a(f'v_lshl_add_u32 v{T0}, v1, 5, v{T0}'); a(f'v_lshlrev_b32 v{T0}, 2, v{T0}')
        a(f's_mov_b32 s{sWQ+2}, L_tab+262144-L_pc'); a(f's_mov_b32 s{sWQ+3}, 0x20000')
        a(f's_lshl_b32 s{s_t1}, s2, 10'); a(f's_add_u32 s{s_t1}, s{s_t1}, L_tab-L_pc')
        a(f'buffer_load_dword v{vR}, v{T0}, {srd(sWQ)}, s{s_t1} offen')
        a(f'v_readfirstlane_b32 s{s_w}, v1')
        a(f'v_and_b32 v{T0}, 7, v0'); a(f'v_lshlrev_b32 v{T0}, 4, v{T0}'); a(f'v_bfe_u32 v{T1}, v0, 3, 3'); a(f'v_lshl_add_u32 v{vX}, v{T1}, 10, v{T0}')
        a(f's_bfe_u32 s{s_ty}, s2, 0x20003'); a(f's_lshr_b32 s{s_t2}, s2, 5')
        a(f's_and_b32 s{s_t0}, s2, 4'); a(f's_lshl1_add_u32 s{s_t0}, s{s_t0}, s{s_t2}')
        a(f's_lshl3_add_u32 s{s_xo}, s{s_t0}, s{s_w}'); a(f's_and_b32 s{s_xm}, s{s_ty}, 1'); a(f's_lshl1_add_u32 s{s_xo}, s{s_xo}, s{s_xm}'); a(f's_lshl_b32 s{s_xo}, s{s_xo}, 13')
        a(f's_lshl1_add_u32 s{s_t2}, s2, s{s_t2}'); a(f's_and_b32 s{s_t2}, s{s_t2}, 7')
        a(f's_lshl_b32 s{s_wt}, s{s_t2}, 7')
        a(f's_mov_b32 s{sX+2}, {2048*1024}'); a(f's_mov_b32 s{sX+3}, 0x20000')
        def xload(n):
            L = [f's_xor_b32 s{s_xo}, s{s_xo}, 8192'] if n == 8 else []
            if n: L += [f's_add_u32 s{s_wt}, s{s_wt}, 128', f's_and_b32 s{s_wt}, s{s_wt}, 1023']
            return L + [f's_add_u32 s{s_xa}, s{s_wt}, s{s_xo}', f'buffer_load_dwordx4 {vr(RX+4*n,4)}, v{vX}, {srd(sX)}, s{s_xa} offen']
        x0 = xload(0)
        self.do(a, x0[:-1]); a.wait(lg0=True); self.do(a, x0[-1])
        if self.diag: a(f's_mov_b32 s3, s{s_st}'); a(f's_mov_b32 s89, s{s_st+2}')
        n0 = o('x0', 4)
        for n in range(1, n0): self.do(a, xload(n))
        if o('cpf', 1):
            a(f's_mov_b32 s{sWQ+2}, L_codeend-L_pc')
            a(f's_lshr_b32 s{s_t0}, s2, 3'); a(f's_lshl_b32 s{s_t0}, s{s_t0}, 11')
            a(f'v_lshrrev_b32 v{T0}, 4, v0'); a(f'v_lshlrev_b32 v{T0}, 13, v{T0}'); a(f'v_add_lshl_u32 v{T0}, v{T0}, v0, 7')
            a(f'buffer_load_dword v{ACC1}, v{T0}, {srd(sWQ)}, s{s_t0} offen')
        a(f's_and_b32 s{s_c}, s{s_w}, 1'); a(f's_lshr_b32 s{s_r}, s{s_w}, 1'); a(f's_lshl_b32 s{s_rot}, s{s_t2}, 1')
        a(f's_lshl3_add_u32 s22, s{s_c}, s0'); a('s_addc_u32 s23, s1, 0')
        a(f's_load_dwordx2 s[{sWF}:{sWF+1}], s[22:23], 32')
        for d, off in ((sB2, 48), (sBo, 16), (sWS, 72), (sDBG, 64), (sWQ, 8), (sOUT, 56)): a(f's_load_dwordx2 s[{d}:{d+1}], s[0:1], {off}')
        for d, n in ((sWF, 512*3584), (sWQ, 512*3072), (sB2, 1792*1024), (sBo, 512*1024), (sWS, WSSZ), (sDBG, 256), (sOUT, 2048*1024)):
            a(f's_mov_b32 s{d+2}, {n}'); a(f's_mov_b32 s{d+3}, 0x20000')
        if o('lnprio', 1):
            a(f's_cmp_lt_u32 s{s_w}, 4'); a('s_cbranch_scc1 L_np'); a('s_setprio 1'); a.label('L_np')
        a('v_and_b32 v0, 63, v0')
        a(f'v_lshrrev_b32 v{g}, 4, v0'); a(f'v_and_b32 v{c16}, 15, v0'); a(f'v_lshlrev_b32 v{v_l16}, 4, v0')
        a(f's_lshl_b32 s{s_t0}, s{s_r}, 11'); a(f's_add_u32 s{s_t0}, s{s_t0}, 32768')
        a(f'v_xor_b32 v{T0}, v{c16}, v{g}'); a(f'v_lshl_add_u32 v{T0}, v{T0}, 4, s{s_t0}'); a(f'v_lshl_add_u32 v{v_xe}, v{g}, 8, v{T0}'); a(f'v_xor_b32 v{v_xo}, 64, v{v_xe}')
        M0r, M1r, ONE, WB, K512 = 16, 17, 18, 20, 22
        a(f's_lshl3_add_u32 s{s_t0}, s{s_w}, s{s_xm}'); a(f's_lshl_b32 s{s_t0}, s{s_t0}, 7'); a(f's_add_u32 s{s_t0}, s{s_t0}, 32768')
        a(f'v_xor_b32 v{T0}, v0, v{T1}'); a(f'v_and_b32 v{T0}, 7, v{T0}'); a(f'v_lshl_add_u32 v{T0}, v{T0}, 4, s{s_t0}')
        a(f'v_bfe_u32 v{T2}, v0, 2, 1'); a(f'v_lshl_add_u32 v{T0}, v{T2}, 13, v{T0}'); a(f'v_and_b32 v{T2}, 3, v0'); a(f'v_lshl_add_u32 v{WB}, v{T2}, 8, v{T0}'); a(f'v_add_u32 v{WB+1}, 0x10000, v{WB}')
        a(f'v_cmp_gt_u32 vcc, 2, v{T2}'); a(f'v_and_b32 v{T0}, 16, v{v_l16}'); a(f'v_mov_b32 v{T2}, 0xffff'); a(f'v_lshlrev_b32 v{T0}, v{T0}, v{T2}')
        a(f'v_cndmask_b32 v{M0r}, 0, v{T0}, vcc'); a(f'v_sub_u32 v{M1r}, v{T0}, v{M0r}')
        a(f'v_mov_b32 v{ONE}, 0xbb00bb00'); a(f'v_mov_b32 v{ONE+1}, 0xbb00bb00'); a(f'v_mov_b32 v{K512}, {hex(f2u(1/512))}')
        a(f'v_add_u32 v{T0}, 1, v0'); a(f'v_lshrrev_b32 v{T0}, 3, v{T0}'); a(f'v_lshlrev_b32 v{T0}, 17, v{T0}'); a(f'v_add_lshl_u32 v{vW}, v{T0}, v0, 7')
        a(f'v_lshrrev_b32 v{T0}, 1, v0'); a(f'v_lshl_add_u32 v{vW+1}, v{T0}, 24, v{vW}')
        for i in range(4): a(f'v_mov_b32 v{24+i}, 0')
        a(f'v_and_b32 v{T0}, 0x70, v{v_l16}'); a(f'v_lshlrev_b32 v{T2}, 5, v{g}'); a(f'v_xor_b32 v{v_bv}, v{T0}, v{T2}'); a(f'v_lshl_add_u32 v{v_bv}, v{T1}, 10, v{v_bv}')
        a(f's_and_b32 s{s_t0}, s{s_r}, 1'); a(f's_lshl_b32 s{s_t0}, s{s_t0}, 6')
        a(f'v_and_b32 v{T2}, 32, v{T2}'); a(f'v_xor_b32 v{T0}, v{T0}, v{T2}'); a(f'v_xor_b32 v{T0}, s{s_t0}, v{T0}')
        a(f's_movk_i32 s{s_t1}, 3584'); a(f's_movk_i32 s{s_t3}, 3072')
        a(f'v_mad_u32_u24 v{v_wf}, v{T1}, s{s_t1}, v{T0}'); a(f'v_mad_u32_u24 v{v_wq}, v{T1}, s{s_t3}, v{T0}')
        c8, row = vW+2, vW+3
        a(f'v_and_b32 v{c8}, 3, v0'); a(f'v_bfe_u32 v{row}, v0, 2, 2'); a(f'v_lshl_add_u32 v{row}, v{g}, 3, v{row}')
        a(f's_lshl_b32 s{s_t0}, s{s_c}, 1'); a(f'v_and_b32 v{T0}, 3, v{T1}'); a(f'v_xor_b32 v{T0}, s{s_t0}, v{T0}'); a(f'v_lshlrev_b32 v{T0}, 5, v{T0}')
        a(f'v_lshl_add_u32 v{T0}, v{c8}, 3, v{T0}'); a(f'v_lshl_add_u32 v{v_tr0}, v{row}, 7, v{T0}'); a(f'v_xor_b32 v{v_tr1}, 32, v{v_tr0}')
        a(f's_lshl_b32 s{s_t0}, s{s_c}, 5'); a(f'v_xor_b32 v{T0}, s{s_t0}, v{T2}'); a(f'v_lshl_add_u32 v{T0}, v{c8}, 3, v{T0}'); a(f'v_lshl_add_u32 v{v_trh}, v{row}, 6, v{T0}')
        a(f'v_and_b32 v{T0}, 32, v0'); a(f'v_lshlrev_b32 v{T2}, 4, v{c8}'); a(f'v_xor_b32 v{T0}, v{T0}, v{T2}'); a(f'v_lshrrev_b32 v{T2}, 2, v0')
        a(f's_cmp_ge_u32 s{s_ty}, 2'); a('s_cselect_b64 vcc, -1, 0')
        a(f'v_mad_u32_u24 v{T0}, v{T2}, s{s_t1}, v{T0}'); a(f'v_cndmask_b32 v{v_wq}, v{v_wq}, v{T0}, vcc')
        a(f'v_lshl_add_u32 v{v_fl}, v0, 25, {FV}')
        a(f'v_lshlrev_b32 v{v_P}, 2, v{c16}')
        a(f's_lshl_b32 s{s_t0}, s{s_r}, 12'); a(f's_add_u32 s{s_t0}, s{s_t0}, {bslot(0)}')
        a(f'v_and_b32 v{T0}, 3, v{T1}'); a(f'v_xor_b32 v{T0}, s{s_r}, v{T0}'); a(f'v_lshl_add_u32 v{T0}, v{T0}, 5, s{s_t0}'); a(f'v_lshl_add_u32 v{T0}, v{c8}, 3, v{T0}'); a(f'v_lshl_add_u32 v{v_b2}, v{T2}, 7, v{T0}')
        a(f's_lshl_b32 s{s_t0}, s{s_r}, 2'); a(f'v_and_b32 v{row}, 7, v0'); a(f'v_xor_b32 v{T0}, v{g}, v{row}'); a(f'v_xor_b32 v{T0}, s{s_t0}, v{T0}')
        a(f's_lshl_b32 s{s_t0}, s{s_w}, 13'); a(f'v_lshl_add_u32 v{T0}, v{T0}, 4, s{s_t0}'); a(f'v_lshl_add_u32 v{v_rw}, v{c16}, 8, v{T0}')
        a(f's_lshl_b32 s{s_t0}, s{s_w}, 11'); a(f's_add_u32 s{s_t0}, s{s_t0}, 49152')
        a(f'v_lshlrev_b32 v{T0}, 1, v{row}'); a(f'v_xor_b32 v{T0}, v{T0}, v{T1}'); a(f'v_lshl_add_u32 v{T0}, v{T0}, 4, s{s_t0}'); a(f'v_lshl_add_u32 v{v_rr}, v{T1}, 8, v{T0}')
        vO = v_b3
        a(f'v_cmp_lt_u32 vcc, 31, v0'); a(f'v_lshlrev_b32 v{T0}, 1, v0'); a(f'v_cndmask_b32 v{T0}, v0, v{T0}, vcc')
        a(f'v_add_u32 v{T0}, s{s_rot}, v{T0}'); a(f'v_and_b32 v{T0}, 15, v{T0}'); a(f'v_lshlrev_b32 v{T0}, 5, v{T0}')
        a(f's_cmp_lt_u32 s{s_ty}, 2'); a(f's_cselect_b32 s{s_t3}, s{s_t3}, s{s_t1}')
        a(f'v_cmp_lt_u32 s[20:21], 15, v0'); a(f'v_mov_b32 v{T2}, s{s_t1}'); a(f'v_mov_b32 v{c8}, s{s_t3}'); a(f'v_cndmask_b32 v{T2}, v{T2}, v{c8}, s[20:21]')
        a(f'v_mul_u32_u24 v{vO}, v{T0}, v{T2}')
        a(f'v_lshlrev_b32 v{T0}, 2, v{g}'); a.wait(lg0=True)
        a(f'ds_bpermute_b32 v{T2}, v{T0}, v{vR}')
        for i in range(3, 32): a(f'v_readlane_b32 s{TAB+i}, v{vR}, {i}')
        a(f'v_add_u32 v{vO}, v{vO}, v{T2}')
        self.do(a, ('dma', f'buffer_store_dwordx4 v[24:27], v{v_l16}, {srd(sWS)}, s{s_lead} offen sc1', 'zero'))
        a(f's_min_u32 s{s_hms}, s{s_hms}, 1')
        for k, m in enumerate((0x22222222, 0x44444444, 0x88888888)): a(f's_mov_b32 s{18+2*k}, {hex(m)}'); a(f's_mov_b32 s{19+2*k}, {hex(m)}')
        if self.diag: a('s_mov_b32 s0, s89')
        self.dstamp(a, 0)
        self.typ = 'A'
        self.do(a, self.wprep(0))
        ringpre = [self.wdma(k) + self.wprep(k+1) for k in range(4)]
        warm = [[f'buffer_load_dword v{ACC1+1}, v{vW}, {srd(sB2)}, s{s_wa} offen'], [f'buffer_load_dword v{ACC1+2}, v{vW+1}, {srd(sBo)}, s{s_wb} offen']] if o('bwarm', 1) else []
        S, Q = v_T, v_T+4
        vq = [xload(n) for n in range(n0, 16)]; wq = ringpre + warm
        for G in range(2):
            X = RX + 32*G
            for u in range(16):
                xp = vr(X+2*u, 2)
                a(f'v_mfma_f32_4x4x4_16b_bf16 {vr(S,4)}, {vr(ONE,2)}, {xp}, {vr(S,4) if u else 0}')
                a(f'v_mfma_f32_4x4x4_16b_bf16 {vr(Q,4)}, {xp}, {xp}, {vr(Q,4) if u else 0}')
                if not u & 1:
                    if G == 0:
                        for _ in range(1 if u < o('x2', 10) else 2):
                            if len(vq) > o('xkeep', 0): self.do(a, vq.pop(0))
                    elif u >= o('wu', 0) and wq: self.do(a, wq.pop(0))
            if self.opt.get('fine', 0) & 4: self.fstamp(a, 58 + 2*G)
            if G: a(f'v_xor_b32 v{WB}, 0x80, v{WB}'); a(f'v_xor_b32 v{WB+1}, 0x80, v{WB+1}')
            elif vq: self.do(a, vq.pop(0))
            dp = ['quad_perm:[1,0,3,2]', 'quad_perm:[2,3,0,1]', 'row_half_mirror']
            for k in range(3):
                a(f'v_add_f32_dpp v{S}, v{S}, v{S} {dp[k]} row_mask:0xf bank_mask:0xf')
                a(f'v_cndmask_b32 v{Q}, v{Q}, v{Q+1+k}, s[{18+2*k}:{19+2*k}]')
            a(f'v_mul_f32 v{S+1}, v{S}, v{S}')
            for k in range(3): a(f'v_add_f32_dpp v{Q}, v{Q}, v{Q} {dp[k]} row_mask:0xf bank_mask:0xf')
            a(f'v_fma_f32 v{Q}, v{Q}, v{K512}, -v{S+1}')
            a(f'v_max_f32 v{Q}, 0, v{Q}'); a(f'v_add_f32 v{Q}, {hex(f2u(1e-5))}, v{Q}')
            a(f'v_rsq_f32 v{Q}, v{Q}')
            D = lambda u: WF + 4*(u & 7)
            hi = lambda u: f'v_mfma_f32_4x4x4_16b_bf16 {vr(D(u),4)}, {vr(Q,2)}, {vr(X+2*u,2)}, {vr(S,4)}'
            lo = lambda u: f'v_mfma_f32_4x4x4_16b_bf16 {vr(D(u),4)}, {vr(Q+2,2)}, {vr(X+2*u,2)}, {vr(D(u),4)}'
            cv = lambda u: [f'v_cvt_pk_bf16_f32 v{X+2*u}, v{D(u)}, v{D(u)+1}', f'v_cvt_pk_bf16_f32 v{X+2*u+1}, v{D(u)+2}, v{D(u)+3}']
            wr = lambda i: f'ds_write_b128 v{WB+(i>>2)}, {vr(X+4*i,4)} offset:{(i&3)*16384}'
            def more():
                if vq: self.do(a, vq.pop(0))
                elif G == 1 and wq: self.do(a, wq.pop(0))
            a(f'v_cvt_pk_bf16_f32 v{Q+1}, v{Q}, v{Q}')
            if o('lo', 1):
                for k in (1, 2, 3, 0): a(f'v_mul_f32 v{S+k}, v{S}, v{Q}')
                a(f'v_and_b32 v{Q+2}, 0xffff0000, v{Q+1}'); a(f'v_sub_f32 v{Q+2}, v{Q}, v{Q+2}')
                a(f'v_and_b32 v{Q}, v{M0r}, v{Q+1}'); a(f'v_and_b32 v{Q+1}, v{M1r}, v{Q+1}')
                a(f'v_cvt_pk_bf16_f32 v{Q+3}, v{Q+2}, v{Q+2}')
                a(hi(0)); a(f'v_and_b32 v{Q+2}, v{M0r}, v{Q+3}'); a(hi(1)); a(f'v_and_b32 v{Q+3}, v{M1r}, v{Q+3}'); a(hi(2))
                for u in range(19):
                    if u + 3 < 16: a(hi(u+3))
                    if u >= 3: a(cv(u-3)[0])
                    if u < 16: a(lo(u))
                    if u >= 3:
                        a(cv(u-3)[1])
                        if (u-3) & 1: a(wr((u-3) >> 1))
                    if u in (2, 6, 10, 14): more()
            else:
                a(f'v_and_b32 v{Q+2}, 0xffff0000, v{Q+1}')
                a(f'v_and_b32 v{Q}, v{M0r}, v{Q+1}'); a(f'v_and_b32 v{Q+1}, v{M1r}, v{Q+1}')
                for k in (1, 2, 3, 0): a(f'v_mul_f32 v{S+k}, v{S}, v{Q+2}')
                for u in range(20):
                    if u < 16: a(hi(u))
                    if u >= 4:
                        for x in cv(u-4): a(x)
                        if (u-4) & 1: a(wr((u-4) >> 1))
                    if u in (3, 7, 11, 15): more()
            if self.opt.get('fine', 0) & 4: self.fstamp(a, 59 + 2*G)
        assert not vq
        while wq: self.do(a, wq.pop(0))
        if o('lnprio', 1): a('s_setprio 0')
        a.wait(vm_tok=[self.tok[('W', 0)]], lg0=True); a.barrier()
        self.dstamp(a, 1)
        for x in self.xreads(0) + self.xreads(1) + self.wreads(0): self.do(a, x)
        assert a.done_at_barrier(self.tok['zero'])
        a(f'buffer_store_dword v{v_fl}, v{v_fl}, {srd(sDBG)}, s{s_dbg} offen sc1')
    def wreads(self, s):
        buf = WF + (s & 1)*16; base = (s % RING)*8192; L = []
        for f in range(4):
            p, tf = f >> 1, f & 1
            for rd in range(2):
                if s >= 32 and self.typ == 'B': addr, off = v_trh, base + p*4096 + tf*2048 + rd*256
                else: addr, off = (v_tr1 if tf else v_tr0), base + p*4096 + rd*512
                L.append(('rd', f'ds_read_b64_tr_b16 {vr(buf+4*f+2*rd,2)}, v{addr} offset:{off}', ('W', s)))
        return L
    def breads(self, i):
        buf = WF + (i & 1)*16; L = []; base = bslot(i); pre = []
        if not (0 <= base - self.bwin and base - self.bwin + 16384 <= 65536):
            d = (base - self.bwin) & 0xffffffff
            pre = [f'v_add_u32 v{r}, {hex(d)}, v{r}' for r in self.badr]; self.bwin = base
        for j in range(4):
            for rd in range(2):
                it = ('rd', f'ds_read_b64_tr_b16 {vr(buf+4*j+2*rd,2)}, v{self.badr[j]} offset:{base - self.bwin + rd*2048}', ('B', i))
                L.append([pre[j], it] if pre and rd == 0 else it)
        return L
    def mfmas(self, s):
        buf = WF + (s & 1)*16; L = []; typ = self.typ
        for f in range(4):
            p, tf = f >> 1, f & 1
            for t in range(2):
                w = vr(buf+4*f, 4); swap = False
                if s >= 40:
                    i = s - 40; acc = ACC3 + (f*2+t)*4; x = vr(self.aslot(2*i+t), 4)
                    C = vr(acc, 4) if i else 0
                else:
                    if s < 32:
                        ks = s & 15; acc = (ACC0 if s < 16 else ACC1) + (f*2+t)*4
                        swap = (s >= 16 and typ == 'A' and p == 1)
                    else:
                        u, cidx = (p, tf) if typ == 'A' else (tf, p)
                        ks = 2*(s-32) + u; acc = ACC0 + (cidx*2+t)*4
                    x = vr(XF+(2*ks+t)*4, 4); C = vr(acc, 4) if ks else 0
                A, B = (x, w) if swap else (w, x)
                L.append(f'v_mfma_f32_16x16x32_bf16 {vr(acc,4)}, {A}, {B}, {C}')
        return L
    def silu_batch(self, G, U, O, T, t):
        L = [f'v_mul_f32 v{T+r}, {hex(f2u(-LOG2E))}, v{G+r}' for r in range(4)]
        for r in range(4): L += [f'v_exp_f32 v{T+r}, v{T+r}', f'v_mul_f32 v{U+r}, v{G+r}, v{U+r}']
        L += [f'v_add_f32 v{T+r}, 1.0, v{T+r}' for r in range(4)]
        L += [f'v_rcp_f32 v{T+r}, v{T+r}' for r in range(4)]
        L += [f'v_mul_f32 v{U+r}, v{U+r}, v{T+r}' for r in range(4)]
        L += [f'v_cvt_pk_bf16_f32 v{O}, v{U}, v{U+1}', f'v_cvt_pk_bf16_f32 v{O+1}, v{U+2}, v{U+3}']
        return L
    def hstore(self, regs, t, istep, key):
        return [[f's_add_u32 s{s_t3}, s{s_hst}, {t*73728 + istep*1024}',
                 ('dma', f'buffer_store_dwordx4 {vr(regs,4)}, v{v_l16}, {srd(sWS)}, s{s_t3} offen sc1', key)]]
    def ffn_epi(self, acc, istep, key):
        L = []
        for t in range(2):
            O = acc + t*4
            for tf in range(2):
                L += self.silu_batch(acc + (tf*2+t)*4, acc + ((2+tf)*2+t)*4, O + 2*tf, v_T + 4*tf, t)
            L += self.hstore(O, t, istep, (key, t))
        return L
    def kv_pre(self):
        T = v_T; L = []
        for t in range(2): L.append(f'v_mul_f32 v{28+t}, {hex(f2u(-1/LOG2E))}, v{self.c1[t]}')
        L += ['v_mov_b32 v17, 0', 'v_mov_b32 v19, 0', 'v_mov_b32 v20, 0x3e803e80', 'v_mov_b32 v21, 0x3e803e80']
        for t in range(2): L.append(f'v_and_b32 v{22+t}, 0xffff0000, v{28+t}')
        for t in range(2): L.append(f'v_sub_f32 v{24+t}, v{28+t}, v{22+t}')
        for t in range(2): L.append(f'v_cvt_pk_bf16_f32 v{16+2*t}, v{22+t}, v{24+t}')
        for t in range(2): L.append(f'v_mfma_f32_16x16x16_bf16 {vr(T+4*t,4)}, {vr(16+2*t,2)}, v[20:21], 0')
        return L
    def kv_epi(self):
        L = []; T = v_T
        K = lambda hh, t: ACC1 + (hh*2+t)*4
        V = lambda hh, t: ACC1 + 16 + (hh*2+t)*4
        pk = lambda d, s: [f'v_cvt_pk_bf16_f32 v{d}, v{s}, v{s+1}', f'v_cvt_pk_bf16_f32 v{d+1}, v{s+2}, v{s+3}']
        sk = lambda hh, t: []
        sv = lambda hh, t: []
        L += sk(0,1) + sk(1,1) + pk(v_KP, K(0,1)) + pk(v_KP+2, K(1,1))
        L += [('dma', f'buffer_store_dwordx4 {vr(v_KP,4)}, v{v_l16}, {srd(sWS)}, s{s_ha} offen sc1', ('halo', 0))]
        L += sv(0,1) + sv(1,1) + pk(K(0,1), V(0,1)) + pk(K(0,1)+2, V(1,1))
        L += [('dma', f'buffer_store_dwordx4 {vr(K(0,1),4)}, v{v_l16}, {srd(sWS)}, s{s_ha} offen offset:1024 sc1', ('halo', 1))]
        L += sk(0,0) + sk(1,0) + pk(v_KP+4, K(0,0)) + pk(v_KP+6, K(1,0)) + sv(0,0) + sv(1,0)
        L += pk(16, V(0,1)) + pk(18, V(0,0)) + pk(24, V(1,0)) + pk(26, V(1,1))
        return L
    def half_epi(self):
        X = ACC0 + 16; L = []
        for t in range(2): L += self.silu_batch(ACC0 + t*4, ACC0 + (2+t)*4, X + 2*t, v_T + 4*t, t)
        L += [f'v_lshrrev_b32 v{v_T}, 9, v{v_l16}', f'v_mul_u32_u24 v{v_T}, {73728-512}, v{v_T}', f'v_add_u32 v{v_T}, v{v_T}, v{v_l16}']
        L += [f'v_permlane32_swap_b32 v{X}, v{X+2}', f'v_permlane32_swap_b32 v{X+1}, v{X+3}']
        L += [('dma', f'buffer_store_dwordx4 {vr(X,4)}, v{v_T}, {srd(sWS)}, s{s_hs2} offen sc1', 'fin')]
        return L
    def att_pre(self):
        cur = [0]*4; prv = [0]*4
        for l in range(64):
            t, g = l & 15, l >> 4
            for r in range(4):
                i = 4*g + r
                if (i ^ t) & 1: continue
                if i <= t: cur[r] |= 1 << l
                else: prv[r] |= 1 << l
        MP = [14, 16, 18, 22, 74, 76, 78, 80, 82, 56]
        sm = lambda k: f's[{MP[k]}:{MP[k]+1}]'
        L = []
        def setm(k, m): L.extend([f's_mov_b32 s{MP[k]}, {hex(m & 0xffffffff)}', f's_mov_b32 s{MP[k]+1}, {hex(m >> 32)}'])
        for r in range(4): setm(r, cur[r]); setm(4+r, prv[r])
        setm(8, cur[0] | cur[1]); setm(9, cur[2] | cur[3])
        Mc, Mp, Mp0, Ac, Ap, ONES, NEG, HM, CQ = self.am
        L += [f'v_mov_b32 v{NEG}, {hex(f2u(-1e30))}']
        L += [f'v_cndmask_b32 v{Mc+r}, v{NEG}, 0, {sm(r)}' for r in range(4)]
        L += [f'v_cndmask_b32 v{Mp+r}, v{NEG}, 0, {sm(4+r)}' for r in range(4)]
        L += [[f's_cmp_eq_u32 s{s_hms}, 0', f's_cselect_b64 {sm(0)}, 0, -1']]
        L += [f'v_cndmask_b32 v{Mp0+r}, v{NEG}, v{Mp+r}, {sm(0)}' for r in range(4)]
        L += [f's_mov_b32 s{MP[1]}, 0xaaaaaaaa', f's_mov_b32 s{MP[1]+1}, 0xaaaaaaaa', f'v_mov_b32 v{HM}, 0xffff', f'v_mov_b32 v{NEG}, 0xffff0000',
              f'v_cndmask_b32 v{HM}, v{HM}, v{NEG}, {sm(1)}']
        L += [f'v_cndmask_b32 v{Ac+d}, 0, v{HM}, {sm(8+d)}' for d in range(2)]
        L += [f'v_xor_b32 v{Ap+d}, v{HM}, v{Ac+d}' for d in range(2)]
        L += [f'v_mov_b32 v{ONES+i}, 0x3f803f80' for i in range(4)]
        L += [f'v_mov_b32 v{CQ}, {hex(f2u(0.25*LOG2E))}']
        return L
    def attention(self):
        Mc, Mp, Mp0, Ac, Ap, ONES, NEG, HM, CQ = self.am
        L = []; a = L.append
        Qa = lambda hh, t: ACC0 + (hh*2+t)*4
        units = [(0,0),(1,0),(0,1),(1,1)]
        for hh, t in units:
            q = Qa(hh, t); a(f'v_cvt_pk_bf16_f32 v{q}, v{q}, v{q+1}'); a(f'v_cvt_pk_bf16_f32 v{q+1}, v{q+2}, v{q+3}')
        Kc = lambda hh, t: v_KP + (4 if t == 0 else 0) + 2*hh
        Kp = lambda hh, t: 28 + 2*hh if t == 0 else Kc(hh, 0)
        Sg = lambda u: ACC1 + 8*u
        for u, (hh, t) in enumerate(units):
            a(f'v_mfma_f32_16x16x16_bf16 {vr(Sg(u)+4,4)}, {vr(Kc(hh,t),2)}, {vr(Qa(hh,t),2)}, {vr(Mc,4)}')
        for u, (hh, t) in reversed(list(enumerate(units))):
            if u == 1: a('HALO')
            a(f'v_mfma_f32_16x16x16_bf16 {vr(Sg(u),4)}, {vr(Kp(hh,t),2)}, {vr(Qa(hh,t),2)}, {vr(Mp0 if t == 0 else Mp,4)}')
        m = [v_T+u for u in range(4)]
        for u in (3, 2, 1, 0):
            S = Sg(u)
            a(f'v_max3_f32 v{S}, v{S}, v{S+1}, v{S+4}'); a(f'v_max3_f32 v{S+2}, v{S+2}, v{S+3}, v{S+6}')
            a(f'v_max_f32 v{S}, v{S}, v{S+5}'); a(f'v_max_f32 v{S+2}, v{S+2}, v{S+7}')
            a(f'v_max_f32 v{m[u]}, v{S}, v{S+2}')
        a(f'v_permlane32_swap_b32 v{m[2]}, v{m[3]}'); a(f'v_permlane32_swap_b32 v{m[0]}, v{m[1]}')
        a(f'v_max_f32 v{m[2]}, v{m[2]}, v{m[3]}'); a(f'v_max_f32 v{m[0]}, v{m[0]}, v{m[1]}')
        a(f'v_permlane16_swap_b32 v{m[0]}, v{m[2]}')
        a(f'v_max_f32 v{m[1]}, v{m[0]}, v{m[2]}'); a(f'v_max_f32 v{m[3]}, v{m[0]}, v{m[2]}')
        a(f'v_permlane16_swap_b32 v{m[1]}, v{m[3]}')
        a(f'v_mul_f32 v{m[0]}, v{CQ}, v{m[1]}'); a(f'v_mul_f32 v{m[2]}, v{CQ}, v{m[3]}')
        a(f'v_mul_f32 v{m[1]}, v{CQ}, v{m[1]}'); a(f'v_mul_f32 v{m[3]}, v{CQ}, v{m[3]}')
        a(f'v_permlane32_swap_b32 v{m[0]}, v{m[1]}'); a(f'v_permlane32_swap_b32 v{m[2]}, v{m[3]}')
        for u, (hh, t) in enumerate(units):
            S = Sg(u)
            a(f'v_fma_f32 v{S}, v{S}, v{CQ}, -v{m[u]}'); a(f'v_fma_f32 v{S+2}, v{S+2}, v{CQ}, -v{m[u]}')
        for u in range(4):
            S = Sg(u); a(f'v_exp_f32 v{S}, v{S}'); a(f'v_exp_f32 v{S+2}, v{S+2}')
        Vw = {(0,0): 18, (0,1): 16, (1,0): 22, (1,1): 24}
        for u, (hh, t) in enumerate(units):
            S = Sg(u); P = S + 4
            a(f'v_cvt_pk_bf16_f32 v{S}, v{S}, v{S}'); a(f'v_cvt_pk_bf16_f32 v{S+2}, v{S+2}, v{S+2}')
            first, second = (Ac, Ap) if hh == 0 else (Ap, Ac)
            a(f'v_and_b32 v{P}, v{first}, v{S}'); a(f'v_and_b32 v{P+1}, v{first+1}, v{S+2}')
            a(f'v_and_b32 v{P+2}, v{second}, v{S}'); a(f'v_and_b32 v{P+3}, v{second+1}, v{S+2}')
        for u, (hh, t) in enumerate(units):
            S = Sg(u); P = S + 4
            a(f'v_mfma_f32_16x16x32_bf16 {vr(S,4)}, {vr(ONES,4)}, {vr(P,4)}, 0')
            a(f'v_mfma_f32_16x16x32_bf16 {vr(Qa(hh,t),4)}, {vr(Vw[(hh,t)],4)}, {vr(P,4)}, 0')
        a(lambda a_: self.busy.clear())
        for u in range(4): a(f'v_rcp_f32 v{Sg(u)}, v{Sg(u)}')
        for t in range(2):
            O = v_KP + 4*t
            for hh in range(2):
                u = units.index((hh, t)); q = Qa(hh, t)
                for r in range(4): a(f'v_mul_f32 v{q+r}, v{q+r}, v{Sg(u)}')
                a(f'v_cvt_pk_bf16_f32 v{O+2*hh}, v{q}, v{q+1}'); a(f'v_cvt_pk_bf16_f32 v{O+2*hh+1}, v{q+2}, v{q+3}')
            L += self.hstore(O, t, 14, 'fin')
        return L
    def step(self, a, mf, reads, misc, prep, valu, quota, endwait, barrier=True, extra=(), head=()):
        reads = list(reads); prep = list(prep); used = 0
        rp = [int(c) for c in str(self.o('rp', 12111110))]
        vp = [int(c) for c in str(self.o('vp', 1111111))]
        order = [0, 2, 4, 1, 3, 5, 6]
        slot = {g: [] for g in range(8)}
        for n, grp in enumerate(misc): slot[sorted(order[:len(misc)])[n] if len(misc) <= 7 else min(n, 6)].append(list(grp))
        toks = []; xt = []; self.xg = [int(c) for c in str(self.o('xg', 45))]
        for k, m in enumerate(mf):
            a(m)
            if k == 0: self.do(a, list(head))
            if slot[k]:
                g0 = slot[k][0]
                while g0 and isinstance(g0[0], str) and g0[0].startswith('s_add'): a(g0.pop(0))
            for _ in range(rp[k]):
                if reads: self.do(a, reads.pop(0)); toks.append(a.nid)
            for grp in slot[k]: self.do(a, grp)
            if k == 3 and prep: self.do(a, prep.pop(0))
            if k in self.xg and extra: self.do(a, extra.pop(0)); xt.append(a.nid)
            if k < 7:
                lim = quota*sum(vp[:k+1])/sum(vp)
                while valu and valu[0] != 'HALO' and used + self.weight(valu[0]) <= lim + 0.01 + (3 if isinstance(valu[0], list) else 0):
                    it = valu.pop(0); used += self.weight(it); self.do(a, it)
            if k == 3: a.wait(lg_tok=self.prev_toks)
            if k == 6: a.wait(vm_tok=[self.tok[k_] for k_ in endwait if k_ in self.tok], lg_tok=toks[:4])
        assert not reads and not prep
        self.prev_toks = toks
        if barrier: a.barrier()
    def main(self, a, typ):
        o = lambda k, d: self.opt.get(k + typ, self.opt.get(k, d))
        self.typ = typ; A = typ == 'A'
        self.badr = [v_b2, v_wf, v_wq, v_b3]; self.bwin = bslot(0)
        am0 = XF + 64
        self.am = (am0, am0+4, am0+8, am0+12, am0+14, am0+16, am0+20, am0+21, am0+22)
        self.XR = XF + 88
        self.busy = set(range(XF, XF+128))
        a.wait(vm_tok=[self.tok[('W', 1)]], lg0=True); a.barrier()
        self.prev_toks = []
        valu = []
        border = list(range(14)); bpat = str(o('bpat', 10)); b0 = o('b0', 5)
        D = RING - 1
        nb = 0; na = 0; nbb = 7*2; st = 0
        bper = o('bper', 2); f0 = o('f0', 27); q0 = o('q0', 32); c0 = o('c0', 35)
        fh = o('fh', 35); qh = o('qh', 38); ch = o('ch', 40)
        q1 = o('q1', 44); c1 = o('c1', 46); q2 = o('q2', 46); c2 = o('c2', 48); q3 = o('q3', 49); c3 = o('c3', 51)
        flagged = set()
        for s in range(58):
            misc = []; prep = []
            i = s - 40
            if s < 39: reads = self.wreads(s+1)
            elif s < 57: reads = self.breads(i+1)
            else: reads = []
            if s == 0: misc.append(self.wdma(4) + self.wprep(5))
            if s + D < 40: misc.append(self.wdma(s + D))
            if s + D + 1 < 40: prep = self.wprep(s + D + 1)
            pfs = [int(c) for c in str(o('pfs', '34')).split(',')] if o('pf', 1) else []
            if s in pfs:
                k_ = pfs.index(s)
                if o('pf', 1) == 1:
                    vp_ = v_ST
                    L_ = [[f'v_lshrrev_b32 v{vp_}, 6, v{v_l16}', f'v_lshlrev_b32 v{vp_}, 18, v{vp_}', f'v_add_lshl_u32 v{vp_}, v{vp_}, v{v_l16}, 6',
                           f'buffer_load_dword v{v_xo}, v{vp_}, {srd(sB2)}, s{s_pf2} offen offset:384'], [f'buffer_load_dword v{vp_}, v{vp_}, {srd(sBo)}, s{s_pfo} offen offset:384']]
                    assert s >= 14
                    misc.append(L_[k_] if len(pfs) == 2 else L_[0] + L_[1])
                else:
                    pre = [f'v_lshrrev_b32 v{v_b2}, 7, v{v_l16}', f'v_lshlrev_b32 v{v_b2}, 21, v{v_b2}', f'v_add_lshl_u32 v{v_b2}, v{v_b2}, v{v_l16}, 3'] if k_ == 0 else []
                    misc.append(pre + [f'buffer_load_dword v{v_ST+2+(k_ & 1)}, v{v_b2}, {srd(sB2 if k_ < 4 else sBo)}, s{s_pf2 if k_ < 4 else s_pfo} offen offset:{(k_ % 4)*1024}'])
            if s >= b0 and bpat[(s-b0) % len(bpat)] == '1' and nb < 14: misc.append(self.bdma_rot(border[nb])); nb += 1
            if s == 8: misc.append(self.poll_issue(sDBG, 0, FV))
            if s == 13: misc.append(self.poll_check(sDBG, 0, FV, 0xffff))
            quota = o('qa', 9)
            extra = self.xreads(s+2) if s < 14 else []
            if s == 16:
                assert not valu
                valu += self.ffn_epi(ACC0, 4 if A else 0, 'h0')
            if 16 <= s < 32: quota = o('qb', 17)
            if s == 32:
                assert not valu
                valu += self.kv_epi() if A else self.ffn_epi(ACC1, 8, 'h1')
            if 32 <= s < 40: quota = o('qc', 17)
            if s == 36:
                misc.append([f'v_xor_b32 v{self.badr[j]}, {j*32}, v{self.badr[0]}' for j in (1, 2, 3)])
            if 33 <= s <= 40: self.busy -= set(range(XF + 16*(s-33), XF + 16*(s-32)))
            if s == 38:
                if A: self.busy |= set(range(am0, am0+24)); valu += self.att_pre()
            if s == 40:
                valu += self.attention() if A else self.half_epi()
                self.dstamp(a, 4)
            if s == o('ra', 50):
                misc.append([f'buffer_load_dwordx4 v[0:3], v{v_oa}, {srd(sX)}, s{s_red} offen']); assert not valu
            if s == 56:
                valu += [f'v_xor_b32 v{v_T+j_}, {j_*64}, v{v_rw}' for j_ in (1, 2, 3)] + [f'v_xor_b32 v{v_T}, 16, v{v_rr}']
                for j_ in range(4): valu += [f'v_lshlrev_b32 v{8+2*j_}, 16, v{j_}', f'v_and_b32 v{9+2*j_}, 0xffff0000, v{j_}']
            if s >= 40: quota = o('qd', 100)
            for n_, k_ in enumerate(('sa', 'sb', 'sc')):
                if self.opt.get(k_, -1) == s: self.dstamp(a, 5 + n_, force=True)
            if s == 16: self.dstamp(a, 2)
            if s == 32: self.dstamp(a, 3)
            head = []; sp = o('sp', 1)
            def P(q, c, d, n, soff, line, woff, mask, extra=None, stamp=None):
                st_ = [lambda a: self.dstamp(a, stamp)] if stamp else []
                if s == q:
                    if sp: head.extend(self.spoll_issue(d, n, soff, line + woff))
                    else: misc.append(self.poll_issue(sWS, f's{soff}', line))
                if s == c:
                    if sp: head.extend(self.spoll_check(d, n, soff, line, mask, extra) + st_)
                    else: misc.append(self.poll_check(sWS, f's{soff}', line, mask) + st_)
            if s == f0: misc.append(self.flag(('h0', 1), 0))
            P(q0, c0, 16, 8, s_pl, 0, 0, 0xff, stamp=5)
            if s == c0: st = 1
            if A and s == fh: misc.append(self.flag(('halo', 1), 3))
            if A: P(qh, ch, 12, 1, s_hl, 0, 0, f's{s_hms}', extra=s_hms)
            if A and s == ch:
                misc.append([f's_cmp_eq_u32 s{s_hms}, 0', f's_cselect_b32 s{s_t1}, {OOB}, s{s_ha}', f's_sub_u32 s{s_t1}, s{s_t1}, 32768',
                             f'buffer_load_dwordx4 {vr(28,4)}, v{v_l16}, {srd(sWS)}, s{s_t1} offen sc1',
                             f'buffer_load_dwordx4 {vr(20,4)}, v{v_l16}, {srd(sWS)}, s{s_t1} offen offset:1024 sc1'])
            if A and s == ch + o('hlag', 1): valu.remove('HALO')
            if not valu and 'fin' in self.tok and not flagged and s >= self.at.setdefault('fin', s) + o('flag2', 1): misc.append(self.flag('fin', 2 if A else 1)); flagged.add(2)
            if s == q1: assert not any(isinstance(x, str) and 's[' in x and 'cndmask' in x for x in valu)
            P(q1, c1, 16, 4, s_pl, 128, 16, 0xf0, stamp=6)
            if s == c1:
                assert A or flagged
                st = 3
            P(q3, c3, 20, 4, s_pl, 256, 0, 0x0f, stamp=7)
            if s == c3:
                assert flagged
                st = 4
            plp = str(o('plp', 43))
            budget = o('pe', 2) if s < 40 else int(plp[(s-40) % len(plp)])
            pat = o('pat', '')
            if pat and s >= 33: budget = int((pat[1:] + '4'*30)[s-33])
            lim = [0, 16, 24, 28, 36][st]
            def b_ok():
                if nbb >= 36: return False
                k = nbb >> 1
                return s >= ({7: 36, 8: 38, 9: 40}[k] if k < 10 else 40 + k - 9)
            def a_ok(): return na < lim and (na < NA or i > (na - NA) >> 1) and not (set(range(self.aslot(na), self.aslot(na)+4)) & self.busy)
            while budget > 0:
                da = (na >> 1) if a_ok() else 99
                db = (nbb >> 1) - o('bahead', 2) if b_ok() else 99
                if min(da, db) == 99: break
                if da <= db: misc.append(self.aload(na)); na += 1
                else: misc.append(self.bdma(nbb >> 1, nbb & 1)); nbb += 1
                budget -= 1
            while s >= 39 and s < 57 and na < 2*(i+1) + 2:
                assert a_ok(), (s, na); misc.append(self.aload(na)); na += 1
            if o('verbose', 0): sys.stderr.write(f'{typ} step {s}: na {na} nbb {nbb} valu {len(valu)} flagged {flagged} misc {len(misc)}\n')
            if self.opt.get('fine', 0) & 1 and o('fs', 4) < s < 40: self.fstamp(a, s)
            if self.opt.get('fine', 0) & 2 and s >= 40: self.fstamp(a, s)
            ew = [('W', s+2)] if s < 38 else [('B', i+2, 0), ('B', i+2, 1), ('A', 2*i+2), ('A', 2*i+3)]
            lb = o('lb', 54)
            if s == lb:
                assert nbb == 36; ew += [('B', 17, 1)]
            self.redw = [f'ds_write_b128 v{v_T+j_ if j_ else v_rw}, {vr(ACC3 + (j_*2+t)*4, 4)} offset:{49152 + t*4096}' for j_ in range(4) for t in range(2)]
            if s == 57 and o('tw', 1):
                mf = self.mfmas(s); k0 = o('tw', 1) + 2
                for k_, m_ in enumerate(mf):
                    a(m_)
                    if k_ >= k0: a(self.redw.pop(0))
                continue
            self.step(a, self.mfmas(s), reads, misc, prep, valu, quota, ew, barrier=(s <= lb), extra=extra, head=head)
        assert not valu and na == 36 and nbb == 36
        self.dstamp(a, 8)
        for x in self.redw: a(x)
        a.wait(lg0=True); a.barrier()
        for k in range(4):
            for hf in range(2): a(f'ds_read_b128 {vr(WF+8*k+4*hf,4)}, v{v_T if hf else v_rr} offset:{k*16384}')
        for k in range(4):
            for e in range(8): a(f'v_add_f32 v{8+e}, v{8+e}, v{WF+8*k+e}')
        for k in range(4): a(f'v_cvt_pk_bf16_f32 v{k}, v{8+2*k}, v{9+2*k}')
        a(f'buffer_store_dwordx4 v[0:3], v{v_oa}, {srd(sOUT)}, s{s_red} offen sc0 sc1')
    def finish(self, a):
        if self.diag:
            a.wait(vm0=True)
            a(f's_memtime s[{s_st}:{s_st+1}]'); a(f's_memrealtime s[16:17]'); a.wait(lg0=True)
            a(f's_lshl_b32 s{s_t0}, s2, 3'); a(f's_add_u32 s{s_t0}, s{s_t0}, s{s_w}'); a(f's_lshl_b32 s{s_t0}, s{s_t0}, 6'); a(f's_add_u32 s{s_t0}, s{s_t0}, {STAMP - FV}')
            regs = [0] + [s_st+2+i for i in range(8)] + [1, 1] + [s_st, 3, 16]
            for i, s in enumerate(regs):
                a(f'v_mov_b32 v0, s{s}'); a(f'buffer_store_dword v0, v{v_fl}, {srd(sWS)}, s{s_t0} offen offset:{4*i}')
            if self.opt.get('fine'):
                a(f's_lshl_b32 s{s_t0}, s2, 3'); a(f's_add_u32 s{s_t0}, s{s_t0}, s{s_w}'); a(f's_lshl_b32 s{s_t0}, s{s_t0}, 8'); a(f's_add_u32 s{s_t0}, s{s_t0}, {STAMP+0x40000}')
                a(f'v_lshrrev_b32 v0, 2, v{v_l16}'); a(f'buffer_store_dword v{v_P2}, v0, {srd(sWS)}, s{s_t0} offen')
        a('s_endpgm')
    def build(self):
        self.tok = {}; self.lds_key = {4+k: ('X', k) for k in range(16)}; self.lds_rd = {4+k: [] for k in range(16)}; self.lds_wr = {4+k: [] for k in range(16)}
        a = Asm()
        self.prologue(a)
        a(f's_cmp_ge_u32 s{s_ty}, 2'); a('s_cbranch_scc1 L_typeB')
        parts = [a]
        base = copy.deepcopy((self.tok, self.lds_key, self.lds_rd, self.lds_wr))
        for typ in 'AB':
            b = a.fork(); self.tok, self.lds_key, self.lds_rd, self.lds_wr = copy.deepcopy(base); self.at = {}
            if typ == 'B': b.raw('.p2align 6'); b.label('L_typeB')
            self.main(b, typ)
            self.finish(b)
            parts.append(b)
        hdr = open('parallel_sum__sliding_local_dilated__glu_gated_swiglu__prompt.s.ref').read().split('\n')
        H = [l for l in hdr if l.startswith(';') and '@launch' not in l]
        H.append('; @launch grid=(256,1,1) block=(512,1,1) lds=163840')
        H += ['.amdgcn_target "amdgcn-amd-amdhsa--gfx950"', '.text', f'.globl {KN}', '.p2align 8', f'.type {KN},@function', f'{KN}:']
        T = ['L_end:', '    s_endpgm'] + self.slow + ['L_codeend:'] + table()
        T += ['.section .rodata,"a"', '.p2align 6', f'.amdhsa_kernel {KN}', '  .amdhsa_next_free_vgpr 256', '  .amdhsa_next_free_sgpr 102',
              '  .amdhsa_accum_offset 256', '  .amdhsa_group_segment_fixed_size 0', '  .amdhsa_kernarg_size 80', '  .amdhsa_user_sgpr_count 2',
              '  .amdhsa_user_sgpr_kernarg_segment_ptr 1', '  .amdhsa_system_sgpr_workgroup_id_x 1', '.end_amdhsa_kernel']
        sys.stderr.write('instr: ' + ' '.join(f'{p.ninst}(+{p.nnop} nops)' for p in parts) + '\n')
        return '\n'.join(H) + '\n' + ''.join(p.text() for p in parts) + '\n'.join(T) + '\n'

if __name__ == '__main__':
    out = sys.argv[1]; diag = 'diag' in sys.argv[2:]
    opt = {k: (int(v) if v.lstrip('-').isdigit() and not k.startswith('pfs') else v) for k, v in (x.split('=') for x in sys.argv[2:] if '=' in x)}
    DEF = dict(qb=24, f0=25, q0=31, c0=33, q1A=43, c1A=44, q3A=48, c3A=50, patA='p1122233363333333333', patB='p0023232533333333333', fh=34, qh=37, ch=39)
    if 'nodef' not in opt: opt = {**DEF, **opt}
    open(out, 'w').write(Gen(diag=diag, opt=opt).build())
```

```python
import sys, struct, math, copy
from asmlib import Asm, Ins

KN = 'parallel_sum__sliding_local_dilated__glu_gated_swiglu__prompt_kernel'
def f2u(x): return struct.unpack('<I', struct.pack('<f', x))[0]

HALO = 0xA00000; FLAGS = 0xC00000; STAMP = 0xD00000; WSSZ = 0xE00000
OOB = 0x40000000
LOG2E = 1.4426950408889634
FV = 64

sX, sWF, sWQ, sB2, sBo, sWS, sDBG, sOUT = 24, 28, 32, 36, 40, 44, 48, 52
TAB = 56
REC = ['wo0', 'wo1', 'wo2', 'wm', 'bm', 'b2', 'b2h', 'bo', 'hst', 'hs2', 'fl', 'pl', 'hl', 'hms', 'ha', 'al', 'oo',
       'bg0', 'bg1', 'bg2', 'bg3', 'bl0', 'bl1', 'bl2', 'bl3', 'wa', 'wb', 'lead', 'dbg', 'pf2', 'pfo', 'red']
(s_wo0, s_wo1, s_wo2, s_wm, s_bm, s_b2, s_b2h, s_bo, s_hst, s_hs2, s_fl, s_pl, s_hl, s_hms, s_ha, s_al, s_oo,
 s_bg, _, _, _, s_bl, _, _, _, s_wa, s_wb, s_lead, s_dbg, s_pf2, s_pfo, s_red) = range(TAB, TAB+32)
s_w, s_r, s_c, s_ty, s_t0, s_t1, s_t2, s_t3, s_rot, s_wt, s_xo, s_xm = 4, 5, 6, 7, 8, 9, 10, 11, 13, 14, 15, 16
s_cnt = 7; s_xa = 17; s_nl2e = 21
s_pc = 18
s_m = 72
s_st = 90
CTS = int(([x.split('=')[1] for x in sys.argv if x.startswith('cts=')] + [2])[0])
def record(wg, w):
    xcd, j = wg & 7, wg >> 3
    kp, ty, rb, rb64, ct = xcd & 3, j & 3, (xcd >> 2)*8 + (j >> 2), xcd*4 + (j >> 3), (j + CTS) & 7
    r, c = w >> 1, w & 1; A = ty < 2; R = {}
    R['wo0'] = (896*kp + 128*(2 + ty if A else ty - 2), r*8*3584)
    R['wo1'] = (128*(2*kp+ty) + 1024, r*8*3072 + c*1024) if A else (R['wo0'][0] + 512, R['wo0'][1])
    R['wo2'] = (128*(2*kp+ty), r*8*3072 + c*32*3072) if A else (896*kp + 768 + 64*(ty-2), r*16*3584)
    R['wm'] = (0, c*4096 + r*1024); R['bm'] = (0, w*2048)
    R['b2'] = (ct*128, r*448*1024 + c*16384); R['b2h'] = (ct*128, r*448*1024 + c*8192); R['bo'] = (ct*128, r*128*1024 + c*16384)
    h = 4*rb*2*73728 + kp*18*1024
    R['hst'] = (h + (ty & 1)*2048, r*2*73728 + c*1024); R['hs2'] = (h + (ty & 1)*1024 + 12*1024, r*2*73728 + c*512)
    R['fl'] = (FLAGS - FV + (16*rb + kp)*512 + ty*8, r*2048 + c*4)
    R['pl'] = (FLAGS + 8*rb64*512, c*2048 + r*512)
    R['hl'] = (R['fl'][0] + FV - 2048 + 384, R['fl'][1])
    R['hms'] = (rb, r)
    R['ha'] = (HALO + (64*rb + 4*kp + 2*(ty & 1))*2048, (16*r + c)*2048)
    R['al'] = (2*rb64*2*73728, c*2*73728 + r*18*1024)
    R['oo'] = (rb64*65536 + ct*128, c*32768 + r*32)
    for p in range(4):
        q = (p + rb64) & 3
        R[f'bg{p}'] = ((q >> 1)*32768 + (q & 1)*8192 + R['b2'][0], R['b2'][1]); R[f'bl{p}'] = ((q >> 1)*16384 + (q & 1)*1024, w*2048)
    R['wa'] = (wg*8*896, w*896); R['wb'] = (wg*8*256, w*256)
    R['pf2'] = ((448*(j >> 3) + 192 + 32*(j & 7))*1024, w*4096); R['pfo'] = (j*16*1024, w*2048)
    lead = kp == 0 and ty == 0
    R['lead'] = (FLAGS + rb*8192 if lead else OOB, w*1024)
    R['dbg'] = (rb*4 if lead else OOB, 0 if w == 0 else 4096)
    R['red'] = (rb64*65536 + ct*128, w*8192)
    return [R[k] for k in REC]
def table():
    L = []
    for nm, wg0 in (('A', 0), ('B', 16)):
        L.append(f'.macro rec{nm} ' + ', '.join(f'p{i}' for i in range(32)))
        for w in range(8): L.append('.long ' + ', '.join(f'\\p{i}+{g}' for i, (f, g) in enumerate(record(wg0, w))))
        L.append('.endm')
    L += ['.p2align 7', '.type L_tab,@object', 'L_tab:']
    for wg in range(256): L.append(('recA ' if ((wg >> 3) & 3) < 2 else 'recB ') + ', '.join(str(f) for f, g in record(wg, 0)))
    L.append('.size L_tab, 262144')
    return L
def srd(b): return f's[{b}:{b+3}]'

ACC0, ACC1, WF = 0, 32, 64
v_l16, v_tr0, v_tr1, v_wf, v_wq, v_bv, v_fl, v_pl, v_P, v_b2, v_b3, v_P2, v_ST = range(96, 109)
v_KP = 112; v_T = 120
v_trh = v_KP
v_wh = v_wq
v_xe, v_xo, v_oa, v_rw = v_ST, v_ST+1, v_ST+2, v_ST+3
v_rr = v_pl
XF = 128
ACC3 = 224
NA = 24
def vr(b, n): return f'v[{b}:{b+n-1}]' if n > 1 else f'v{b}'

RING = 6
def bslot(i):
    i %= 10
    return 49152 + 16384*i if i < 7 else {7: 32768, 8: 0, 9: 16384}[i]
BSTEP = [('w2', 32*i, 1 if i >= 12 else 0) for i in range(14)] + [('wo', 32*i, 0) for i in range(4)]

class Gen:
    def __init__(self, diag=False, opt=None):
        self.diag = diag; self.opt = opt or {}
        self.slow = []; self.nlab = 0
    def o(self, k, d): return self.opt.get(k, d)
    def dstamp(self, a, i, force=False):
        if not self.diag: return
        if 'sa' in self.opt and i in (5, 6, 7) and not force: return
        a(f's_memtime s[{s_st}:{s_st+1}]'); a(f's_memrealtime s[100:101]'); a.wait(lg0=True)
        d = s_st+2+i if i < 8 else 1
        a(f's_sub_u32 s{s_st}, s{s_st}, s0'); a(f's_sub_u32 s100, s100, s3'); a(f's_pack_ll_b32_b16 s{d}, s{s_st}, s100')
    def fstamp(self, a, i):
        if not (self.diag and self.opt.get('fine')): return
        a(f's_memtime s[{s_st}:{s_st+1}]'); a.wait(lg0=True)
        a(f's_sub_u32 s{s_st}, s{s_st}, s0'); a.raw(f'    v_writelane_b32 v{v_P2}, s{s_st}, {i}')
    def poll_issue(self, sr, soff, off=0, va=None):
        if self.o('xp', 0) & 5: return []
        return [f'buffer_load_dword v{v_P}, v{v_P}, {srd(sr)}, {soff} offen offset:{off} sc1']
    def poll_check(self, sr, soff, off, mask, va=None):
        if self.o('xp', 0): return []
        idx = {(0, 0xff): 0, (128, 0xf0): 1, (256, 0xf0): 2, (256, 0x0f): 3}.get((off, mask), 4 if isinstance(mask, str) else 5)
        if self.o('xc', 0) >> idx & 1: return []
        if self.o('xm', 0) >> idx & 1: mask = 0
        def f(a):
            self.nlab += 1; n = self.nlab
            a(f'v_cmp_eq_u32 vcc, {FV}, v{v_P}')
            a(f's_and_b32 s{s_t0}, vcc_lo, {mask}'); a(f's_cmp_eq_u32 s{s_t0}, {mask}'); a(f's_cbranch_scc0 L_slow{n}')
            a.label(f'L_ok{n}')
            self.slow += [f'L_slow{n}:', f'    s_mov_b32 s{s_cnt}, 0', f'L_spin{n}:',
                 f'    v_bfe_u32 v{v_P}, v{v_l16}, 2, 6', f'    buffer_load_dword v{v_P}, v{v_P}, {srd(sr)}, {soff} offen offset:{off} sc1', '    s_waitcnt vmcnt(0)',
                 f'    v_cmp_eq_u32 vcc, {FV}, v{v_P}', '    s_nop 3', f'    s_and_b32 s{s_t0}, vcc_lo, {mask}', f'    s_cmp_eq_u32 s{s_t0}, {mask}',
                 f'    s_cbranch_scc1 L_ok{n}', f'    s_add_u32 s{s_cnt}, s{s_cnt}, 1', f'    s_cmp_lt_u32 s{s_cnt}, 0x8000',
                 f'    s_cbranch_scc1 L_spin{n}', f'    s_branch L_ok{n}']
        return [f]
    def spoll_issue(self, d, n, soff, off):
        op = {1: 'dword', 4: 'dwordx4', 8: 'dwordx8'}[n]; dst = f's[{d}:{d+n-1}]' if n > 1 else f's{d}'
        return [lambda a: a(f's_buffer_load_{op} {dst}, {srd(sWS)}, s{soff} offset:{off} glc', track=False)]
    def spoll_check(self, d, n, soff, line, mask, extra=None):
        def f(a):
            self.nlab += 1; k = self.nlab
            a.smem_pending = True; a.wait(lg0=True)
            if n == 8: a(f's_and_b64 s[{d}:{d+1}], s[{d}:{d+1}], s[{d+4}:{d+5}]'); a(f's_and_b64 s[{d+2}:{d+3}], s[{d+2}:{d+3}], s[{d+6}:{d+7}]')
            if n >= 4: a(f's_and_b64 s[{d}:{d+1}], s[{d}:{d+1}], s[{d+2}:{d+3}]'); a(f's_and_b32 s{d}, s{d}, s{d+1}')
            if extra: a(f's_cmp_eq_u32 s{extra}, 0'); a(f's_cselect_b32 s{d}, {FV}, s{d}')
            a(f's_cmp_eq_u32 s{d}, {FV}'); a(f's_cbranch_scc0 L_slow{k}')
            a.label(f'L_ok{k}')
            self.slow += [f'L_slow{k}:', f'    s_mov_b32 s{s_cnt}, 0', f'L_spin{k}:',
                 f'    v_bfe_u32 v{v_P}, v{v_l16}, 2, 6', f'    buffer_load_dword v{v_P}, v{v_P}, {srd(sWS)}, s{soff} offen offset:{line} sc1', '    s_waitcnt vmcnt(0)',
                 f'    v_cmp_eq_u32 vcc, {FV}, v{v_P}', '    s_nop 3', f'    s_and_b32 s{s_t0}, vcc_lo, {mask}', f'    s_cmp_eq_u32 s{s_t0}, {mask}',
                 f'    s_cbranch_scc1 L_ok{k}', f'    s_add_u32 s{s_cnt}, s{s_cnt}, 1', f'    s_cmp_lt_u32 s{s_cnt}, 0x8000',
                 f'    s_cbranch_scc1 L_spin{k}', f'    s_branch L_ok{k}']
        return [f]
    def flag(self, key, stage):
        if self.o('xp', 0) & 3: return []
        if self.o('xf', 0) >> stage & 1: return [f'buffer_store_dword v{v_fl}, v{v_fl}, {srd(sWS)}, s{s_fl} offen offset:{stage*128} sc1']
        return [lambda a: a.wait(vm_tok=self.tok[key]),
                f'buffer_store_dword v{v_fl}, v{v_fl}, {srd(sWS)}, s{s_fl} offen offset:{stage*128} sc1']
    def wsrc(self, slab):
        ch = 0 if slab < 16 else (1 if slab < 32 else 2)
        ffn = self.typ == 'B' or ch == 0
        vv = v_wf if ffn else v_wq
        if self.typ == 'B' and ch == 2: vv = v_wh
        return ch, (sWF if ffn else sWQ), vv, 32*(3584 if ffn else 3072)
    def wprep(self, slab):
        nb = self.o('rlb', 6)
        if slab % nb: return []
        return [[f'v_readlane_b32 s{self.wreg(k)}, v{v_b3}, {k}' for k in range(slab, min(slab + nb, 40))]]
    def wreg(self, slab):
        nb = self.o('rlb', 6)
        return s_wo0 + (slab & 1) if nb == 1 else [56, 57, 58, 12, 13, 88][slab % nb]
    def wdma(self, slab):
        ch, sr, vv, step = self.wsrc(slab)
        return [f's_add_u32 m0, s{s_wm}, {(slab % RING)*8192}',
                ('dma', f'buffer_load_dwordx4 v{vv}, {srd(sr)}, s{self.wreg(slab)} offen lds', ('W', slab))]
    def bdma(self, i, n):
        mat, ro, half = BSTEP[i]
        base = {('w2',0): s_b2, ('w2',1): s_b2h, ('wo',0): s_bo}[(mat, half)]
        off = ro*1024 + n*(16384 if half else 8192)
        if self.o('xb', 0): mat = 'w2'; base = s_b2; off = (i % 7)*32768 + n*8192
        return [f's_add_u32 m0, s{s_bm}, {bslot(i) + n*1024}', f's_add_u32 s{s_t1}, s{base}, {off}',
                ('dma', f'buffer_load_dwordx4 v{v_bv}, {srd(sB2 if mat == "w2" else sBo)}, s{s_t1} offen lds', ('B', i, n))]
    def bdma_rot(self, nb):
        G, p = nb >> 2, nb & 3
        if G == 3: return self.bdma(6, p)
        def claim(a):
            for i in (2*G, 2*G+1):
                for b in self.blocks(('B', i)):
                    for t in self.lds_rd.get(b, []): assert self.lds_key[b] == ('B', i) or a.done_at_barrier(t), ('WAR rot', nb)
        return [f's_add_u32 m0, s{s_bl+p}, {bslot(2*G)}', f's_add_u32 s{s_t1}, s{s_bg+p}, {BSTEP[2*G][1]*1024}', claim,
                ('dma', f'buffer_load_dwordx4 v{v_bv}, {srd(sB2)}, s{s_t1} offen lds', ('B', 2*G + (p >> 1), p & 1))]
    def aslot(self, n): return XF + (n % NA)*4
    def aload(self, n):
        i, t = n >> 1, n & 1
        def chk(a): assert not (set(range(self.aslot(n), self.aslot(n)+4)) & self.busy), ('A slot busy', n)
        if self.o('xa', 0) == 1: i = i & 1
        sc = '' if self.o('xa', 0) == 2 else ' sc1'
        return [f's_add_u32 s{s_t2}, s{s_al}, {t*73728 + i*1024}', chk,
                ('dma', f'buffer_load_dwordx4 {vr(self.aslot(n), 4)}, v{v_l16}, {srd(sWS)}, s{s_t2} offen{sc}', ('A', n))]
    def blocks(self, key):
        if not isinstance(key, tuple) or key[0] not in ('W', 'B', 'X'): return []
        if key[0] == 'W': return [key[1] % RING]
        if key[0] == 'X': return [4 + key[1]]
        return [bslot(key[1]) // 8192, bslot(key[1]) // 8192 + 1]
    def do(self, a, it):
        if isinstance(it, str): a(it)
        elif isinstance(it, list):
            for x in it: self.do(a, x)
        elif callable(it): it(a)
        elif it[0] == 'dma':
            key = it[2]; blocks = self.blocks(key)
            for b in blocks:
                if self.lds_key.get(b) != key[:2]:
                    for t in self.lds_rd.get(b, []): assert a.done_at_barrier(t), ('WAR on LDS', key, b)
                    self.lds_key[b] = key[:2]; self.lds_rd[b] = []; self.lds_wr[b] = []
            self.tok[key] = a(it[1].replace(' sc1', '') if self.o('xs', 0) and 'store' in it[1] else it[1])
            for b in blocks: self.lds_wr[b].append(self.tok[key])
        elif it[0] == 'rd':
            key = it[2]
            for b in self.blocks(key):
                assert self.lds_key.get(b) == key, ('stale LDS read', key, self.lds_key.get(b))
                assert key[0] == 'X' or len(self.lds_wr[b]) == (1 if key[0] == 'W' else 2), key
                for t in self.lds_wr[b]: assert a.done_at_barrier(t), ('RAW on LDS', key)
            t = a(it[1])
            for b in self.blocks(key): self.lds_rd[b].append(t)
        else: raise ValueError(it)
    def weight(self, it):
        if isinstance(it, list): return sum(self.weight(x) for x in it)
        if isinstance(it, str):
            op = it.split()[0].replace('_e32','').replace('_e64','')
            if op.startswith('s_'): return 0.5
            if op.startswith('v_mfma'): return 2
            if op.startswith('ds_'): return 5
            return 2 if op in ('v_exp_f32','v_rcp_f32','v_rsq_f32') else 1
        return 0 if callable(it) else 1
    def xreads(self, s):
        L = []; v = v_xo if s & 1 else v_xe
        pre = [f'v_add_u32 v{v}, 0x10000, v{v}'] if s in (8, 9) else []
        for t in range(2):
            it = ('rd', f'ds_read_b128 {vr(XF+(2*s+t)*4,4)}, v{v} offset:{(s & 7)*8192 + t*1024}', ('X', s))
            L.append(pre + [it] if t == 0 else [it])
        return L
    def prologue(self, a):
        o = self.o
        lane, g, c16, T0, T1, T2, vX, vW = 0, 1, 2, 3, 4, 5, v_oa, 8
        RX = XF + 64
        a(f's_load_dwordx2 s[{sX}:{sX+1}], s[0:1], 0')
        if self.diag: a(f's_memrealtime s[{s_st}:{s_st+1}]'); a(f's_memtime s[{s_st+2}:{s_st+3}]')
        a('s_cmp_ge_u32 s2, 256'); a('s_cbranch_scc1 L_end')
        vR = 7
        a(f's_getpc_b64 s[{sWQ}:{sWQ+1}]'); a.label('L_pc')
        a('v_lshrrev_b32 v1, 6, v0'); a(f'v_and_b32 v{T0}, 31, v0'); a(f'v_lshl_add_u32 v{T0}, v1, 5, v{T0}'); a(f'v_lshlrev_b32 v{T0}, 2, v{T0}')
        a(f's_mov_b32 s{sWQ+2}, L_tab+262144-L_pc'); a(f's_mov_b32 s{sWQ+3}, 0x20000')
        a(f's_lshl_b32 s{s_t1}, s2, 10'); a(f's_add_u32 s{s_t1}, s{s_t1}, L_tab-L_pc')
        a(f'buffer_load_dword v{vR}, v{T0}, {srd(sWQ)}, s{s_t1} offen')
        a(f'v_readfirstlane_b32 s{s_w}, v1')
        a(f'v_and_b32 v{T0}, 7, v0'); a(f'v_lshlrev_b32 v{T0}, 4, v{T0}'); a(f'v_bfe_u32 v{T1}, v0, 3, 3'); a(f'v_lshl_add_u32 v{vX}, v{T1}, 10, v{T0}')
        a(f's_bfe_u32 s{s_ty}, s2, 0x20003'); a(f's_lshr_b32 s{s_t2}, s2, 5')
        a(f's_and_b32 s{s_t0}, s2, 4'); a(f's_lshl1_add_u32 s{s_t0}, s{s_t0}, s{s_t2}')
        a(f's_lshl3_add_u32 s{s_xo}, s{s_t0}, s{s_w}'); a(f's_and_b32 s{s_xm}, s{s_ty}, 1'); a(f's_lshl1_add_u32 s{s_xo}, s{s_xo}, s{s_xm}'); a(f's_lshl_b32 s{s_xo}, s{s_xo}, 13')
        a(f's_lshl1_add_u32 s{s_t2}, s2, s{s_t2}'); a(f's_and_b32 s{s_t2}, s{s_t2}, 7')
        a(f's_lshl_b32 s{s_wt}, s{s_t2}, 7')
        a(f's_mov_b32 s{sX+2}, {2048*1024}'); a(f's_mov_b32 s{sX+3}, 0x20000')
        def xload(n):
            L = [f's_xor_b32 s{s_xo}, s{s_xo}, 8192'] if n == 8 else []
            if n: L += [f's_add_u32 s{s_wt}, s{s_wt}, 128', f's_and_b32 s{s_wt}, s{s_wt}, 1023']
            return L + [f's_add_u32 s{s_xa}, s{s_wt}, s{s_xo}', f'buffer_load_dwordx4 {vr(RX+4*n,4)}, v{vX}, {srd(sX)}, s{s_xa} offen']
        x0 = xload(0)
        self.do(a, x0[:-1]); a.wait(lg0=True); self.do(a, x0[-1])
        if self.diag: a(f's_mov_b32 s3, s{s_st}'); a(f's_mov_b32 s89, s{s_st+2}')
        n0 = o('x0', 4)
        for n in range(1, n0): self.do(a, xload(n))
        if o('cpf', 1):
            a(f's_mov_b32 s{sWQ+2}, L_codeend-L_pc')
            a(f's_lshr_b32 s{s_t0}, s2, 3'); a(f's_lshl_b32 s{s_t0}, s{s_t0}, 11')
            a(f'v_lshrrev_b32 v{T0}, 4, v0'); a(f'v_lshlrev_b32 v{T0}, 13, v{T0}'); a(f'v_add_lshl_u32 v{T0}, v{T0}, v0, 7')
            a(f'buffer_load_dword v{ACC1}, v{T0}, {srd(sWQ)}, s{s_t0} offen')
        a(f's_and_b32 s{s_c}, s{s_w}, 1'); a(f's_lshr_b32 s{s_r}, s{s_w}, 1'); a(f's_lshl_b32 s{s_rot}, s{s_t2}, 1')
        a(f's_lshl3_add_u32 s22, s{s_c}, s0'); a('s_addc_u32 s23, s1, 0')
        a(f's_load_dwordx2 s[{sWF}:{sWF+1}], s[22:23], 32')
        for d, off in ((sB2, 48), (sBo, 16), (sWS, 72), (sDBG, 64), (sWQ, 8), (sOUT, 56)): a(f's_load_dwordx2 s[{d}:{d+1}], s[0:1], {off}')
        for d, n in ((sWF, 512*3584), (sWQ, 512*3072), (sB2, 1792*1024), (sBo, 512*1024), (sWS, WSSZ), (sDBG, 256), (sOUT, 2048*1024)):
            a(f's_mov_b32 s{d+2}, {n}'); a(f's_mov_b32 s{d+3}, 0x20000')
        if o('lnprio', 1):
            a(f's_cmp_lt_u32 s{s_w}, 4'); a('s_cbranch_scc1 L_np'); a('s_setprio 1'); a.label('L_np')
        a('v_and_b32 v0, 63, v0')
        a(f'v_lshrrev_b32 v{g}, 4, v0'); a(f'v_and_b32 v{c16}, 15, v0'); a(f'v_lshlrev_b32 v{v_l16}, 4, v0')
        a(f's_lshl_b32 s{s_t0}, s{s_r}, 11'); a(f's_add_u32 s{s_t0}, s{s_t0}, 32768')
        a(f'v_xor_b32 v{T0}, v{c16}, v{g}'); a(f'v_lshl_add_u32 v{T0}, v{T0}, 4, s{s_t0}'); a(f'v_lshl_add_u32 v{v_xe}, v{g}, 8, v{T0}'); a(f'v_xor_b32 v{v_xo}, 64, v{v_xe}')
        M0r, M1r, ONE, WB, K512 = 16, 17, 18, 20, 22
        a(f's_lshl3_add_u32 s{s_t0}, s{s_w}, s{s_xm}'); a(f's_lshl_b32 s{s_t0}, s{s_t0}, 7'); a(f's_add_u32 s{s_t0}, s{s_t0}, 32768')
        a(f'v_xor_b32 v{T0}, v0, v{T1}'); a(f'v_and_b32 v{T0}, 7, v{T0}'); a(f'v_lshl_add_u32 v{T0}, v{T0}, 4, s{s_t0}')
        a(f'v_bfe_u32 v{T2}, v0, 2, 1'); a(f'v_lshl_add_u32 v{T0}, v{T2}, 13, v{T0}'); a(f'v_and_b32 v{T2}, 3, v0'); a(f'v_lshl_add_u32 v{WB}, v{T2}, 8, v{T0}'); a(f'v_add_u32 v{WB+1}, 0x10000, v{WB}')
        a(f'v_cmp_gt_u32 vcc, 2, v{T2}'); a(f'v_and_b32 v{T0}, 16, v{v_l16}'); a(f'v_mov_b32 v{T2}, 0xffff'); a(f'v_lshlrev_b32 v{T0}, v{T0}, v{T2}')
        a(f'v_cndmask_b32 v{M0r}, 0, v{T0}, vcc'); a(f'v_sub_u32 v{M1r}, v{T0}, v{M0r}')
        a(f'v_mov_b32 v{ONE}, 0xbb00bb00'); a(f'v_mov_b32 v{ONE+1}, 0xbb00bb00'); a(f'v_mov_b32 v{K512}, {hex(f2u(1/512))}')
        a(f'v_add_u32 v{T0}, 1, v0'); a(f'v_lshrrev_b32 v{T0}, 3, v{T0}'); a(f'v_lshlrev_b32 v{T0}, 17, v{T0}'); a(f'v_add_lshl_u32 v{vW}, v{T0}, v0, 7')
        a(f'v_lshrrev_b32 v{T0}, 1, v0'); a(f'v_lshl_add_u32 v{vW+1}, v{T0}, 24, v{vW}')
        for i in range(4): a(f'v_mov_b32 v{24+i}, 0')
        a(f'v_and_b32 v{T0}, 0x70, v{v_l16}'); a(f'v_lshlrev_b32 v{T2}, 5, v{g}'); a(f'v_xor_b32 v{v_bv}, v{T0}, v{T2}'); a(f'v_lshl_add_u32 v{v_bv}, v{T1}, 10, v{v_bv}')
        a(f's_and_b32 s{s_t0}, s{s_r}, 1'); a(f's_lshl_b32 s{s_t0}, s{s_t0}, 6')
        a(f'v_and_b32 v{T2}, 32, v{T2}'); a(f'v_xor_b32 v{T0}, v{T0}, v{T2}'); a(f'v_xor_b32 v{T0}, s{s_t0}, v{T0}')
        a(f's_movk_i32 s{s_t1}, 3584'); a(f's_movk_i32 s{s_t3}, 3072')
        a(f'v_mad_u32_u24 v{v_wf}, v{T1}, s{s_t1}, v{T0}'); a(f'v_mad_u32_u24 v{v_wq}, v{T1}, s{s_t3}, v{T0}')
        c8, row = vW+2, vW+3
        a(f'v_and_b32 v{c8}, 3, v0'); a(f'v_bfe_u32 v{row}, v0, 2, 2'); a(f'v_lshl_add_u32 v{row}, v{g}, 3, v{row}')
        a(f's_lshl_b32 s{s_t0}, s{s_c}, 1'); a(f'v_and_b32 v{T0}, 3, v{T1}'); a(f'v_xor_b32 v{T0}, s{s_t0}, v{T0}'); a(f'v_lshlrev_b32 v{T0}, 5, v{T0}')
        a(f'v_lshl_add_u32 v{T0}, v{c8}, 3, v{T0}'); a(f'v_lshl_add_u32 v{v_tr0}, v{row}, 7, v{T0}'); a(f'v_xor_b32 v{v_tr1}, 32, v{v_tr0}')
        a(f's_lshl_b32 s{s_t0}, s{s_c}, 5'); a(f'v_xor_b32 v{T0}, s{s_t0}, v{T2}'); a(f'v_lshl_add_u32 v{T0}, v{c8}, 3, v{T0}'); a(f'v_lshl_add_u32 v{v_trh}, v{row}, 6, v{T0}')
        a(f'v_and_b32 v{T0}, 32, v0'); a(f'v_lshlrev_b32 v{T2}, 4, v{c8}'); a(f'v_xor_b32 v{T0}, v{T0}, v{T2}'); a(f'v_lshrrev_b32 v{T2}, 2, v0')
        a(f's_cmp_ge_u32 s{s_ty}, 2'); a('s_cselect_b64 vcc, -1, 0')
        a(f'v_mad_u32_u24 v{T0}, v{T2}, s{s_t1}, v{T0}'); a(f'v_cndmask_b32 v{v_wq}, v{v_wq}, v{T0}, vcc')
        a(f'v_lshl_add_u32 v{v_fl}, v0, 25, {FV}')
        a(f'v_lshlrev_b32 v{v_P}, 2, v{c16}')
        a(f's_lshl_b32 s{s_t0}, s{s_r}, 12'); a(f's_add_u32 s{s_t0}, s{s_t0}, {bslot(0)}')
        a(f'v_and_b32 v{T0}, 3, v{T1}'); a(f'v_xor_b32 v{T0}, s{s_r}, v{T0}'); a(f'v_lshl_add_u32 v{T0}, v{T0}, 5, s{s_t0}'); a(f'v_lshl_add_u32 v{T0}, v{c8}, 3, v{T0}'); a(f'v_lshl_add_u32 v{v_b2}, v{T2}, 7, v{T0}')
        a(f's_lshl_b32 s{s_t0}, s{s_r}, 2'); a(f'v_and_b32 v{row}, 7, v0'); a(f'v_xor_b32 v{T0}, v{g}, v{row}'); a(f'v_xor_b32 v{T0}, s{s_t0}, v{T0}')
        a(f's_lshl_b32 s{s_t0}, s{s_w}, 13'); a(f'v_lshl_add_u32 v{T0}, v{T0}, 4, s{s_t0}'); a(f'v_lshl_add_u32 v{v_rw}, v{c16}, 8, v{T0}')
        a(f's_lshl_b32 s{s_t0}, s{s_w}, 11'); a(f's_add_u32 s{s_t0}, s{s_t0}, 49152')
        a(f'v_lshlrev_b32 v{T0}, 1, v{row}'); a(f'v_xor_b32 v{T0}, v{T0}, v{T1}'); a(f'v_lshl_add_u32 v{T0}, v{T0}, 4, s{s_t0}'); a(f'v_lshl_add_u32 v{v_rr}, v{T1}, 8, v{T0}')
        vO = v_b3
        a(f'v_cmp_lt_u32 vcc, 31, v0'); a(f'v_lshlrev_b32 v{T0}, 1, v0'); a(f'v_cndmask_b32 v{T0}, v0, v{T0}, vcc')
        a(f'v_add_u32 v{T0}, s{s_rot}, v{T0}'); a(f'v_and_b32 v{T0}, 15, v{T0}'); a(f'v_lshlrev_b32 v{T0}, 5, v{T0}')
        a(f's_cmp_lt_u32 s{s_ty}, 2'); a(f's_cselect_b32 s{s_t3}, s{s_t3}, s{s_t1}')
        a(f'v_cmp_lt_u32 s[20:21], 15, v0'); a(f'v_mov_b32 v{T2}, s{s_t1}'); a(f'v_mov_b32 v{c8}, s{s_t3}'); a(f'v_cndmask_b32 v{T2}, v{T2}, v{c8}, s[20:21]')
        a(f'v_mul_u32_u24 v{vO}, v{T0}, v{T2}')
        a(f'v_lshlrev_b32 v{T0}, 2, v{g}'); a.wait(lg0=True)
        a(f'ds_bpermute_b32 v{T2}, v{T0}, v{vR}')
        for i in range(3, 32): a(f'v_readlane_b32 s{TAB+i}, v{vR}, {i}')
        a(f'v_add_u32 v{vO}, v{vO}, v{T2}')
        self.do(a, ('dma', f'buffer_store_dwordx4 v[24:27], v{v_l16}, {srd(sWS)}, s{s_lead} offen sc1', 'zero'))
        a(f's_min_u32 s{s_hms}, s{s_hms}, 1')
        for k, m in enumerate((0x22222222, 0x44444444, 0x88888888)): a(f's_mov_b32 s{18+2*k}, {hex(m)}'); a(f's_mov_b32 s{19+2*k}, {hex(m)}')
        if self.diag: a('s_mov_b32 s0, s89')
        self.dstamp(a, 0)
        self.typ = 'A'
        self.do(a, self.wprep(0))
        ringpre = [self.wdma(k) + self.wprep(k+1) for k in range(4)]
        warm = [[f'buffer_load_dword v{ACC1+1}, v{vW}, {srd(sB2)}, s{s_wa} offen'], [f'buffer_load_dword v{ACC1+2}, v{vW+1}, {srd(sBo)}, s{s_wb} offen']] if o('bwarm', 1) else []
        S, Q = v_T, v_T+4
        vq = [xload(n) for n in range(n0, 16)]; wq = ringpre + warm
        for G in range(2):
            X = RX + 32*G
            for u in range(16):
                xp = vr(X+2*u, 2)
                a(f'v_mfma_f32_4x4x4_16b_bf16 {vr(S,4)}, {vr(ONE,2)}, {xp}, {vr(S,4) if u else 0}')
                a(f'v_mfma_f32_4x4x4_16b_bf16 {vr(Q,4)}, {xp}, {xp}, {vr(Q,4) if u else 0}')
                if not u & 1:
                    if G == 0:
                        for _ in range(1 if u < o('x2', 10) else 2):
                            if len(vq) > o('xkeep', 0): self.do(a, vq.pop(0))
                    elif u >= o('wu', 0) and wq: self.do(a, wq.pop(0))
            if self.opt.get('fine', 0) & 4: self.fstamp(a, 58 + 2*G)
            if G: a(f'v_xor_b32 v{WB}, 0x80, v{WB}'); a(f'v_xor_b32 v{WB+1}, 0x80, v{WB+1}')
            elif vq: self.do(a, vq.pop(0))
            dp = ['quad_perm:[1,0,3,2]', 'quad_perm:[2,3,0,1]', 'row_half_mirror']
            for k in range(3):
                a(f'v_add_f32_dpp v{S}, v{S}, v{S} {dp[k]} row_mask:0xf bank_mask:0xf')
                a(f'v_cndmask_b32 v{Q}, v{Q}, v{Q+1+k}, s[{18+2*k}:{19+2*k}]')
            a(f'v_mul_f32 v{S+1}, v{S}, v{S}')
            for k in range(3): a(f'v_add_f32_dpp v{Q}, v{Q}, v{Q} {dp[k]} row_mask:0xf bank_mask:0xf')
            a(f'v_fma_f32 v{Q}, v{Q}, v{K512}, -v{S+1}')
            a(f'v_max_f32 v{Q}, 0, v{Q}'); a(f'v_add_f32 v{Q}, {hex(f2u(1e-5))}, v{Q}')
            a(f'v_rsq_f32 v{Q}, v{Q}')
            D = lambda u: WF + 4*(u & 7)
            hi = lambda u: f'v_mfma_f32_4x4x4_16b_bf16 {vr(D(u),4)}, {vr(Q,2)}, {vr(X+2*u,2)}, {vr(S,4)}'
            lo = lambda u: f'v_mfma_f32_4x4x4_16b_bf16 {vr(D(u),4)}, {vr(Q+2,2)}, {vr(X+2*u,2)}, {vr(D(u),4)}'
            cv = lambda u: [f'v_cvt_pk_bf16_f32 v{X+2*u}, v{D(u)}, v{D(u)+1}', f'v_cvt_pk_bf16_f32 v{X+2*u+1}, v{D(u)+2}, v{D(u)+3}']
            wr = lambda i: f'ds_write_b128 v{WB+(i>>2)}, {vr(X+4*i,4)} offset:{(i&3)*16384}'
            def more():
                if vq: self.do(a, vq.pop(0))
                elif G == 1 and wq: self.do(a, wq.pop(0))
            a(f'v_cvt_pk_bf16_f32 v{Q+1}, v{Q}, v{Q}')
            if o('lo', 1):
                for k in (1, 2, 3, 0): a(f'v_mul_f32 v{S+k}, v{S}, v{Q}')
                a(f'v_and_b32 v{Q+2}, 0xffff0000, v{Q+1}'); a(f'v_sub_f32 v{Q+2}, v{Q}, v{Q+2}')
                a(f'v_and_b32 v{Q}, v{M0r}, v{Q+1}'); a(f'v_and_b32 v{Q+1}, v{M1r}, v{Q+1}')
                a(f'v_cvt_pk_bf16_f32 v{Q+3}, v{Q+2}, v{Q+2}')
                a(hi(0)); a(f'v_and_b32 v{Q+2}, v{M0r}, v{Q+3}'); a(hi(1)); a(f'v_and_b32 v{Q+3}, v{M1r}, v{Q+3}'); a(hi(2))
                for u in range(19):
                    if u + 3 < 16: a(hi(u+3))
                    if u >= 3: a(cv(u-3)[0])
                    if u < 16: a(lo(u))
                    if u >= 3:
                        a(cv(u-3)[1])
                        if (u-3) & 1: a(wr((u-3) >> 1))
                    if u in (2, 6, 10, 14): more()
            else:
                a(f'v_and_b32 v{Q+2}, 0xffff0000, v{Q+1}')
                a(f'v_and_b32 v{Q}, v{M0r}, v{Q+1}'); a(f'v_and_b32 v{Q+1}, v{M1r}, v{Q+1}')
                for k in (1, 2, 3, 0): a(f'v_mul_f32 v{S+k}, v{S}, v{Q+2}')
                for u in range(20):
                    if u < 16: a(hi(u))
                    if u >= 4:
                        for x in cv(u-4): a(x)
                        if (u-4) & 1: a(wr((u-4) >> 1))
                    if u in (3, 7, 11, 15): more()
            if self.opt.get('fine', 0) & 4: self.fstamp(a, 59 + 2*G)
        assert not vq
        while wq: self.do(a, wq.pop(0))
        if o('lnprio', 1): a('s_setprio 0')
        a.wait(vm_tok=[self.tok[('W', 0)]], lg0=True); a.barrier()
        self.dstamp(a, 1)
        for x in self.xreads(0) + self.xreads(1) + self.wreads(0): self.do(a, x)
        assert a.done_at_barrier(self.tok['zero'])
        a(f'buffer_store_dword v{v_fl}, v{v_fl}, {srd(sDBG)}, s{s_dbg} offen sc1')
    def wreads(self, s):
        buf = WF + (s & 1)*16; base = (s % RING)*8192; L = []
        for f in range(4):
            p, tf = f >> 1, f & 1
            for rd in range(2):
                if s >= 32 and self.typ == 'B': addr, off = v_trh, base + p*4096 + tf*2048 + rd*256
                else: addr, off = (v_tr1 if tf else v_tr0), base + p*4096 + rd*512
                L.append(('rd', f'ds_read_b64_tr_b16 {vr(buf+4*f+2*rd,2)}, v{addr} offset:{off}', ('W', s)))
        return L
    def breads(self, i):
        buf = WF + (i & 1)*16; L = []; base = bslot(i); pre = []
        if not (0 <= base - self.bwin and base - self.bwin + 16384 <= 65536):
            d = (base - self.bwin) & 0xffffffff
            pre = [f'v_add_u32 v{r}, {hex(d)}, v{r}' for r in self.badr]; self.bwin = base
        for j in range(4):
            for rd in range(2):
                it = ('rd', f'ds_read_b64_tr_b16 {vr(buf+4*j+2*rd,2)}, v{self.badr[j]} offset:{base - self.bwin + rd*2048}', ('B', i))
                L.append([pre[j], it] if pre and rd == 0 else it)
        return L
    def mfmas(self, s):
        buf = WF + (s & 1)*16; L = []; typ = self.typ
        for f in range(4):
            p, tf = f >> 1, f & 1
            for t in range(2):
                w = vr(buf+4*f, 4); swap = False
                if s >= 40:
                    i = s - 40; acc = ACC3 + (f*2+t)*4; x = vr(self.aslot(2*i+t), 4)
                    C = vr(acc, 4) if i else 0
                else:
                    if s < 32:
                        ks = s & 15; acc = (ACC0 if s < 16 else ACC1) + (f*2+t)*4
                        swap = (s >= 16 and typ == 'A' and p == 1)
                    else:
                        u, cidx = (p, tf) if typ == 'A' else (tf, p)
                        ks = 2*(s-32) + u; acc = ACC0 + (cidx*2+t)*4
                    x = vr(XF+(2*ks+t)*4, 4); C = vr(acc, 4) if ks else 0
                A, B = (x, w) if swap else (w, x)
                L.append(f'v_mfma_f32_16x16x32_bf16 {vr(acc,4)}, {A}, {B}, {C}')
        return L
    def silu_batch(self, G, U, O, T, t):
        L = [f'v_mul_f32 v{T+r}, {hex(f2u(-LOG2E))}, v{G+r}' for r in range(4)]
        for r in range(4): L += [f'v_exp_f32 v{T+r}, v{T+r}', f'v_mul_f32 v{U+r}, v{G+r}, v{U+r}']
        L += [f'v_add_f32 v{T+r}, 1.0, v{T+r}' for r in range(4)]
        L += [f'v_rcp_f32 v{T+r}, v{T+r}' for r in range(4)]
        L += [f'v_mul_f32 v{U+r}, v{U+r}, v{T+r}' for r in range(4)]
        L += [f'v_cvt_pk_bf16_f32 v{O}, v{U}, v{U+1}', f'v_cvt_pk_bf16_f32 v{O+1}, v{U+2}, v{U+3}']
        return L
    def hstore(self, regs, t, istep, key):
        return [[f's_add_u32 s{s_t3}, s{s_hst}, {t*73728 + istep*1024}',
                 ('dma', f'buffer_store_dwordx4 {vr(regs,4)}, v{v_l16}, {srd(sWS)}, s{s_t3} offen sc1', key)]]
    def ffn_epi(self, acc, istep, key):
        L = []
        for t in range(2):
            O = acc + t*4
            for tf in range(2):
                L += self.silu_batch(acc + (tf*2+t)*4, acc + ((2+tf)*2+t)*4, O + 2*tf, v_T + 4*tf, t)
            L += self.hstore(O, t, istep, (key, t))
        return L
    def kv_pre(self):
        T = v_T; L = []
        for t in range(2): L.append(f'v_mul_f32 v{28+t}, {hex(f2u(-1/LOG2E))}, v{self.c1[t]}')
        L += ['v_mov_b32 v17, 0', 'v_mov_b32 v19, 0', 'v_mov_b32 v20, 0x3e803e80', 'v_mov_b32 v21, 0x3e803e80']
        for t in range(2): L.append(f'v_and_b32 v{22+t}, 0xffff0000, v{28+t}')
        for t in range(2): L.append(f'v_sub_f32 v{24+t}, v{28+t}, v{22+t}')
        for t in range(2): L.append(f'v_cvt_pk_bf16_f32 v{16+2*t}, v{22+t}, v{24+t}')
        for t in range(2): L.append(f'v_mfma_f32_16x16x16_bf16 {vr(T+4*t,4)}, {vr(16+2*t,2)}, v[20:21], 0')
        return L
    def kv_epi(self):
        L = []; T = v_T
        K = lambda hh, t: ACC1 + (hh*2+t)*4
        V = lambda hh, t: ACC1 + 16 + (hh*2+t)*4
        pk = lambda d, s: [f'v_cvt_pk_bf16_f32 v{d}, v{s}, v{s+1}', f'v_cvt_pk_bf16_f32 v{d+1}, v{s+2}, v{s+3}']
        sk = lambda hh, t: []
        sv = lambda hh, t: []
        L += sk(0,1) + sk(1,1) + pk(v_KP, K(0,1)) + pk(v_KP+2, K(1,1))
        L += [('dma', f'buffer_store_dwordx4 {vr(v_KP,4)}, v{v_l16}, {srd(sWS)}, s{s_ha} offen sc1', ('halo', 0))]
        L += sv(0,1) + sv(1,1) + pk(K(0,1), V(0,1)) + pk(K(0,1)+2, V(1,1))
        L += [('dma', f'buffer_store_dwordx4 {vr(K(0,1),4)}, v{v_l16}, {srd(sWS)}, s{s_ha} offen offset:1024 sc1', ('halo', 1))]
        L += sk(0,0) + sk(1,0) + pk(v_KP+4, K(0,0)) + pk(v_KP+6, K(1,0)) + sv(0,0) + sv(1,0)
        L += pk(16, V(0,1)) + pk(18, V(0,0)) + pk(24, V(1,0)) + pk(26, V(1,1))
        return L
    def half_epi(self):
        X = ACC0 + 16; L = []
        for t in range(2): L += self.silu_batch(ACC0 + t*4, ACC0 + (2+t)*4, X + 2*t, v_T + 4*t, t)
        L += [f'v_lshrrev_b32 v{v_T}, 9, v{v_l16}', f'v_mul_u32_u24 v{v_T}, {73728-512}, v{v_T}', f'v_add_u32 v{v_T}, v{v_T}, v{v_l16}']
        L += [f'v_permlane32_swap_b32 v{X}, v{X+2}', f'v_permlane32_swap_b32 v{X+1}, v{X+3}']
        L += [('dma', f'buffer_store_dwordx4 {vr(X,4)}, v{v_T}, {srd(sWS)}, s{s_hs2} offen sc1', 'fin')]
        return L
    def att_pre(self):
        cur = [0]*4; prv = [0]*4
        for l in range(64):
            t, g = l & 15, l >> 4
            for r in range(4):
                i = 4*g + r
                if (i ^ t) & 1: continue
                if i <= t: cur[r] |= 1 << l
                else: prv[r] |= 1 << l
        MP = [14, 16, 18, 22, 74, 76, 78, 80, 82, 56]
        sm = lambda k: f's[{MP[k]}:{MP[k]+1}]'
        L = []
        def setm(k, m): L.extend([f's_mov_b32 s{MP[k]}, {hex(m & 0xffffffff)}', f's_mov_b32 s{MP[k]+1}, {hex(m >> 32)}'])
        for r in range(4): setm(r, cur[r]); setm(4+r, prv[r])
        setm(8, cur[0] | cur[1]); setm(9, cur[2] | cur[3])
        Mc, Mp, Mp0, Ac, Ap, ONES, NEG, HM, CQ = self.am
        L += [f'v_mov_b32 v{NEG}, {hex(f2u(-1e30))}']
        L += [f'v_cndmask_b32 v{Mc+r}, v{NEG}, 0, {sm(r)}' for r in range(4)]
        L += [f'v_cndmask_b32 v{Mp+r}, v{NEG}, 0, {sm(4+r)}' for r in range(4)]
        L += [[f's_cmp_eq_u32 s{s_hms}, 0', f's_cselect_b64 {sm(0)}, 0, -1']]
        L += [f'v_cndmask_b32 v{Mp0+r}, v{NEG}, v{Mp+r}, {sm(0)}' for r in range(4)]
        L += [f's_mov_b32 s{MP[1]}, 0xaaaaaaaa', f's_mov_b32 s{MP[1]+1}, 0xaaaaaaaa', f'v_mov_b32 v{HM}, 0xffff', f'v_mov_b32 v{NEG}, 0xffff0000',
              f'v_cndmask_b32 v{HM}, v{HM}, v{NEG}, {sm(1)}']
        L += [f'v_cndmask_b32 v{Ac+d}, 0, v{HM}, {sm(8+d)}' for d in range(2)]
        L += [f'v_xor_b32 v{Ap+d}, v{HM}, v{Ac+d}' for d in range(2)]
        L += [f'v_mov_b32 v{ONES+i}, 0x3f803f80' for i in range(4)]
        L += [f'v_mov_b32 v{CQ}, {hex(f2u(0.25*LOG2E))}']
        return L
    def attention(self):
        Mc, Mp, Mp0, Ac, Ap, ONES, NEG, HM, CQ = self.am
        L = []; a = L.append
        Qa = lambda hh, t: ACC0 + (hh*2+t)*4
        units = [(0,0),(1,0),(0,1),(1,1)]
        for hh, t in units:
            q = Qa(hh, t); a(f'v_cvt_pk_bf16_f32 v{q}, v{q}, v{q+1}'); a(f'v_cvt_pk_bf16_f32 v{q+1}, v{q+2}, v{q+3}')
        Kc = lambda hh, t: v_KP + (4 if t == 0 else 0) + 2*hh
        Kp = lambda hh, t: 28 + 2*hh if t == 0 else Kc(hh, 0)
        Sg = lambda u: ACC1 + 8*u
        for u, (hh, t) in enumerate(units):
            a(f'v_mfma_f32_16x16x16_bf16 {vr(Sg(u)+4,4)}, {vr(Kc(hh,t),2)}, {vr(Qa(hh,t),2)}, {vr(Mc,4)}')
        for u, (hh, t) in reversed(list(enumerate(units))):
            if u == 1: a('HALO')
            a(f'v_mfma_f32_16x16x16_bf16 {vr(Sg(u),4)}, {vr(Kp(hh,t),2)}, {vr(Qa(hh,t),2)}, {vr(Mp0 if t == 0 else Mp,4)}')
        m = [v_T+u for u in range(4)]
        for u in (3, 2, 1, 0):
            S = Sg(u)
            a(f'v_max3_f32 v{S}, v{S}, v{S+1}, v{S+4}'); a(f'v_max3_f32 v{S+2}, v{S+2}, v{S+3}, v{S+6}')
            a(f'v_max_f32 v{S}, v{S}, v{S+5}'); a(f'v_max_f32 v{S+2}, v{S+2}, v{S+7}')
            a(f'v_max_f32 v{m[u]}, v{S}, v{S+2}')
        a(f'v_permlane32_swap_b32 v{m[2]}, v{m[3]}'); a(f'v_permlane32_swap_b32 v{m[0]}, v{m[1]}')
        a(f'v_max_f32 v{m[2]}, v{m[2]}, v{m[3]}'); a(f'v_max_f32 v{m[0]}, v{m[0]}, v{m[1]}')
        a(f'v_permlane16_swap_b32 v{m[0]}, v{m[2]}')
        a(f'v_max_f32 v{m[1]}, v{m[0]}, v{m[2]}'); a(f'v_max_f32 v{m[3]}, v{m[0]}, v{m[2]}')
        a(f'v_permlane16_swap_b32 v{m[1]}, v{m[3]}')
        a(f'v_mul_f32 v{m[0]}, v{CQ}, v{m[1]}'); a(f'v_mul_f32 v{m[2]}, v{CQ}, v{m[3]}')
        a(f'v_mul_f32 v{m[1]}, v{CQ}, v{m[1]}'); a(f'v_mul_f32 v{m[3]}, v{CQ}, v{m[3]}')
        a(f'v_permlane32_swap_b32 v{m[0]}, v{m[1]}'); a(f'v_permlane32_swap_b32 v{m[2]}, v{m[3]}')
        for u, (hh, t) in enumerate(units):
            S = Sg(u)
            a(f'v_fma_f32 v{S}, v{S}, v{CQ}, -v{m[u]}'); a(f'v_fma_f32 v{S+2}, v{S+2}, v{CQ}, -v{m[u]}')
        for u in range(4):
            S = Sg(u); a(f'v_exp_f32 v{S}, v{S}'); a(f'v_exp_f32 v{S+2}, v{S+2}')
        Vw = {(0,0): 18, (0,1): 16, (1,0): 22, (1,1): 24}
        for u, (hh, t) in enumerate(units):
            S = Sg(u); P = S + 4
            a(f'v_cvt_pk_bf16_f32 v{S}, v{S}, v{S}'); a(f'v_cvt_pk_bf16_f32 v{S+2}, v{S+2}, v{S+2}')
            first, second = (Ac, Ap) if hh == 0 else (Ap, Ac)
            a(f'v_and_b32 v{P}, v{first}, v{S}'); a(f'v_and_b32 v{P+1}, v{first+1}, v{S+2}')
            a(f'v_and_b32 v{P+2}, v{second}, v{S}'); a(f'v_and_b32 v{P+3}, v{second+1}, v{S+2}')
        for u, (hh, t) in enumerate(units):
            S = Sg(u); P = S + 4
            a(f'v_mfma_f32_16x16x32_bf16 {vr(S,4)}, {vr(ONES,4)}, {vr(P,4)}, 0')
            a(f'v_mfma_f32_16x16x32_bf16 {vr(Qa(hh,t),4)}, {vr(Vw[(hh,t)],4)}, {vr(P,4)}, 0')
        a(lambda a_: self.busy.clear())
        for u in range(4): a(f'v_rcp_f32 v{Sg(u)}, v{Sg(u)}')
        for t in range(2):
            O = v_KP + 4*t
            for hh in range(2):
                u = units.index((hh, t)); q = Qa(hh, t)
                for r in range(4): a(f'v_mul_f32 v{q+r}, v{q+r}, v{Sg(u)}')
                a(f'v_cvt_pk_bf16_f32 v{O+2*hh}, v{q}, v{q+1}'); a(f'v_cvt_pk_bf16_f32 v{O+2*hh+1}, v{q+2}, v{q+3}')
            L += self.hstore(O, t, 14, 'fin')
        return L
    def step(self, a, mf, reads, misc, prep, valu, quota, endwait, barrier=True, extra=(), head=()):
        reads = list(reads); prep = list(prep); used = 0
        rp = [int(c) for c in str(self.o('rp', 12111110))]
        vp = [int(c) for c in str(self.o('vp', 1111111))]
        order = [0, 2, 4, 1, 3, 5, 6]
        slot = {g: [] for g in range(8)}
        for n, grp in enumerate(misc): slot[sorted(order[:len(misc)])[n] if len(misc) <= 7 else min(n, 6)].append(list(grp))
        toks = []; xt = []; self.xg = [int(c) for c in str(self.o('xg', 45))]
        for k, m in enumerate(mf):
            a(m)
            if k == 0: self.do(a, list(head))
            if slot[k]:
                g0 = slot[k][0]
                while g0 and isinstance(g0[0], str) and g0[0].startswith('s_add'): a(g0.pop(0))
            for _ in range(rp[k]):
                if reads: self.do(a, reads.pop(0)); toks.append(a.nid)
            for grp in slot[k]: self.do(a, grp)
            if k == 3 and prep: self.do(a, prep.pop(0))
            if k in self.xg and extra: self.do(a, extra.pop(0)); xt.append(a.nid)
            if k < 7:
                lim = quota*sum(vp[:k+1])/sum(vp)
                while valu and valu[0] != 'HALO' and used + self.weight(valu[0]) <= lim + 0.01 + (3 if isinstance(valu[0], list) else 0):
                    it = valu.pop(0); used += self.weight(it); self.do(a, it)
            if k == 3: a.wait(lg_tok=self.prev_toks)
            if k == 6: a.wait(vm_tok=[self.tok[k_] for k_ in endwait if k_ in self.tok], lg_tok=toks[:4])
        assert not reads and not prep
        self.prev_toks = toks
        if barrier: a.barrier()
    def main(self, a, typ):
        o = lambda k, d: self.opt.get(k + typ, self.opt.get(k, d))
        self.typ = typ; A = typ == 'A'
        self.badr = [v_b2, v_wf, v_wq, v_b3]; self.bwin = bslot(0)
        am0 = XF + 64
        self.am = (am0, am0+4, am0+8, am0+12, am0+14, am0+16, am0+20, am0+21, am0+22)
        self.XR = XF + 88
        self.busy = set(range(XF, XF+128))
        a.wait(vm_tok=[self.tok[('W', 1)]], lg0=True); a.barrier()
        self.prev_toks = []
        valu = []
        border = list(range(14)); bpat = str(o('bpat', 10)); b0 = o('b0', 5)
        D = RING - 1
        nb = 0; na = 0; nbb = 7*2; st = 0
        bper = o('bper', 2); f0 = o('f0', 27); q0 = o('q0', 32); c0 = o('c0', 35)
        fh = o('fh', 35); qh = o('qh', 38); ch = o('ch', 40)
        q1 = o('q1', 44); c1 = o('c1', 46); q2 = o('q2', 46); c2 = o('c2', 48); q3 = o('q3', 49); c3 = o('c3', 51)
        flagged = set()
        for s in range(58):
            misc = []; prep = []
            i = s - 40
            if s < 39: reads = self.wreads(s+1)
            elif s < 57: reads = self.breads(i+1)
            else: reads = []
            if s == 0: misc.append(self.wdma(4) + self.wprep(5))
            if s + D < 40: misc.append(self.wdma(s + D))
            if s + D + 1 < 40: prep = self.wprep(s + D + 1)
            pfs = [int(c) for c in str(o('pfs', '34')).split(',')] if o('pf', 1) else []
            if s in pfs:
                k_ = pfs.index(s)
                if o('pf', 1) == 1:
                    vp_ = v_ST
                    L_ = [[f'v_lshrrev_b32 v{vp_}, 6, v{v_l16}', f'v_lshlrev_b32 v{vp_}, 18, v{vp_}', f'v_add_lshl_u32 v{vp_}, v{vp_}, v{v_l16}, 6',
                           f'buffer_load_dword v{v_xo}, v{vp_}, {srd(sB2)}, s{s_pf2} offen offset:384'], [f'buffer_load_dword v{vp_}, v{vp_}, {srd(sBo)}, s{s_pfo} offen offset:384']]
                    assert s >= 14
                    misc.append(L_[k_] if len(pfs) == 2 else L_[0] + L_[1])
                else:
                    pre = [f'v_lshrrev_b32 v{v_b2}, 7, v{v_l16}', f'v_lshlrev_b32 v{v_b2}, 21, v{v_b2}', f'v_add_lshl_u32 v{v_b2}, v{v_b2}, v{v_l16}, 3'] if k_ == 0 else []
                    misc.append(pre + [f'buffer_load_dword v{v_ST+2+(k_ & 1)}, v{v_b2}, {srd(sB2 if k_ < 4 else sBo)}, s{s_pf2 if k_ < 4 else s_pfo} offen offset:{(k_ % 4)*1024}'])
            if s >= b0 and bpat[(s-b0) % len(bpat)] == '1' and nb < 14: misc.append(self.bdma_rot(border[nb])); nb += 1
            if s == 8: misc.append(self.poll_issue(sDBG, 0, FV))
            if s == 13: misc.append(self.poll_check(sDBG, 0, FV, 0xffff))
            quota = o('qa', 9)
            extra = self.xreads(s+2) if s < 14 else []
            if s == 16:
                assert not valu
                valu += self.ffn_epi(ACC0, 4 if A else 0, 'h0')
            if 16 <= s < 32: quota = o('qb', 17)
            if s == 32:
                assert not valu
                valu += self.kv_epi() if A else self.ffn_epi(ACC1, 8, 'h1')
            if 32 <= s < 40: quota = o('qc', 17)
            if s == 36:
                misc.append([f'v_xor_b32 v{self.badr[j]}, {j*32}, v{self.badr[0]}' for j in (1, 2, 3)])
            if 33 <= s <= 40: self.busy -= set(range(XF + 16*(s-33), XF + 16*(s-32)))
            if s == 38:
                if A: self.busy |= set(range(am0, am0+24)); valu += self.att_pre()
            if s == 40:
                valu += self.attention() if A else self.half_epi()
                self.dstamp(a, 4)
            if s == o('ra', 50):
                misc.append([f'buffer_load_dwordx4 v[0:3], v{v_oa}, {srd(sX)}, s{s_red} offen']); assert not valu
            if s == 56:
                valu += [f'v_xor_b32 v{v_T+j_}, {j_*64}, v{v_rw}' for j_ in (1, 2, 3)] + [f'v_xor_b32 v{v_T}, 16, v{v_rr}']
                for j_ in range(4): valu += [f'v_lshlrev_b32 v{8+2*j_}, 16, v{j_}', f'v_and_b32 v{9+2*j_}, 0xffff0000, v{j_}']
            if s >= 40: quota = o('qd', 100)
            for n_, k_ in enumerate(('sa', 'sb', 'sc')):
                if self.opt.get(k_, -1) == s: self.dstamp(a, 5 + n_, force=True)
            if s == 16: self.dstamp(a, 2)
            if s == 32: self.dstamp(a, 3)
            head = []; sp = o('sp', 1)
            def P(q, c, d, n, soff, line, woff, mask, extra=None, stamp=None):
                st_ = [lambda a: self.dstamp(a, stamp)] if stamp else []
                if s == q:
                    if sp: head.extend(self.spoll_issue(d, n, soff, line + woff))
                    else: misc.append(self.poll_issue(sWS, f's{soff}', line))
                if s == c:
                    if sp: head.extend(self.spoll_check(d, n, soff, line, mask, extra) + st_)
                    else: misc.append(self.poll_check(sWS, f's{soff}', line, mask) + st_)
            if s == f0: misc.append(self.flag(('h0', 1), 0))
            P(q0, c0, 16, 8, s_pl, 0, 0, 0xff, stamp=5)
            if s == c0: st = 1
            if A and s == fh: misc.append(self.flag(('halo', 1), 3))
            if A: P(qh, ch, 12, 1, s_hl, 0, 0, f's{s_hms}', extra=s_hms)
            if A and s == ch:
                misc.append([f's_cmp_eq_u32 s{s_hms}, 0', f's_cselect_b32 s{s_t1}, {OOB}, s{s_ha}', f's_sub_u32 s{s_t1}, s{s_t1}, 32768',
                             f'buffer_load_dwordx4 {vr(28,4)}, v{v_l16}, {srd(sWS)}, s{s_t1} offen sc1',
                             f'buffer_load_dwordx4 {vr(20,4)}, v{v_l16}, {srd(sWS)}, s{s_t1} offen offset:1024 sc1'])
            if A and s == ch + o('hlag', 1): valu.remove('HALO')
            if not valu and 'fin' in self.tok and not flagged and s >= self.at.setdefault('fin', s) + o('flag2', 1): misc.append(self.flag('fin', 2 if A else 1)); flagged.add(2)
            if s == q1: assert not any(isinstance(x, str) and 's[' in x and 'cndmask' in x for x in valu)
            P(q1, c1, 16, 4, s_pl, 128, 16, 0xf0, stamp=6)
            if s == c1:
                assert A or flagged
                st = 3
            P(q3, c3, 20, 4, s_pl, 256, 0, 0x0f, stamp=7)
            if s == c3:
                assert flagged
                st = 4
            plp = str(o('plp', 43))
            budget = o('pe', 2) if s < 40 else int(plp[(s-40) % len(plp)])
            pat = o('pat', '')
            if pat and s >= 33: budget = int((pat[1:] + '4'*30)[s-33])
            lim = [0, 16, 24, 28, 36][st]
            def b_ok():
                if nbb >= 36: return False
                k = nbb >> 1
                return s >= ({7: 36, 8: 38, 9: 40}[k] if k < 10 else 40 + k - 9)
            def a_ok(): return na < lim and (na < NA or i > (na - NA) >> 1) and not (set(range(self.aslot(na), self.aslot(na)+4)) & self.busy)
            while budget > 0:
                da = (na >> 1) if a_ok() else 99
                db = (nbb >> 1) - o('bahead', 2) if b_ok() else 99
                if min(da, db) == 99: break
                if da <= db: misc.append(self.aload(na)); na += 1
                else: misc.append(self.bdma(nbb >> 1, nbb & 1)); nbb += 1
                budget -= 1
            while s >= 39 and s < 57 and na < 2*(i+1) + 2:
                assert a_ok(), (s, na); misc.append(self.aload(na)); na += 1
            if o('verbose', 0): sys.stderr.write(f'{typ} step {s}: na {na} nbb {nbb} valu {len(valu)} flagged {flagged} misc {len(misc)}\n')
            if self.opt.get('fine', 0) & 1 and o('fs', 4) < s < 40: self.fstamp(a, s)
            if self.opt.get('fine', 0) & 2 and s >= 40: self.fstamp(a, s)
            ew = [('W', s+2)] if s < 38 else [('B', i+2, 0), ('B', i+2, 1), ('A', 2*i+2), ('A', 2*i+3)]
            lb = o('lb', 54)
            if s == lb:
                assert nbb == 36; ew += [('B', 17, 1)]
            self.redw = [f'ds_write_b128 v{v_T+j_ if j_ else v_rw}, {vr(ACC3 + (j_*2+t)*4, 4)} offset:{49152 + t*4096}' for j_ in range(4) for t in range(2)]
            if s == 57 and o('tw', 1):
                mf = self.mfmas(s); k0 = o('tw', 1) + 2
                for k_, m_ in enumerate(mf):
                    a(m_)
                    if k_ >= k0: a(self.redw.pop(0))
                continue
            self.step(a, self.mfmas(s), reads, misc, prep, valu, quota, ew, barrier=(s <= lb), extra=extra, head=head)
        assert not valu and na == 36 and nbb == 36
        self.dstamp(a, 8)
        for x in self.redw: a(x)
        a.wait(lg0=True); a.barrier()
        for k in range(4):
            for hf in range(2): a(f'ds_read_b128 {vr(WF+8*k+4*hf,4)}, v{v_T if hf else v_rr} offset:{k*16384}')
        for k in range(4):
            for e in range(8): a(f'v_add_f32 v{8+e}, v{8+e}, v{WF+8*k+e}')
        for k in range(4): a(f'v_cvt_pk_bf16_f32 v{k}, v{8+2*k}, v{9+2*k}')
        a(f'buffer_store_dwordx4 v[0:3], v{v_oa}, {srd(sOUT)}, s{s_red} offen sc0 sc1')
    def finish(self, a):
        if self.diag:
            a.wait(vm0=True)
            a(f's_memtime s[{s_st}:{s_st+1}]'); a(f's_memrealtime s[16:17]'); a.wait(lg0=True)
            a(f's_lshl_b32 s{s_t0}, s2, 3'); a(f's_add_u32 s{s_t0}, s{s_t0}, s{s_w}'); a(f's_lshl_b32 s{s_t0}, s{s_t0}, 6'); a(f's_add_u32 s{s_t0}, s{s_t0}, {STAMP - FV}')
            regs = [0] + [s_st+2+i for i in range(8)] + [1, 1] + [s_st, 3, 16]
            for i, s in enumerate(regs):
                a(f'v_mov_b32 v0, s{s}'); a(f'buffer_store_dword v0, v{v_fl}, {srd(sWS)}, s{s_t0} offen offset:{4*i}')
            if self.opt.get('fine'):
                a(f's_lshl_b32 s{s_t0}, s2, 3'); a(f's_add_u32 s{s_t0}, s{s_t0}, s{s_w}'); a(f's_lshl_b32 s{s_t0}, s{s_t0}, 8'); a(f's_add_u32 s{s_t0}, s{s_t0}, {STAMP+0x40000}')
                a(f'v_lshrrev_b32 v0, 2, v{v_l16}'); a(f'buffer_store_dword v{v_P2}, v0, {srd(sWS)}, s{s_t0} offen')
            if 'enc' in self.opt:
                i = self.opt['enc']; self.nlab += 1; n = self.nlab
                if i < 0: a(f's_mov_b32 s{s_t1}, 0')
                elif i == 9: a(f's_sub_u32 s{s_t1}, s16, s3')
                else: a(f's_lshr_b32 s{s_t1}, s{s_st+2+i if i < 8 else 1}, 16')
                a(f's_add_u32 s{s_t1}, s{s_t1}, 4000')
                a.label(f'L_enc{n}')
                a(f's_memrealtime s[{s_st}:{s_st+1}]'); a.wait(lg0=True)
                a(f's_sub_u32 s{s_st}, s{s_st}, s3'); a(f's_cmp_lt_u32 s{s_st}, s{s_t1}'); a(f's_cbranch_scc1 L_enc{n}')
        a('s_endpgm')
    def build(self):
        self.tok = {}; self.lds_key = {4+k: ('X', k) for k in range(16)}; self.lds_rd = {4+k: [] for k in range(16)}; self.lds_wr = {4+k: [] for k in range(16)}
        a = Asm()
        self.prologue(a)
        a(f's_cmp_ge_u32 s{s_ty}, 2'); a('s_cbranch_scc1 L_typeB')
        parts = [a]
        base = copy.deepcopy((self.tok, self.lds_key, self.lds_rd, self.lds_wr))
        for typ in 'AB':
            b = a.fork(); self.tok, self.lds_key, self.lds_rd, self.lds_wr = copy.deepcopy(base); self.at = {}
            if typ == 'B': b.raw('.p2align 6'); b.label('L_typeB')
            self.main(b, typ)
            self.finish(b)
            parts.append(b)
        hdr = open('parallel_sum__sliding_local_dilated__glu_gated_swiglu__prompt.s.ref').read().split('\n')
        H = [l for l in hdr if l.startswith(';') and '@launch' not in l]
        H.append('; @launch grid=(256,1,1) block=(512,1,1) lds=163840')
        H += ['.amdgcn_target "amdgcn-amd-amdhsa--gfx950"', '.text', f'.globl {KN}', '.p2align 8', f'.type {KN},@function', f'{KN}:']
        T = ['L_end:', '    s_endpgm'] + self.slow + ['L_codeend:'] + table()
        T += ['.section .rodata,"a"', '.p2align 6', f'.amdhsa_kernel {KN}', '  .amdhsa_next_free_vgpr 256', '  .amdhsa_next_free_sgpr 102',
              '  .amdhsa_accum_offset 256', '  .amdhsa_group_segment_fixed_size 0', '  .amdhsa_kernarg_size 80', '  .amdhsa_user_sgpr_count 2',
              '  .amdhsa_user_sgpr_kernarg_segment_ptr 1', '  .amdhsa_system_sgpr_workgroup_id_x 1', '.end_amdhsa_kernel']
        sys.stderr.write('instr: ' + ' '.join(f'{p.ninst}(+{p.nnop} nops)' for p in parts) + '\n')
        return '\n'.join(H) + '\n' + ''.join(p.text() for p in parts) + '\n'.join(T) + '\n'

if __name__ == '__main__':
    out = sys.argv[1]; diag = 'diag' in sys.argv[2:]
    opt = {k: (int(v) if v.lstrip('-').isdigit() and not k.startswith('pfs') else v) for k, v in (x.split('=') for x in sys.argv[2:] if '=' in x)}
    DEF = dict(qb=24, f0=25, q0=31, c0=33, q1A=43, c1A=44, q3A=48, c3A=50, patA='p1122233363333333333', patB='p0023232533333333333', fh=34, qh=37, ch=39)
    if 'nodef' not in opt: opt = {**DEF, **opt}
    open(out, 'w').write(Gen(diag=diag, opt=opt).build())
```

```python
import sys, struct, math, copy
from asmlib import Asm, Ins

KN = 'parallel_sum__sliding_local_dilated__glu_gated_swiglu__prompt_kernel'
def f2u(x): return struct.unpack('<I', struct.pack('<f', x))[0]

HALO = 0xA00000; FLAGS = 0xC00000; STAMP = 0xD00000; WSSZ = 0xE00000
OOB = 0x40000000
LOG2E = 1.4426950408889634
FV = 64

sX, sWF, sWQ, sB2, sBo, sWS, sDBG, sOUT = 24, 28, 32, 36, 40, 44, 48, 52
TAB = 56
REC = ['wo0', 'wo1', 'wo2', 'wm', 'bm', 'b2', 'b2h', 'bo', 'hst', 'hs2', 'fl', 'pl', 'hl', 'hms', 'ha', 'al', 'oo',
       'bg0', 'bg1', 'bg2', 'bg3', 'bl0', 'bl1', 'bl2', 'bl3', 'wa', 'wb', 'lead', 'dbg', 'pf2', 'pfo', 'red']
(s_wo0, s_wo1, s_wo2, s_wm, s_bm, s_b2, s_b2h, s_bo, s_hst, s_hs2, s_fl, s_pl, s_hl, s_hms, s_ha, s_al, s_oo,
 s_bg, _, _, _, s_bl, _, _, _, s_wa, s_wb, s_lead, s_dbg, s_pf2, s_pfo, s_red) = range(TAB, TAB+32)
s_w, s_r, s_c, s_ty, s_t0, s_t1, s_t2, s_t3, s_rot, s_wt, s_xo, s_xm = 4, 5, 6, 7, 8, 9, 10, 11, 13, 14, 15, 16
s_cnt = 7; s_xa = 17; s_nl2e = 21
s_pc = 18
s_m = 72
s_st = 90
CTS = int(([x.split('=')[1] for x in sys.argv if x.startswith('cts=')] + [2])[0])
def record(wg, w):
    xcd, j = wg & 7, wg >> 3
    kp, ty, rb, rb64, ct = xcd & 3, j & 3, (xcd >> 2)*8 + (j >> 2), xcd*4 + (j >> 3), (j + CTS) & 7
    r, c = w >> 1, w & 1; A = ty < 2; R = {}
    R['wo0'] = (896*kp + 128*(2 + ty if A else ty - 2), r*8*3584)
    R['wo1'] = (128*(2*kp+ty) + 1024, r*8*3072 + c*1024) if A else (R['wo0'][0] + 512, R['wo0'][1])
    R['wo2'] = (128*(2*kp+ty), r*8*3072 + c*32*3072) if A else (896*kp + 768 + 64*(ty-2), r*16*3584)
    R['wm'] = (0, c*4096 + r*1024); R['bm'] = (0, w*2048)
    R['b2'] = (ct*128, r*448*1024 + c*16384); R['b2h'] = (ct*128, r*448*1024 + c*8192); R['bo'] = (ct*128, r*128*1024 + c*16384)
    h = 4*rb*2*73728 + kp*18*1024
    R['hst'] = (h + (ty & 1)*2048, r*2*73728 + c*1024); R['hs2'] = (h + (ty & 1)*1024 + 12*1024, r*2*73728 + c*512)
    R['fl'] = (FLAGS - FV + (16*rb + kp)*512 + ty*8, r*2048 + c*4)
    R['pl'] = (FLAGS + 8*rb64*512, c*2048 + r*512)
    R['hl'] = (R['fl'][0] + FV - 2048 + 384, R['fl'][1])
    R['hms'] = (rb, r)
    R['ha'] = (HALO + (64*rb + 4*kp + 2*(ty & 1))*2048, (16*r + c)*2048)
    R['al'] = (2*rb64*2*73728, c*2*73728 + r*18*1024)
    R['oo'] = (rb64*65536 + ct*128, c*32768 + r*32)
    for p in range(4):
        q = (p + rb64) & 3
        R[f'bg{p}'] = ((q >> 1)*32768 + (q & 1)*8192 + R['b2'][0], R['b2'][1]); R[f'bl{p}'] = ((q >> 1)*16384 + (q & 1)*1024, w*2048)
    R['wa'] = (wg*8*896, w*896); R['wb'] = (wg*8*256, w*256)
    R['pf2'] = ((448*(j >> 3) + 192 + 32*(j & 7))*1024, w*4096); R['pfo'] = (j*16*1024, w*2048)
    lead = kp == 0 and ty == 0
    R['lead'] = (FLAGS + rb*8192 if lead else OOB, w*1024)
    R['dbg'] = (rb*4 if lead else OOB, 0 if w == 0 else 4096)
    R['red'] = (rb64*65536 + ct*128, w*8192)
    return [R[k] for k in REC]
def table():
    L = []
    for nm, wg0 in (('A', 0), ('B', 16)):
        L.append(f'.macro rec{nm} ' + ', '.join(f'p{i}' for i in range(32)))
        for w in range(8): L.append('.long ' + ', '.join(f'\\p{i}+{g}' for i, (f, g) in enumerate(record(wg0, w))))
        L.append('.endm')
    L += ['.p2align 7', '.type L_tab,@object', 'L_tab:']
    for wg in range(256): L.append(('recA ' if ((wg >> 3) & 3) < 2 else 'recB ') + ', '.join(str(f) for f, g in record(wg, 0)))
    L.append('.size L_tab, 262144')
    return L
def srd(b): return f's[{b}:{b+3}]'

ACC0, ACC1, WF = 0, 32, 64
v_l16, v_tr0, v_tr1, v_wf, v_wq, v_bv, v_fl, v_pl, v_P, v_b2, v_b3, v_P2, v_ST = range(96, 109)
v_KP = 112; v_T = 120
v_trh = v_KP
v_wh = v_wq
v_xe, v_xo, v_oa, v_rw = v_ST, v_ST+1, v_ST+2, v_ST+3
v_rr = v_pl
XF = 128
ACC3 = 224
NA = 24
def vr(b, n): return f'v[{b}:{b+n-1}]' if n > 1 else f'v{b}'

RING = 6
def bslot(i):
    i %= 10
    return 49152 + 16384*i if i < 7 else {7: 32768, 8: 0, 9: 16384}[i]
BSTEP = [('w2', 32*i, 1 if i >= 12 else 0) for i in range(14)] + [('wo', 32*i, 0) for i in range(4)]

class Gen:
    def __init__(self, diag=False, opt=None):
        self.diag = diag; self.opt = opt or {}
        self.slow = []; self.nlab = 0
    def o(self, k, d): return self.opt.get(k, d)
    def dstamp(self, a, i, force=False):
        if not self.diag: return
        if 'sa' in self.opt and i in (5, 6, 7) and not force: return
        a(f's_memtime s[{s_st}:{s_st+1}]'); a(f's_memrealtime s[100:101]'); a.wait(lg0=True)
        d = s_st+2+i if i < 8 else 1
        a(f's_sub_u32 s{s_st}, s{s_st}, s0'); a(f's_sub_u32 s100, s100, s3'); a(f's_pack_ll_b32_b16 s{d}, s{s_st}, s100')
    def fstamp(self, a, i):
        if not (self.diag and self.opt.get('fine')): return
        a(f's_memtime s[{s_st}:{s_st+1}]'); a.wait(lg0=True)
        a(f's_sub_u32 s{s_st}, s{s_st}, s0'); a.raw(f'    v_writelane_b32 v{v_P2}, s{s_st}, {i}')
    def poll_issue(self, sr, soff, off=0, va=None):
        if self.o('xp', 0) & 5: return []
        return [f'buffer_load_dword v{v_P}, v{v_P}, {srd(sr)}, {soff} offen offset:{off} sc1']
    def poll_check(self, sr, soff, off, mask, va=None):
        if self.o('xp', 0): return []
        idx = {(0, 0xff): 0, (128, 0xf0): 1, (256, 0xf0): 2, (256, 0x0f): 3}.get((off, mask), 4 if isinstance(mask, str) else 5)
        if self.o('xc', 0) >> idx & 1: return []
        if self.o('xm', 0) >> idx & 1: mask = 0
        def f(a):
            self.nlab += 1; n = self.nlab
            a(f'v_cmp_eq_u32 vcc, {FV}, v{v_P}')
            a(f's_and_b32 s{s_t0}, vcc_lo, {mask}'); a(f's_cmp_eq_u32 s{s_t0}, {mask}'); a(f's_cbranch_scc0 L_slow{n}')
            a.label(f'L_ok{n}')
            self.slow += [f'L_slow{n}:', f'    s_mov_b32 s{s_cnt}, 0', f'L_spin{n}:',
                 f'    v_bfe_u32 v{v_P}, v{v_l16}, 2, 6', f'    buffer_load_dword v{v_P}, v{v_P}, {srd(sr)}, {soff} offen offset:{off} sc1', '    s_waitcnt vmcnt(0)',
                 f'    v_cmp_eq_u32 vcc, {FV}, v{v_P}', '    s_nop 3', f'    s_and_b32 s{s_t0}, vcc_lo, {mask}', f'    s_cmp_eq_u32 s{s_t0}, {mask}',
                 f'    s_cbranch_scc1 L_ok{n}', f'    s_add_u32 s{s_cnt}, s{s_cnt}, 1', f'    s_cmp_lt_u32 s{s_cnt}, 0x8000',
                 f'    s_cbranch_scc1 L_spin{n}', f'    s_branch L_ok{n}']
        return [f]
    def spoll_issue(self, d, n, soff, off):
        op = {1: 'dword', 4: 'dwordx4', 8: 'dwordx8'}[n]; dst = f's[{d}:{d+n-1}]' if n > 1 else f's{d}'
        return [lambda a: a(f's_buffer_load_{op} {dst}, {srd(sWS)}, s{soff} offset:{off} glc', track=False)]
    def spoll_check(self, d, n, soff, line, mask, extra=None):
        def f(a):
            self.nlab += 1; k = self.nlab
            a.smem_pending = True; a.wait(lg0=True)
            if n == 8: a(f's_and_b64 s[{d}:{d+1}], s[{d}:{d+1}], s[{d+4}:{d+5}]'); a(f's_and_b64 s[{d+2}:{d+3}], s[{d+2}:{d+3}], s[{d+6}:{d+7}]')
            if n >= 4: a(f's_and_b64 s[{d}:{d+1}], s[{d}:{d+1}], s[{d+2}:{d+3}]'); a(f's_and_b32 s{d}, s{d}, s{d+1}')
            if extra: a(f's_cmp_eq_u32 s{extra}, 0'); a(f's_cselect_b32 s{d}, {FV}, s{d}')
            a(f's_cmp_eq_u32 s{d}, {FV}'); a(f's_cbranch_scc0 L_slow{k}')
            a.label(f'L_ok{k}')
            self.slow += [f'L_slow{k}:', f'    s_mov_b32 s{s_cnt}, 0', f'L_spin{k}:',
                 f'    v_bfe_u32 v{v_P}, v{v_l16}, 2, 6', f'    buffer_load_dword v{v_P}, v{v_P}, {srd(sWS)}, s{soff} offen offset:{line} sc1', '    s_waitcnt vmcnt(0)',
                 f'    v_cmp_eq_u32 vcc, {FV}, v{v_P}', '    s_nop 3', f'    s_and_b32 s{s_t0}, vcc_lo, {mask}', f'    s_cmp_eq_u32 s{s_t0}, {mask}',
                 f'    s_cbranch_scc1 L_ok{k}', f'    s_add_u32 s{s_cnt}, s{s_cnt}, 1', f'    s_cmp_lt_u32 s{s_cnt}, 0x8000',
                 f'    s_cbranch_scc1 L_spin{k}', f'    s_branch L_ok{k}']
        return [f]
    def flag(self, key, stage):
        if self.o('xp', 0) & 3: return []
        if self.o('xf', 0) >> stage & 1: return [f'buffer_store_dword v{v_fl}, v{v_fl}, {srd(sWS)}, s{s_fl} offen offset:{stage*128} sc1']
        return [lambda a: a.wait(vm_tok=self.tok[key]),
                f'buffer_store_dword v{v_fl}, v{v_fl}, {srd(sWS)}, s{s_fl} offen offset:{stage*128} sc1']
    def wsrc(self, slab):
        ch = 0 if slab < 16 else (1 if slab < 32 else 2)
        ffn = self.typ == 'B' or ch == 0
        vv = v_wf if ffn else v_wq
        if self.typ == 'B' and ch == 2: vv = v_wh
        return ch, (sWF if ffn else sWQ), vv, 32*(3584 if ffn else 3072)
    def wprep(self, slab):
        nb = self.o('rlb', 6)
        if slab % nb: return []
        return [[f'v_readlane_b32 s{self.wreg(k)}, v{v_b3}, {k}' for k in range(slab, min(slab + nb, 40))]]
    def wreg(self, slab):
        nb = self.o('rlb', 6)
        return s_wo0 + (slab & 1) if nb == 1 else [56, 57, 58, 12, 13, 88][slab % nb]
    def wdma(self, slab):
        ch, sr, vv, step = self.wsrc(slab)
        return [f's_add_u32 m0, s{s_wm}, {(slab % RING)*8192}',
                ('dma', f'buffer_load_dwordx4 v{vv}, {srd(sr)}, s{self.wreg(slab)} offen lds', ('W', slab))]
    def bdma(self, i, n):
        mat, ro, half = BSTEP[i]
        base = {('w2',0): s_b2, ('w2',1): s_b2h, ('wo',0): s_bo}[(mat, half)]
        off = ro*1024 + n*(16384 if half else 8192)
        if self.o('xb', 0): mat = 'w2'; base = s_b2; off = (i % 7)*32768 + n*8192
        return [f's_add_u32 m0, s{s_bm}, {bslot(i) + n*1024}', f's_add_u32 s{s_t1}, s{base}, {off}',
                ('dma', f'buffer_load_dwordx4 v{v_bv}, {srd(sB2 if mat == "w2" else sBo)}, s{s_t1} offen lds', ('B', i, n))]
    def bdma_rot(self, nb):
        G, p = nb >> 2, nb & 3
        if G == 3: return self.bdma(6, p)
        def claim(a):
            for i in (2*G, 2*G+1):
                for b in self.blocks(('B', i)):
                    for t in self.lds_rd.get(b, []): assert self.lds_key[b] == ('B', i) or a.done_at_barrier(t), ('WAR rot', nb)
        return [f's_add_u32 m0, s{s_bl+p}, {bslot(2*G)}', f's_add_u32 s{s_t1}, s{s_bg+p}, {BSTEP[2*G][1]*1024}', claim,
                ('dma', f'buffer_load_dwordx4 v{v_bv}, {srd(sB2)}, s{s_t1} offen lds', ('B', 2*G + (p >> 1), p & 1))]
    def aslot(self, n): return XF + (n % NA)*4
    def aload(self, n):
        i, t = n >> 1, n & 1
        def chk(a): assert not (set(range(self.aslot(n), self.aslot(n)+4)) & self.busy), ('A slot busy', n)
        if self.o('xa', 0) == 1: i = i & 1
        sc = '' if self.o('xa', 0) == 2 else ' sc1'
        return [f's_add_u32 s{s_t2}, s{s_al}, {t*73728 + i*1024}', chk,
                ('dma', f'buffer_load_dwordx4 {vr(self.aslot(n), 4)}, v{v_l16}, {srd(sWS)}, s{s_t2} offen{sc}', ('A', n))]
    def blocks(self, key):
        if not isinstance(key, tuple) or key[0] not in ('W', 'B', 'X'): return []
        if key[0] == 'W': return [key[1] % RING]
        if key[0] == 'X': return [4 + key[1]]
        return [bslot(key[1]) // 8192, bslot(key[1]) // 8192 + 1]
    def do(self, a, it):
        if isinstance(it, str): a(it)
        elif isinstance(it, list):
            for x in it: self.do(a, x)
        elif callable(it): it(a)
        elif it[0] == 'dma':
            key = it[2]; blocks = self.blocks(key)
            for b in blocks:
                if self.lds_key.get(b) != key[:2]:
                    for t in self.lds_rd.get(b, []): assert a.done_at_barrier(t), ('WAR on LDS', key, b)
                    self.lds_key[b] = key[:2]; self.lds_rd[b] = []; self.lds_wr[b] = []
            self.tok[key] = a(it[1].replace(' sc1', '') if self.o('xs', 0) and 'store' in it[1] else it[1])
            for b in blocks: self.lds_wr[b].append(self.tok[key])
        elif it[0] == 'rd':
            key = it[2]
            for b in self.blocks(key):
                assert self.lds_key.get(b) == key, ('stale LDS read', key, self.lds_key.get(b))
                assert key[0] == 'X' or len(self.lds_wr[b]) == (1 if key[0] == 'W' else 2), key
                for t in self.lds_wr[b]: assert a.done_at_barrier(t), ('RAW on LDS', key)
            t = a(it[1])
            for b in self.blocks(key): self.lds_rd[b].append(t)
        else: raise ValueError(it)
    def weight(self, it):
        if isinstance(it, list): return sum(self.weight(x) for x in it)
        if isinstance(it, str):
            op = it.split()[0].replace('_e32','').replace('_e64','')
            if op.startswith('s_'): return 0.5
            if op.startswith('v_mfma'): return 2
            if op.startswith('ds_'): return 5
            return 2 if op in ('v_exp_f32','v_rcp_f32','v_rsq_f32') else 1
        return 0 if callable(it) else 1
    def xreads(self, s):
        L = []; v = v_xo if s & 1 else v_xe
        pre = [f'v_add_u32 v{v}, 0x10000, v{v}'] if s in (8, 9) else []
        for t in range(2):
            it = ('rd', f'ds_read_b128 {vr(XF+(2*s+t)*4,4)}, v{v} offset:{(s & 7)*8192 + t*1024}', ('X', s))
            L.append(pre + [it] if t == 0 else [it])
        return L
    def prologue(self, a):
        o = self.o
        lane, g, c16, T0, T1, T2, vX, vW = 0, 1, 2, 3, 4, 5, v_oa, 8
        RX = XF + 64
        a(f's_load_dwordx2 s[{sX}:{sX+1}], s[0:1], 0')
        if self.diag: a(f's_memrealtime s[{s_st}:{s_st+1}]'); a(f's_memtime s[{s_st+2}:{s_st+3}]')
        a('s_cmp_ge_u32 s2, 256'); a('s_cbranch_scc1 L_end')
        vR = 7
        a(f's_getpc_b64 s[{sWQ}:{sWQ+1}]'); a.label('L_pc')
        a('v_lshrrev_b32 v1, 6, v0'); a(f'v_and_b32 v{T0}, 31, v0'); a(f'v_lshl_add_u32 v{T0}, v1, 5, v{T0}'); a(f'v_lshlrev_b32 v{T0}, 2, v{T0}')
        a(f's_mov_b32 s{sWQ+2}, L_tab+262144-L_pc'); a(f's_mov_b32 s{sWQ+3}, 0x20000')
        a(f's_lshl_b32 s{s_t1}, s2, 10'); a(f's_add_u32 s{s_t1}, s{s_t1}, L_tab-L_pc')
        a(f'buffer_load_dword v{vR}, v{T0}, {srd(sWQ)}, s{s_t1} offen')
        a(f'v_readfirstlane_b32 s{s_w}, v1')
        a(f'v_and_b32 v{T0}, 7, v0'); a(f'v_lshlrev_b32 v{T0}, 4, v{T0}'); a(f'v_bfe_u32 v{T1}, v0, 3, 3'); a(f'v_lshl_add_u32 v{vX}, v{T1}, 10, v{T0}')
        a(f's_bfe_u32 s{s_ty}, s2, 0x20003'); a(f's_lshr_b32 s{s_t2}, s2, 5')
        a(f's_and_b32 s{s_t0}, s2, 4'); a(f's_lshl1_add_u32 s{s_t0}, s{s_t0}, s{s_t2}')
        a(f's_lshl3_add_u32 s{s_xo}, s{s_t0}, s{s_w}'); a(f's_and_b32 s{s_xm}, s{s_ty}, 1'); a(f's_lshl1_add_u32 s{s_xo}, s{s_xo}, s{s_xm}'); a(f's_lshl_b32 s{s_xo}, s{s_xo}, 13')
        a(f's_lshl1_add_u32 s{s_t2}, s2, s{s_t2}'); a(f's_and_b32 s{s_t2}, s{s_t2}, 7')
        a(f's_lshl_b32 s{s_wt}, s{s_t2}, 7')
        a(f's_mov_b32 s{sX+2}, {2048*1024}'); a(f's_mov_b32 s{sX+3}, 0x20000')
        def xload(n):
            L = [f's_xor_b32 s{s_xo}, s{s_xo}, 8192'] if n == 8 else []
            if n: L += [f's_add_u32 s{s_wt}, s{s_wt}, 128', f's_and_b32 s{s_wt}, s{s_wt}, 1023']
            return L + [f's_add_u32 s{s_xa}, s{s_wt}, s{s_xo}', f'buffer_load_dwordx4 {vr(RX+4*n,4)}, v{vX}, {srd(sX)}, s{s_xa} offen']
        def cpf():
            a(f's_mov_b32 s{sWQ+2}, L_codeend-L_pc')
            a(f's_lshr_b32 s{s_t0}, s2, 3'); a(f's_lshl_b32 s{s_t0}, s{s_t0}, 11')
            a(f'v_lshrrev_b32 v{T0}, 4, v0'); a(f'v_lshlrev_b32 v{T0}, 13, v{T0}'); a(f'v_add_lshl_u32 v{T0}, v{T0}, v0, 7')
            a(f'buffer_load_dword v{ACC1}, v{T0}, {srd(sWQ)}, s{s_t0} offen')
        x0 = xload(0)
        self.do(a, x0[:-1])
        if o('cpf', 2) == 2: cpf()
        a.wait(lg0=True); self.do(a, x0[-1])
        if self.diag: a(f's_mov_b32 s3, s{s_st}'); a(f's_mov_b32 s89, s{s_st+2}')
        n0 = o('x0', 4)
        for n in range(1, n0): self.do(a, xload(n))
        if o('cpf', 2) == 1: cpf()
        a(f's_and_b32 s{s_c}, s{s_w}, 1'); a(f's_lshr_b32 s{s_r}, s{s_w}, 1'); a(f's_lshl_b32 s{s_rot}, s{s_t2}, 1')
        a(f's_lshl3_add_u32 s22, s{s_c}, s0'); a('s_addc_u32 s23, s1, 0')
        a(f's_load_dwordx2 s[{sWF}:{sWF+1}], s[22:23], 32')
        for d, off in ((sB2, 48), (sBo, 16), (sWS, 72), (sDBG, 64), (sWQ, 8), (sOUT, 56)): a(f's_load_dwordx2 s[{d}:{d+1}], s[0:1], {off}')
        for d, n in ((sWF, 512*3584), (sWQ, 512*3072), (sB2, 1792*1024), (sBo, 512*1024), (sWS, WSSZ), (sDBG, 256), (sOUT, 2048*1024)):
            a(f's_mov_b32 s{d+2}, {n}'); a(f's_mov_b32 s{d+3}, 0x20000')
        if o('lnprio', 1):
            a(f's_cmp_lt_u32 s{s_w}, 4'); a('s_cbranch_scc1 L_np'); a('s_setprio 1'); a.label('L_np')
        M0r, M1r, ONE, WB, K512 = 16, 17, 18, 20, 22
        a(f'v_mov_b32 v{ONE}, 0xbb00bb00'); a(f'v_mov_b32 v{ONE+1}, 0xbb00bb00')
        real = a; late = []
        class Rec:
            def __call__(s, t):
                if late and isinstance(late[-1], str) and late[-1].startswith('s_cmp'): late[-1] = [late[-1], t]
                else: late.append(t)
            def wait(s, **k): late.append(lambda a: a.wait(**k))
        a = Rec()
        a('v_and_b32 v0, 63, v0')
        a(f'v_lshrrev_b32 v{g}, 4, v0'); a(f'v_and_b32 v{c16}, 15, v0'); a(f'v_lshlrev_b32 v{v_l16}, 4, v0')
        a(f's_lshl_b32 s{s_t0}, s{s_r}, 11'); a(f's_add_u32 s{s_t0}, s{s_t0}, 32768')
        a(f'v_xor_b32 v{T0}, v{c16}, v{g}'); a(f'v_lshl_add_u32 v{T0}, v{T0}, 4, s{s_t0}'); a(f'v_lshl_add_u32 v{v_xe}, v{g}, 8, v{T0}'); a(f'v_xor_b32 v{v_xo}, 64, v{v_xe}')
        a(f's_lshl3_add_u32 s{s_t0}, s{s_w}, s{s_xm}'); a(f's_lshl_b32 s{s_t0}, s{s_t0}, 7'); a(f's_add_u32 s{s_t0}, s{s_t0}, 32768')
        a(f'v_xor_b32 v{T0}, v0, v{T1}'); a(f'v_and_b32 v{T0}, 7, v{T0}'); a(f'v_lshl_add_u32 v{T0}, v{T0}, 4, s{s_t0}')
        a(f'v_bfe_u32 v{T2}, v0, 2, 1'); a(f'v_lshl_add_u32 v{T0}, v{T2}, 13, v{T0}'); a(f'v_and_b32 v{T2}, 3, v0'); a(f'v_lshl_add_u32 v{WB}, v{T2}, 8, v{T0}'); a(f'v_add_u32 v{WB+1}, 0x10000, v{WB}')
        a(f'v_cmp_gt_u32 vcc, 2, v{T2}'); a(f'v_and_b32 v{T0}, 16, v{v_l16}'); a(f'v_mov_b32 v{T2}, 0xffff'); a(f'v_lshlrev_b32 v{T0}, v{T0}, v{T2}')
        a(f'v_cndmask_b32 v{M0r}, 0, v{T0}, vcc'); a(f'v_sub_u32 v{M1r}, v{T0}, v{M0r}')
        a(f'v_mov_b32 v{K512}, {hex(f2u(1/512))}')
        a(f'v_add_u32 v{T0}, 1, v0'); a(f'v_lshrrev_b32 v{T0}, 3, v{T0}'); a(f'v_lshlrev_b32 v{T0}, 17, v{T0}'); a(f'v_add_lshl_u32 v{vW}, v{T0}, v0, 7')
        a(f'v_lshrrev_b32 v{T0}, 1, v0'); a(f'v_lshl_add_u32 v{vW+1}, v{T0}, 24, v{vW}')
        for i in range(4): a(f'v_mov_b32 v{24+i}, 0')
        a(f'v_and_b32 v{T0}, 0x70, v{v_l16}'); a(f'v_lshlrev_b32 v{T2}, 5, v{g}'); a(f'v_xor_b32 v{v_bv}, v{T0}, v{T2}'); a(f'v_lshl_add_u32 v{v_bv}, v{T1}, 10, v{v_bv}')
        a(f's_and_b32 s{s_t0}, s{s_r}, 1'); a(f's_lshl_b32 s{s_t0}, s{s_t0}, 6')
        a(f'v_and_b32 v{T2}, 32, v{T2}'); a(f'v_xor_b32 v{T0}, v{T0}, v{T2}'); a(f'v_xor_b32 v{T0}, s{s_t0}, v{T0}')
        a(f's_movk_i32 s{s_t1}, 3584'); a(f's_movk_i32 s{s_t3}, 3072')
        a(f'v_mad_u32_u24 v{v_wf}, v{T1}, s{s_t1}, v{T0}'); a(f'v_mad_u32_u24 v{v_wq}, v{T1}, s{s_t3}, v{T0}')
        c8, row = vW+2, vW+3
        a(f'v_and_b32 v{c8}, 3, v0'); a(f'v_bfe_u32 v{row}, v0, 2, 2'); a(f'v_lshl_add_u32 v{row}, v{g}, 3, v{row}')
        a(f's_lshl_b32 s{s_t0}, s{s_c}, 1'); a(f'v_and_b32 v{T0}, 3, v{T1}'); a(f'v_xor_b32 v{T0}, s{s_t0}, v{T0}'); a(f'v_lshlrev_b32 v{T0}, 5, v{T0}')
        a(f'v_lshl_add_u32 v{T0}, v{c8}, 3, v{T0}'); a(f'v_lshl_add_u32 v{v_tr0}, v{row}, 7, v{T0}'); a(f'v_xor_b32 v{v_tr1}, 32, v{v_tr0}')
        a(f's_lshl_b32 s{s_t0}, s{s_c}, 5'); a(f'v_xor_b32 v{T0}, s{s_t0}, v{T2}'); a(f'v_lshl_add_u32 v{T0}, v{c8}, 3, v{T0}'); a(f'v_lshl_add_u32 v{v_trh}, v{row}, 6, v{T0}')
        a(f'v_and_b32 v{T0}, 32, v0'); a(f'v_lshlrev_b32 v{T2}, 4, v{c8}'); a(f'v_xor_b32 v{T0}, v{T0}, v{T2}'); a(f'v_lshrrev_b32 v{T2}, 2, v0')
        a(f's_cmp_ge_u32 s{s_ty}, 2'); a('s_cselect_b64 vcc, -1, 0')
        a(f'v_mad_u32_u24 v{T0}, v{T2}, s{s_t1}, v{T0}'); a(f'v_cndmask_b32 v{v_wq}, v{v_wq}, v{T0}, vcc')
        a(f'v_lshl_add_u32 v{v_fl}, v0, 25, {FV}')
        a(f'v_lshlrev_b32 v{v_P}, 2, v{c16}')
        a(f's_lshl_b32 s{s_t0}, s{s_r}, 12'); a(f's_add_u32 s{s_t0}, s{s_t0}, {bslot(0)}')
        a(f'v_and_b32 v{T0}, 3, v{T1}'); a(f'v_xor_b32 v{T0}, s{s_r}, v{T0}'); a(f'v_lshl_add_u32 v{T0}, v{T0}, 5, s{s_t0}'); a(f'v_lshl_add_u32 v{T0}, v{c8}, 3, v{T0}'); a(f'v_lshl_add_u32 v{v_b2}, v{T2}, 7, v{T0}')
        a(f's_lshl_b32 s{s_t0}, s{s_r}, 2'); a(f'v_and_b32 v{row}, 7, v0'); a(f'v_xor_b32 v{T0}, v{g}, v{row}'); a(f'v_xor_b32 v{T0}, s{s_t0}, v{T0}')
        a(f's_lshl_b32 s{s_t0}, s{s_w}, 13'); a(f'v_lshl_add_u32 v{T0}, v{T0}, 4, s{s_t0}'); a(f'v_lshl_add_u32 v{v_rw}, v{c16}, 8, v{T0}')
        a(f's_lshl_b32 s{s_t0}, s{s_w}, 11'); a(f's_add_u32 s{s_t0}, s{s_t0}, 49152')
        a(f'v_lshlrev_b32 v{T0}, 1, v{row}'); a(f'v_xor_b32 v{T0}, v{T0}, v{T1}'); a(f'v_lshl_add_u32 v{T0}, v{T0}, 4, s{s_t0}'); a(f'v_lshl_add_u32 v{v_rr}, v{T1}, 8, v{T0}')
        vO = v_b3
        a(f'v_cmp_lt_u32 vcc, 31, v0'); a(f'v_lshlrev_b32 v{T0}, 1, v0'); a(f'v_cndmask_b32 v{T0}, v0, v{T0}, vcc')
        a(f'v_add_u32 v{T0}, s{s_rot}, v{T0}'); a(f'v_and_b32 v{T0}, 15, v{T0}'); a(f'v_lshlrev_b32 v{T0}, 5, v{T0}')
        a(f's_cmp_lt_u32 s{s_ty}, 2'); a(f's_cselect_b32 s{s_t3}, s{s_t3}, s{s_t1}')
        a(f'v_cmp_lt_u32 s[20:21], 15, v0'); a(f'v_mov_b32 v{T2}, s{s_t1}'); a(f'v_mov_b32 v{c8}, s{s_t3}'); a(f'v_cndmask_b32 v{T2}, v{T2}, v{c8}, s[20:21]')
        a(f'v_mul_u32_u24 v{vO}, v{T0}, v{T2}')
        a(f'v_lshlrev_b32 v{T0}, 2, v{g}'); a.wait(lg0=True)
        a(f'ds_bpermute_b32 v{T2}, v{T0}, v{vR}')
        for i in range(3, 32): a(f'v_readlane_b32 s{TAB+i}, v{vR}, {i}')
        a(f'v_add_u32 v{vO}, v{vO}, v{T2}')
        a(('dma', f'buffer_store_dwordx4 v[24:27], v{v_l16}, {srd(sWS)}, s{s_lead} offen sc1', 'zero'))
        a(f's_min_u32 s{s_hms}, s{s_hms}, 1')
        for k, m in enumerate((0x22222222, 0x44444444, 0x88888888)): a(f's_mov_b32 s{18+2*k}, {hex(m)}'); a(f's_mov_b32 s{19+2*k}, {hex(m)}')
        self.typ = 'A'
        a(self.wprep(0))
        a = real
        ne = len(late)*o('early', 60)//100
        self.do(a, late[:ne]); del late[:ne]
        if self.diag: a.wait(lg0=True); a('s_mov_b32 s0, s89')
        self.dstamp(a, 0)
        ringpre = [self.wdma(k) + self.wprep(k+1) for k in range(4)]
        warm = [[f'buffer_load_dword v{ACC1+1}, v{vW}, {srd(sB2)}, s{s_wa} offen'], [f'buffer_load_dword v{ACC1+2}, v{vW+1}, {srd(sBo)}, s{s_wb} offen']] if o('bwarm', 1) else []
        S, Q = v_T, v_T+4
        vq = [xload(n) for n in range(n0, 16)]; wq = ringpre + warm
        for G in range(2):
            X = RX + 32*G
            for u in range(16):
                xp = vr(X+2*u, 2)
                a(f'v_mfma_f32_4x4x4_16b_bf16 {vr(S,4)}, {vr(ONE,2)}, {xp}, {vr(S,4) if u else 0}')
                a(f'v_mfma_f32_4x4x4_16b_bf16 {vr(Q,4)}, {xp}, {xp}, {vr(Q,4) if u else 0}')
                if not u & 1:
                    if G == 0:
                        for _ in range(1 if u < o('x2', 10) else 2):
                            if len(vq) > o('xkeep', 0): self.do(a, vq.pop(0))
                    elif u >= o('wu', 0) and wq: self.do(a, wq.pop(0))
                elif late:
                    left = max(1, o('lateto', 5) - (u >> 1)); ne = -(-len(late)//left)
                    self.do(a, late[:ne]); del late[:ne]
            if self.opt.get('fine', 0) & 4: self.fstamp(a, 58 + 2*G)
            if G: a(f'v_xor_b32 v{WB}, 0x80, v{WB}'); a(f'v_xor_b32 v{WB+1}, 0x80, v{WB+1}')
            elif vq: self.do(a, vq.pop(0))
            dp = ['quad_perm:[1,0,3,2]', 'quad_perm:[2,3,0,1]', 'row_half_mirror']
            for k in range(3):
                a(f'v_add_f32_dpp v{S}, v{S}, v{S} {dp[k]} row_mask:0xf bank_mask:0xf')
                a(f'v_cndmask_b32 v{Q}, v{Q}, v{Q+1+k}, s[{18+2*k}:{19+2*k}]')
            a(f'v_mul_f32 v{S+1}, v{S}, v{S}')
            for k in range(3): a(f'v_add_f32_dpp v{Q}, v{Q}, v{Q} {dp[k]} row_mask:0xf bank_mask:0xf')
            a(f'v_fma_f32 v{Q}, v{Q}, v{K512}, -v{S+1}')
            a(f'v_max_f32 v{Q}, 0, v{Q}'); a(f'v_add_f32 v{Q}, {hex(f2u(1e-5))}, v{Q}')
            a(f'v_rsq_f32 v{Q}, v{Q}')
            D = lambda u: WF + 4*(u & 7)
            hi = lambda u: f'v_mfma_f32_4x4x4_16b_bf16 {vr(D(u),4)}, {vr(Q,2)}, {vr(X+2*u,2)}, {vr(S,4)}'
            lo = lambda u: f'v_mfma_f32_4x4x4_16b_bf16 {vr(D(u),4)}, {vr(Q+2,2)}, {vr(X+2*u,2)}, {vr(D(u),4)}'
            cv = lambda u: [f'v_cvt_pk_bf16_f32 v{X+2*u}, v{D(u)}, v{D(u)+1}', f'v_cvt_pk_bf16_f32 v{X+2*u+1}, v{D(u)+2}, v{D(u)+3}']
            wr = lambda i: f'ds_write_b128 v{WB+(i>>2)}, {vr(X+4*i,4)} offset:{(i&3)*16384}'
            def more():
                if vq: self.do(a, vq.pop(0))
                elif G == 1 and wq: self.do(a, wq.pop(0))
            a(f'v_cvt_pk_bf16_f32 v{Q+1}, v{Q}, v{Q}')
            if o('lo', 1):
                for k in (1, 2, 3, 0): a(f'v_mul_f32 v{S+k}, v{S}, v{Q}')
                a(f'v_and_b32 v{Q+2}, 0xffff0000, v{Q+1}'); a(f'v_sub_f32 v{Q+2}, v{Q}, v{Q+2}')
                a(f'v_and_b32 v{Q}, v{M0r}, v{Q+1}'); a(f'v_and_b32 v{Q+1}, v{M1r}, v{Q+1}')
                a(f'v_cvt_pk_bf16_f32 v{Q+3}, v{Q+2}, v{Q+2}')
                a(hi(0)); a(f'v_and_b32 v{Q+2}, v{M0r}, v{Q+3}'); a(hi(1)); a(f'v_and_b32 v{Q+3}, v{M1r}, v{Q+3}'); a(hi(2))
                for u in range(19):
                    if u + 3 < 16: a(hi(u+3))
                    if u >= 3: a(cv(u-3)[0])
                    if u < 16: a(lo(u))
                    if u >= 3:
                        a(cv(u-3)[1])
                        if (u-3) & 1: a(wr((u-3) >> 1))
                    if u in (2, 6, 10, 14): more()
            else:
                a(f'v_and_b32 v{Q+2}, 0xffff0000, v{Q+1}')
                a(f'v_and_b32 v{Q}, v{M0r}, v{Q+1}'); a(f'v_and_b32 v{Q+1}, v{M1r}, v{Q+1}')
                for k in (1, 2, 3, 0): a(f'v_mul_f32 v{S+k}, v{S}, v{Q+2}')
                for u in range(20):
                    if u < 16: a(hi(u))
                    if u >= 4:
                        for x in cv(u-4): a(x)
                        if (u-4) & 1: a(wr((u-4) >> 1))
                    if u in (3, 7, 11, 15): more()
            if self.opt.get('fine', 0) & 4: self.fstamp(a, 59 + 2*G)
        assert not vq
        while wq: self.do(a, wq.pop(0))
        if o('lnprio', 1): a('s_setprio 0')
        a.wait(vm_tok=[self.tok[('W', 0)]], lg0=True); a.barrier()
        self.dstamp(a, 1)
        for x in self.xreads(0) + self.xreads(1) + self.wreads(0): self.do(a, x)
        assert a.done_at_barrier(self.tok['zero'])
        a(f'buffer_store_dword v{v_fl}, v{v_fl}, {srd(sDBG)}, s{s_dbg} offen sc1')
    def wreads(self, s):
        buf = WF + (s & 1)*16; base = (s % RING)*8192; L = []
        for f in range(4):
            p, tf = f >> 1, f & 1
            for rd in range(2):
                if s >= 32 and self.typ == 'B': addr, off = v_trh, base + p*4096 + tf*2048 + rd*256
                else: addr, off = (v_tr1 if tf else v_tr0), base + p*4096 + rd*512
                L.append(('rd', f'ds_read_b64_tr_b16 {vr(buf+4*f+2*rd,2)}, v{addr} offset:{off}', ('W', s)))
        return L
    def breads(self, i):
        buf = WF + (i & 1)*16; L = []; base = bslot(i); pre = []
        if not (0 <= base - self.bwin and base - self.bwin + 16384 <= 65536):
            d = (base - self.bwin) & 0xffffffff
            pre = [f'v_add_u32 v{r}, {hex(d)}, v{r}' for r in self.badr]; self.bwin = base
        for j in range(4):
            for rd in range(2):
                it = ('rd', f'ds_read_b64_tr_b16 {vr(buf+4*j+2*rd,2)}, v{self.badr[j]} offset:{base - self.bwin + rd*2048}', ('B', i))
                L.append([pre[j], it] if pre and rd == 0 else it)
        return L
    def mfmas(self, s):
        buf = WF + (s & 1)*16; L = []; typ = self.typ
        for f in range(4):
            p, tf = f >> 1, f & 1
            for t in range(2):
                w = vr(buf+4*f, 4); swap = False
                if s >= 40:
                    i = s - 40; acc = ACC3 + (f*2+t)*4; x = vr(self.aslot(2*i+t), 4)
                    C = vr(acc, 4) if i else 0
                else:
                    if s < 32:
                        ks = s & 15; acc = (ACC0 if s < 16 else ACC1) + (f*2+t)*4
                        swap = (s >= 16 and typ == 'A' and p == 1)
                    else:
                        u, cidx = (p, tf) if typ == 'A' else (tf, p)
                        ks = 2*(s-32) + u; acc = ACC0 + (cidx*2+t)*4
                    x = vr(XF+(2*ks+t)*4, 4); C = vr(acc, 4) if ks else 0
                A, B = (x, w) if swap else (w, x)
                L.append(f'v_mfma_f32_16x16x32_bf16 {vr(acc,4)}, {A}, {B}, {C}')
        return L
    def silu_batch(self, G, U, O, T, t):
        L = [f'v_mul_f32 v{T+r}, {hex(f2u(-LOG2E))}, v{G+r}' for r in range(4)]
        for r in range(4): L += [f'v_exp_f32 v{T+r}, v{T+r}', f'v_mul_f32 v{U+r}, v{G+r}, v{U+r}']
        L += [f'v_add_f32 v{T+r}, 1.0, v{T+r}' for r in range(4)]
        L += [f'v_rcp_f32 v{T+r}, v{T+r}' for r in range(4)]
        L += [f'v_mul_f32 v{U+r}, v{U+r}, v{T+r}' for r in range(4)]
        L += [f'v_cvt_pk_bf16_f32 v{O}, v{U}, v{U+1}', f'v_cvt_pk_bf16_f32 v{O+1}, v{U+2}, v{U+3}']
        return L
    def hstore(self, regs, t, istep, key):
        return [[f's_add_u32 s{s_t3}, s{s_hst}, {t*73728 + istep*1024}',
                 ('dma', f'buffer_store_dwordx4 {vr(regs,4)}, v{v_l16}, {srd(sWS)}, s{s_t3} offen sc1', key)]]
    def ffn_epi(self, acc, istep, key):
        L = []
        for t in range(2):
            O = acc + t*4
            for tf in range(2):
                L += self.silu_batch(acc + (tf*2+t)*4, acc + ((2+tf)*2+t)*4, O + 2*tf, v_T + 4*tf, t)
            L += self.hstore(O, t, istep, (key, t))
        return L
    def kv_pre(self):
        T = v_T; L = []
        for t in range(2): L.append(f'v_mul_f32 v{28+t}, {hex(f2u(-1/LOG2E))}, v{self.c1[t]}')
        L += ['v_mov_b32 v17, 0', 'v_mov_b32 v19, 0', 'v_mov_b32 v20, 0x3e803e80', 'v_mov_b32 v21, 0x3e803e80']
        for t in range(2): L.append(f'v_and_b32 v{22+t}, 0xffff0000, v{28+t}')
        for t in range(2): L.append(f'v_sub_f32 v{24+t}, v{28+t}, v{22+t}')
        for t in range(2): L.append(f'v_cvt_pk_bf16_f32 v{16+2*t}, v{22+t}, v{24+t}')
        for t in range(2): L.append(f'v_mfma_f32_16x16x16_bf16 {vr(T+4*t,4)}, {vr(16+2*t,2)}, v[20:21], 0')
        return L
    def kv_epi(self):
        L = []; T = v_T
        K = lambda hh, t: ACC1 + (hh*2+t)*4
        V = lambda hh, t: ACC1 + 16 + (hh*2+t)*4
        pk = lambda d, s: [f'v_cvt_pk_bf16_f32 v{d}, v{s}, v{s+1}', f'v_cvt_pk_bf16_f32 v{d+1}, v{s+2}, v{s+3}']
        sk = lambda hh, t: []
        sv = lambda hh, t: []
        L += sk(0,1) + sk(1,1) + pk(v_KP, K(0,1)) + pk(v_KP+2, K(1,1))
        L += [('dma', f'buffer_store_dwordx4 {vr(v_KP,4)}, v{v_l16}, {srd(sWS)}, s{s_ha} offen sc1', ('halo', 0))]
        L += sv(0,1) + sv(1,1) + pk(K(0,1), V(0,1)) + pk(K(0,1)+2, V(1,1))
        L += [('dma', f'buffer_store_dwordx4 {vr(K(0,1),4)}, v{v_l16}, {srd(sWS)}, s{s_ha} offen offset:1024 sc1', ('halo', 1))]
        L += sk(0,0) + sk(1,0) + pk(v_KP+4, K(0,0)) + pk(v_KP+6, K(1,0)) + sv(0,0) + sv(1,0)
        L += pk(16, V(0,1)) + pk(18, V(0,0)) + pk(24, V(1,0)) + pk(26, V(1,1))
        return L
    def half_epi(self):
        X = ACC0 + 16; L = []
        for t in range(2): L += self.silu_batch(ACC0 + t*4, ACC0 + (2+t)*4, X + 2*t, v_T + 4*t, t)
        L += [f'v_lshrrev_b32 v{v_T}, 9, v{v_l16}', f'v_mul_u32_u24 v{v_T}, {73728-512}, v{v_T}', f'v_add_u32 v{v_T}, v{v_T}, v{v_l16}']
        L += [f'v_permlane32_swap_b32 v{X}, v{X+2}', f'v_permlane32_swap_b32 v{X+1}, v{X+3}']
        L += [('dma', f'buffer_store_dwordx4 {vr(X,4)}, v{v_T}, {srd(sWS)}, s{s_hs2} offen sc1', 'fin')]
        return L
    def att_pre(self):
        cur = [0]*4; prv = [0]*4
        for l in range(64):
            t, g = l & 15, l >> 4
            for r in range(4):
                i = 4*g + r
                if (i ^ t) & 1: continue
                if i <= t: cur[r] |= 1 << l
                else: prv[r] |= 1 << l
        MP = [14, 16, 18, 22, 74, 76, 78, 80, 82, 56]
        sm = lambda k: f's[{MP[k]}:{MP[k]+1}]'
        L = []
        def setm(k, m): L.extend([f's_mov_b32 s{MP[k]}, {hex(m & 0xffffffff)}', f's_mov_b32 s{MP[k]+1}, {hex(m >> 32)}'])
        for r in range(4): setm(r, cur[r]); setm(4+r, prv[r])
        setm(8, cur[0] | cur[1]); setm(9, cur[2] | cur[3])
        Mc, Mp, Mp0, Ac, Ap, ONES, NEG, HM, CQ = self.am
        L += [f'v_mov_b32 v{NEG}, {hex(f2u(-1e30))}']
        L += [f'v_cndmask_b32 v{Mc+r}, v{NEG}, 0, {sm(r)}' for r in range(4)]
        L += [f'v_cndmask_b32 v{Mp+r}, v{NEG}, 0, {sm(4+r)}' for r in range(4)]
        L += [[f's_cmp_eq_u32 s{s_hms}, 0', f's_cselect_b64 {sm(0)}, 0, -1']]
        L += [f'v_cndmask_b32 v{Mp0+r}, v{NEG}, v{Mp+r}, {sm(0)}' for r in range(4)]
        L += [f's_mov_b32 s{MP[1]}, 0xaaaaaaaa', f's_mov_b32 s{MP[1]+1}, 0xaaaaaaaa', f'v_mov_b32 v{HM}, 0xffff', f'v_mov_b32 v{NEG}, 0xffff0000',
              f'v_cndmask_b32 v{HM}, v{HM}, v{NEG}, {sm(1)}']
        L += [f'v_cndmask_b32 v{Ac+d}, 0, v{HM}, {sm(8+d)}' for d in range(2)]
        L += [f'v_xor_b32 v{Ap+d}, v{HM}, v{Ac+d}' for d in range(2)]
        L += [f'v_mov_b32 v{ONES+i}, 0x3f803f80' for i in range(4)]
        L += [f'v_mov_b32 v{CQ}, {hex(f2u(0.25*LOG2E))}']
        return L
    def attention(self):
        Mc, Mp, Mp0, Ac, Ap, ONES, NEG, HM, CQ = self.am
        L = []; a = L.append
        Qa = lambda hh, t: ACC0 + (hh*2+t)*4
        units = [(0,0),(1,0),(0,1),(1,1)]
        for hh, t in units:
            q = Qa(hh, t); a(f'v_cvt_pk_bf16_f32 v{q}, v{q}, v{q+1}'); a(f'v_cvt_pk_bf16_f32 v{q+1}, v{q+2}, v{q+3}')
        Kc = lambda hh, t: v_KP + (4 if t == 0 else 0) + 2*hh
        Kp = lambda hh, t: 28 + 2*hh if t == 0 else Kc(hh, 0)
        Sg = lambda u: ACC1 + 8*u
        for u, (hh, t) in enumerate(units):
            a(f'v_mfma_f32_16x16x16_bf16 {vr(Sg(u)+4,4)}, {vr(Kc(hh,t),2)}, {vr(Qa(hh,t),2)}, {vr(Mc,4)}')
        for u, (hh, t) in reversed(list(enumerate(units))):
            if u == 1: a('HALO')
            a(f'v_mfma_f32_16x16x16_bf16 {vr(Sg(u),4)}, {vr(Kp(hh,t),2)}, {vr(Qa(hh,t),2)}, {vr(Mp0 if t == 0 else Mp,4)}')
        m = [v_T+u for u in range(4)]
        for u in (3, 2, 1, 0):
            S = Sg(u)
            a(f'v_max3_f32 v{S}, v{S}, v{S+1}, v{S+4}'); a(f'v_max3_f32 v{S+2}, v{S+2}, v{S+3}, v{S+6}')
            a(f'v_max_f32 v{S}, v{S}, v{S+5}'); a(f'v_max_f32 v{S+2}, v{S+2}, v{S+7}')
            a(f'v_max_f32 v{m[u]}, v{S}, v{S+2}')
        a(f'v_permlane32_swap_b32 v{m[2]}, v{m[3]}'); a(f'v_permlane32_swap_b32 v{m[0]}, v{m[1]}')
        a(f'v_max_f32 v{m[2]}, v{m[2]}, v{m[3]}'); a(f'v_max_f32 v{m[0]}, v{m[0]}, v{m[1]}')
        a(f'v_permlane16_swap_b32 v{m[0]}, v{m[2]}')
        a(f'v_max_f32 v{m[1]}, v{m[0]}, v{m[2]}'); a(f'v_max_f32 v{m[3]}, v{m[0]}, v{m[2]}')
        a(f'v_permlane16_swap_b32 v{m[1]}, v{m[3]}')
        a(f'v_mul_f32 v{m[0]}, v{CQ}, v{m[1]}'); a(f'v_mul_f32 v{m[2]}, v{CQ}, v{m[3]}')
        a(f'v_mul_f32 v{m[1]}, v{CQ}, v{m[1]}'); a(f'v_mul_f32 v{m[3]}, v{CQ}, v{m[3]}')
        a(f'v_permlane32_swap_b32 v{m[0]}, v{m[1]}'); a(f'v_permlane32_swap_b32 v{m[2]}, v{m[3]}')
        for u, (hh, t) in enumerate(units):
            S = Sg(u)
            a(f'v_fma_f32 v{S}, v{S}, v{CQ}, -v{m[u]}'); a(f'v_fma_f32 v{S+2}, v{S+2}, v{CQ}, -v{m[u]}')
        for u in range(4):
            S = Sg(u); a(f'v_exp_f32 v{S}, v{S}'); a(f'v_exp_f32 v{S+2}, v{S+2}')
        Vw = {(0,0): 18, (0,1): 16, (1,0): 22, (1,1): 24}
        for u, (hh, t) in enumerate(units):
            S = Sg(u); P = S + 4
            a(f'v_cvt_pk_bf16_f32 v{S}, v{S}, v{S}'); a(f'v_cvt_pk_bf16_f32 v{S+2}, v{S+2}, v{S+2}')
            first, second = (Ac, Ap) if hh == 0 else (Ap, Ac)
            a(f'v_and_b32 v{P}, v{first}, v{S}'); a(f'v_and_b32 v{P+1}, v{first+1}, v{S+2}')
            a(f'v_and_b32 v{P+2}, v{second}, v{S}'); a(f'v_and_b32 v{P+3}, v{second+1}, v{S+2}')
        for u, (hh, t) in enumerate(units):
            S = Sg(u); P = S + 4
            a(f'v_mfma_f32_16x16x32_bf16 {vr(S,4)}, {vr(ONES,4)}, {vr(P,4)}, 0')
            a(f'v_mfma_f32_16x16x32_bf16 {vr(Qa(hh,t),4)}, {vr(Vw[(hh,t)],4)}, {vr(P,4)}, 0')
        a(lambda a_: self.busy.clear())
        for u in range(4): a(f'v_rcp_f32 v{Sg(u)}, v{Sg(u)}')
        for t in range(2):
            O = v_KP + 4*t
            for hh in range(2):
                u = units.index((hh, t)); q = Qa(hh, t)
                for r in range(4): a(f'v_mul_f32 v{q+r}, v{q+r}, v{Sg(u)}')
                a(f'v_cvt_pk_bf16_f32 v{O+2*hh}, v{q}, v{q+1}'); a(f'v_cvt_pk_bf16_f32 v{O+2*hh+1}, v{q+2}, v{q+3}')
            L += self.hstore(O, t, 14, 'fin')
        return L
    def step(self, a, mf, reads, misc, prep, valu, quota, endwait, barrier=True, extra=(), head=()):
        reads = list(reads); prep = list(prep); used = 0
        rp = [int(c) for c in str(self.o('rp', 12111110))]
        vp = [int(c) for c in str(self.o('vp', 1111111))]
        order = [0, 2, 4, 1, 3, 5, 6]
        slot = {g: [] for g in range(8)}
        for n, grp in enumerate(misc): slot[sorted(order[:len(misc)])[n] if len(misc) <= 7 else min(n, 6)].append(list(grp))
        toks = []; xt = []; self.xg = [int(c) for c in str(self.o('xg', 45))]
        for k, m in enumerate(mf):
            a(m)
            if k == 0: self.do(a, list(head))
            if slot[k]:
                g0 = slot[k][0]
                while g0 and isinstance(g0[0], str) and g0[0].startswith('s_add'): a(g0.pop(0))
            for _ in range(rp[k]):
                if reads: self.do(a, reads.pop(0)); toks.append(a.nid)
            for grp in slot[k]: self.do(a, grp)
            if k == 3 and prep: self.do(a, prep.pop(0))
            if k in self.xg and extra: self.do(a, extra.pop(0)); xt.append(a.nid)
            if k < 7:
                lim = quota*sum(vp[:k+1])/sum(vp)
                while valu and valu[0] != 'HALO' and used + self.weight(valu[0]) <= lim + 0.01 + (3 if isinstance(valu[0], list) else 0):
                    it = valu.pop(0); used += self.weight(it); self.do(a, it)
            if k == 3: a.wait(lg_tok=self.prev_toks)
            if k == 6: a.wait(vm_tok=[self.tok[k_] for k_ in endwait if k_ in self.tok], lg_tok=toks[:4])
        assert not reads and not prep
        self.prev_toks = toks
        if barrier: a.barrier()
    def main(self, a, typ):
        o = lambda k, d: self.opt.get(k + typ, self.opt.get(k, d))
        self.typ = typ; A = typ == 'A'
        self.badr = [v_b2, v_wf, v_wq, v_b3]; self.bwin = bslot(0)
        am0 = XF + 64
        self.am = (am0, am0+4, am0+8, am0+12, am0+14, am0+16, am0+20, am0+21, am0+22)
        self.XR = XF + 88
        self.busy = set(range(XF, XF+128))
        a.wait(vm_tok=[self.tok[('W', 1)]], lg0=True); a.barrier()
        self.prev_toks = []
        valu = []
        border = list(range(14)); bpat = str(o('bpat', 10)); b0 = o('b0', 5)
        D = RING - 1
        nb = 0; na = 0; nbb = 7*2; st = 0
        bper = o('bper', 2); f0 = o('f0', 27); q0 = o('q0', 32); c0 = o('c0', 35)
        fh = o('fh', 35); qh = o('qh', 38); ch = o('ch', 40)
        q1 = o('q1', 44); c1 = o('c1', 46); q2 = o('q2', 46); c2 = o('c2', 48); q3 = o('q3', 49); c3 = o('c3', 51)
        flagged = set()
        for s in range(58):
            misc = []; prep = []
            i = s - 40
            if s < 39: reads = self.wreads(s+1)
            elif s < 57: reads = self.breads(i+1)
            else: reads = []
            if s == 0: misc.append(self.wdma(4) + self.wprep(5))
            if s + D < 40: misc.append(self.wdma(s + D))
            if s + D + 1 < 40: prep = self.wprep(s + D + 1)
            pfs = [int(c) for c in str(o('pfs', '34')).split(',')] if o('pf', 1) else []
            if s in pfs:
                k_ = pfs.index(s)
                if o('pf', 1) == 1:
                    vp_ = v_ST
                    L_ = [[f'v_lshrrev_b32 v{vp_}, 6, v{v_l16}', f'v_lshlrev_b32 v{vp_}, 18, v{vp_}', f'v_add_lshl_u32 v{vp_}, v{vp_}, v{v_l16}, 6',
                           f'buffer_load_dword v{v_xo}, v{vp_}, {srd(sB2)}, s{s_pf2} offen offset:384'], [f'buffer_load_dword v{vp_}, v{vp_}, {srd(sBo)}, s{s_pfo} offen offset:384']]
                    assert s >= 14
                    misc.append(L_[k_] if len(pfs) == 2 else L_[0] + L_[1])
                else:
                    pre = [f'v_lshrrev_b32 v{v_b2}, 7, v{v_l16}', f'v_lshlrev_b32 v{v_b2}, 21, v{v_b2}', f'v_add_lshl_u32 v{v_b2}, v{v_b2}, v{v_l16}, 3'] if k_ == 0 else []
                    misc.append(pre + [f'buffer_load_dword v{v_ST+2+(k_ & 1)}, v{v_b2}, {srd(sB2 if k_ < 4 else sBo)}, s{s_pf2 if k_ < 4 else s_pfo} offen offset:{(k_ % 4)*1024}'])
            if s >= b0 and bpat[(s-b0) % len(bpat)] == '1' and nb < 14: misc.append(self.bdma_rot(border[nb])); nb += 1
            if s == 8: misc.append(self.poll_issue(sDBG, 0, FV))
            if s == 13: misc.append(self.poll_check(sDBG, 0, FV, 0xffff))
            quota = o('qa', 9)
            extra = self.xreads(s+2) if s < 14 else []
            if s == 16:
                assert not valu
                valu += self.ffn_epi(ACC0, 4 if A else 0, 'h0')
            if 16 <= s < 32: quota = o('qb', 17)
            if s == 32:
                assert not valu
                valu += self.kv_epi() if A else self.ffn_epi(ACC1, 8, 'h1')
            if 32 <= s < 40: quota = o('qc', 17)
            if s == 36:
                misc.append([f'v_xor_b32 v{self.badr[j]}, {j*32}, v{self.badr[0]}' for j in (1, 2, 3)])
            if 33 <= s <= 40: self.busy -= set(range(XF + 16*(s-33), XF + 16*(s-32)))
            if s == 38:
                if A: self.busy |= set(range(am0, am0+24)); valu += self.att_pre()
            if s == 40:
                valu += self.attention() if A else self.half_epi()
                self.dstamp(a, 4)
            if s == o('ra', 50):
                misc.append([f'buffer_load_dwordx4 v[0:3], v{v_oa}, {srd(sX)}, s{s_red} offen']); assert not valu
            if s == 56:
                valu += [f'v_xor_b32 v{v_T+j_}, {j_*64}, v{v_rw}' for j_ in (1, 2, 3)] + [f'v_xor_b32 v{v_T}, 16, v{v_rr}']
                for j_ in range(4): valu += [f'v_lshlrev_b32 v{8+2*j_}, 16, v{j_}', f'v_and_b32 v{9+2*j_}, 0xffff0000, v{j_}']
            if s >= 40: quota = o('qd', 100)
            for n_, k_ in enumerate(('sa', 'sb', 'sc')):
                if self.opt.get(k_, -1) == s: self.dstamp(a, 5 + n_, force=True)
            if s == 16: self.dstamp(a, 2)
            if s == 32: self.dstamp(a, 3)
            head = []; sp = o('sp', 1)
            def P(q, c, d, n, soff, line, woff, mask, extra=None, stamp=None):
                st_ = [lambda a: self.dstamp(a, stamp)] if stamp else []
                if s == q:
                    if sp: head.extend(self.spoll_issue(d, n, soff, line + woff))
                    else: misc.append(self.poll_issue(sWS, f's{soff}', line))
                if s == c:
                    if sp: head.extend(self.spoll_check(d, n, soff, line, mask, extra) + st_)
                    else: misc.append(self.poll_check(sWS, f's{soff}', line, mask) + st_)
            if s == f0: misc.append(self.flag(('h0', 1), 0))
            P(q0, c0, 16, 8, s_pl, 0, 0, 0xff, stamp=5)
            if s == c0: st = 1
            if A and s == fh: misc.append(self.flag(('halo', 1), 3))
            if A: P(qh, ch, 12, 1, s_hl, 0, 0, f's{s_hms}', extra=s_hms)
            if A and s == ch:
                misc.append([f's_cmp_eq_u32 s{s_hms}, 0', f's_cselect_b32 s{s_t1}, {OOB}, s{s_ha}', f's_sub_u32 s{s_t1}, s{s_t1}, 32768',
                             f'buffer_load_dwordx4 {vr(28,4)}, v{v_l16}, {srd(sWS)}, s{s_t1} offen sc1',
                             f'buffer_load_dwordx4 {vr(20,4)}, v{v_l16}, {srd(sWS)}, s{s_t1} offen offset:1024 sc1'])
            if A and s == ch + o('hlag', 1): valu.remove('HALO')
            if not valu and 'fin' in self.tok and not flagged and s >= self.at.setdefault('fin', s) + o('flag2', 1): misc.append(self.flag('fin', 2 if A else 1)); flagged.add(2)
            if s == q1: assert not any(isinstance(x, str) and 's[' in x and 'cndmask' in x for x in valu)
            P(q1, c1, 16, 4, s_pl, 128, 16, 0xf0, stamp=6)
            if s == c1:
                assert A or flagged
                st = 3
            P(q3, c3, 20, 4, s_pl, 256, 0, 0x0f, stamp=7)
            if s == c3:
                assert flagged
                st = 4
            plp = str(o('plp', 43))
            budget = o('pe', 2) if s < 40 else int(plp[(s-40) % len(plp)])
            pat = o('pat', '')
            if pat and s >= 33: budget = int((pat[1:] + '4'*30)[s-33])
            lim = [0, 16, 24, 28, 36][st]
            def b_ok():
                if nbb >= 36: return False
                k = nbb >> 1
                return s >= ({7: 36, 8: 38, 9: 40}[k] if k < 10 else 40 + k - 9)
            def a_ok(): return na < lim and (na < NA or i > (na - NA) >> 1) and not (set(range(self.aslot(na), self.aslot(na)+4)) & self.busy)
            while budget > 0:
                da = (na >> 1) if a_ok() else 99
                db = (nbb >> 1) - o('bahead', 2) if b_ok() else 99
                if min(da, db) == 99: break
                if da <= db: misc.append(self.aload(na)); na += 1
                else: misc.append(self.bdma(nbb >> 1, nbb & 1)); nbb += 1
                budget -= 1
            while s >= 39 and s < 57 and na < 2*(i+1) + 2:
                assert a_ok(), (s, na); misc.append(self.aload(na)); na += 1
            if o('verbose', 0): sys.stderr.write(f'{typ} step {s}: na {na} nbb {nbb} valu {len(valu)} flagged {flagged} misc {len(misc)}\n')
            if self.opt.get('fine', 0) & 1 and o('fs', 4) < s < 40: self.fstamp(a, s)
            if self.opt.get('fine', 0) & 2 and s >= 40: self.fstamp(a, s)
            ew = [('W', s+2)] if s < 38 else [('B', i+2, 0), ('B', i+2, 1), ('A', 2*i+2), ('A', 2*i+3)]
            lb = o('lb', 54)
            if s == lb:
                assert nbb == 36; ew += [('B', 17, 1)]
            self.redw = [f'ds_write_b128 v{v_T+j_ if j_ else v_rw}, {vr(ACC3 + (j_*2+t)*4, 4)} offset:{49152 + t*4096}' for j_ in range(4) for t in range(2)]
            if s == 57 and o('tw', 1):
                mf = self.mfmas(s); k0 = o('tw', 1) + 2
                for k_, m_ in enumerate(mf):
                    a(m_)
                    if k_ >= k0: a(self.redw.pop(0))
                continue
            self.step(a, self.mfmas(s), reads, misc, prep, valu, quota, ew, barrier=(s <= lb), extra=extra, head=head)
        assert not valu and na == 36 and nbb == 36
        self.dstamp(a, 8)
        for x in self.redw: a(x)
        a.wait(lg0=True); a.barrier()
        for k in range(4):
            for hf in range(2): a(f'ds_read_b128 {vr(WF+8*k+4*hf,4)}, v{v_T if hf else v_rr} offset:{k*16384}')
        for k in range(4):
            for e in range(8): a(f'v_add_f32 v{8+e}, v{8+e}, v{WF+8*k+e}')
        for k in range(4): a(f'v_cvt_pk_bf16_f32 v{k}, v{8+2*k}, v{9+2*k}')
        a(f'buffer_store_dwordx4 v[0:3], v{v_oa}, {srd(sOUT)}, s{s_red} offen sc0 sc1')
    def finish(self, a):
        if self.diag:
            a.wait(vm0=True)
            a(f's_memtime s[{s_st}:{s_st+1}]'); a(f's_memrealtime s[16:17]'); a.wait(lg0=True)
            a(f's_lshl_b32 s{s_t0}, s2, 3'); a(f's_add_u32 s{s_t0}, s{s_t0}, s{s_w}'); a(f's_lshl_b32 s{s_t0}, s{s_t0}, 6'); a(f's_add_u32 s{s_t0}, s{s_t0}, {STAMP - FV}')
            regs = [0] + [s_st+2+i for i in range(8)] + [1, 1] + [s_st, 3, 16]
            for i, s in enumerate(regs):
                a(f'v_mov_b32 v0, s{s}'); a(f'buffer_store_dword v0, v{v_fl}, {srd(sWS)}, s{s_t0} offen offset:{4*i}')
            if self.opt.get('fine'):
                a(f's_lshl_b32 s{s_t0}, s2, 3'); a(f's_add_u32 s{s_t0}, s{s_t0}, s{s_w}'); a(f's_lshl_b32 s{s_t0}, s{s_t0}, 8'); a(f's_add_u32 s{s_t0}, s{s_t0}, {STAMP+0x40000}')
                a(f'v_lshrrev_b32 v0, 2, v{v_l16}'); a(f'buffer_store_dword v{v_P2}, v0, {srd(sWS)}, s{s_t0} offen')
            if 'enc' in self.opt:
                i = self.opt['enc']; self.nlab += 1; n = self.nlab
                if i < 0: a(f's_mov_b32 s{s_t1}, 0')
                elif i == 9: a(f's_sub_u32 s{s_t1}, s16, s3')
                else: a(f's_lshr_b32 s{s_t1}, s{s_st+2+i if i < 8 else 1}, 16')
                a(f's_mul_i32 s{s_t1}, s{s_t1}, {self.o("enck", 1)}'); a(f's_add_u32 s{s_t1}, s{s_t1}, 4000')
                a.label(f'L_enc{n}')
                a(f's_memrealtime s[{s_st}:{s_st+1}]'); a.wait(lg0=True)
                a(f's_sub_u32 s{s_st}, s{s_st}, s3'); a(f's_cmp_lt_u32 s{s_st}, s{s_t1}'); a(f's_cbranch_scc1 L_enc{n}')
        a('s_endpgm')
    def build(self):
        self.tok = {}; self.lds_key = {4+k: ('X', k) for k in range(16)}; self.lds_rd = {4+k: [] for k in range(16)}; self.lds_wr = {4+k: [] for k in range(16)}
        a = Asm()
        self.prologue(a)
        a(f's_cmp_ge_u32 s{s_ty}, 2'); a('s_cbranch_scc1 L_typeB')
        parts = [a]
        base = copy.deepcopy((self.tok, self.lds_key, self.lds_rd, self.lds_wr))
        for typ in 'AB':
            b = a.fork(); self.tok, self.lds_key, self.lds_rd, self.lds_wr = copy.deepcopy(base); self.at = {}
            if typ == 'B': b.raw('.p2align 6'); b.label('L_typeB')
            self.main(b, typ)
            self.finish(b)
            parts.append(b)
        hdr = open('parallel_sum__sliding_local_dilated__glu_gated_swiglu__prompt.s.ref').read().split('\n')
        H = [l for l in hdr if l.startswith(';') and '@launch' not in l]
        H.append('; @launch grid=(256,1,1) block=(512,1,1) lds=163840')
        H += ['.amdgcn_target "amdgcn-amd-amdhsa--gfx950"', '.text', f'.globl {KN}', '.p2align 8', f'.type {KN},@function', f'{KN}:']
        T = ['L_end:', '    s_endpgm'] + self.slow + ['L_codeend:'] + table()
        T += ['.section .rodata,"a"', '.p2align 6', f'.amdhsa_kernel {KN}', '  .amdhsa_next_free_vgpr 256', '  .amdhsa_next_free_sgpr 102',
              '  .amdhsa_accum_offset 256', '  .amdhsa_group_segment_fixed_size 0', '  .amdhsa_kernarg_size 80', '  .amdhsa_user_sgpr_count 2',
              '  .amdhsa_user_sgpr_kernarg_segment_ptr 1', '  .amdhsa_system_sgpr_workgroup_id_x 1', '.end_amdhsa_kernel']
        sys.stderr.write('instr: ' + ' '.join(f'{p.ninst}(+{p.nnop} nops)' for p in parts) + '\n')
        return '\n'.join(H) + '\n' + ''.join(p.text() for p in parts) + '\n'.join(T) + '\n'

if __name__ == '__main__':
    out = sys.argv[1]; diag = 'diag' in sys.argv[2:]
    opt = {k: (int(v) if v.lstrip('-').isdigit() and not k.startswith('pfs') else v) for k, v in (x.split('=') for x in sys.argv[2:] if '=' in x)}
    DEF = dict(qb=24, f0=25, q0=31, c0=33, q1A=43, c1A=44, q3A=48, c3A=50, patA='p1122233363333333333', patB='p0023232533333333333', fh=34, qh=37, ch=39)
    if 'nodef' not in opt: opt = {**DEF, **opt}
    open(out, 'w').write(Gen(diag=diag, opt=opt).build())
```

```python
import sys, struct, math, copy
from asmlib import Asm, Ins

KN = 'parallel_sum__sliding_local_dilated__glu_gated_swiglu__prompt_kernel'
def f2u(x): return struct.unpack('<I', struct.pack('<f', x))[0]

HALO = 0xA00000; FLAGS = 0xC00000; STAMP = 0xD00000; WSSZ = 0xE00000
OOB = 0x40000000
LOG2E = 1.4426950408889634
FV = 64
HROW = 72*4096

sX, sWF, sWQ, sB2, sBo, sWS, sDBG, sOUT = 24, 28, 32, 36, 40, 44, 48, 52
TAB = 56
REC = ['wo0', 'wo1', 'wo2', 'wm', 'bm', 'b2', 'bo', 'hst', 'hs2', 'fl', 'pl', 'hl', 'hms', 'ha', 'hp', 'al', 'red', 'pf2',
       'bg0', 'bg1', 'bg2', 'bg3', 'bl0', 'bl1', 'bl2', 'bl3', 'wa', 'wb', 'lead', 'dbg', 'pfo', 'ct']
(s_wo0, s_wo1, s_wo2, s_wm, s_bm, s_b2, s_bo, s_hst, s_hs2, s_fl, s_pl, s_hl, s_hms, s_ha, s_hp, s_al, s_red, s_pf2,
 s_bg, _, _, _, s_bl, _, _, _, s_wa, s_wb, s_lead, s_dbg, s_pfo, s_ct) = range(TAB, TAB+32)
s_w, s_r, s_c, s_ty, s_t0, s_t1, s_t2, s_t3, s_rot, s_wt, s_xo, s_xm, s_xa = 4, 5, 6, 7, 8, 9, 10, 11, 13, 14, 15, 16, 17
s_cnt = 7; s_nl2e = 88
s_st = 90
CTS = 2
def record(wg, w):
    xcd, j = wg & 7, wg >> 3
    kp, ty, rb, rb64, ct = xcd & 3, j & 3, (xcd >> 2)*8 + (j >> 2), xcd*4 + (j >> 3), (j + CTS) & 7
    r, c = w >> 1, w & 1; A = ty < 2; R = {}
    R['wo0'] = (896*kp + 128*(2 + ty if A else ty - 2), r*16*3584)
    R['wo1'] = (128*(2*kp+ty) + 1024, r*16*3072 + c*1024) if A else (R['wo0'][0] + 512, R['wo0'][1])
    R['wo2'] = (128*(2*kp+ty), r*16*3072 + c*32*3072) if A else (896*kp + 768 + 64*(ty-2), r*32*3584)
    R['wm'] = (0, c*4096 + r*2048); R['bm'] = (0, w*4096)
    R['b2'] = (ct*128, w*448*1024); R['bo'] = (ct*128, w*128*1024)
    h = 2*rb*HROW + kp*18*4096
    R['hst'] = (h + (ty & 1)*8192, r*HROW + c*4096); R['hs2'] = (h + (12 + (ty & 1))*4096, r*HROW + c*512)
    R['fl'] = (FLAGS - FV + (8*rb + kp)*1024 + ty*8, r*4096 + c*4)
    R['pl'] = (FLAGS + 4*rb64*1024, w*1024)
    R['hl'] = (R['fl'][0] + FV - 4096 + 640, R['fl'][1])
    R['hms'] = (rb, r)
    R['ha'] = (HALO + (32*rb + 4*kp + 2*(ty & 1))*2048, (16*r + c)*2048)
    R['hp'] = (R['ha'][0] - 32768, R['ha'][1])
    R['al'] = (rb64*HROW, w*18*4096)
    for p in range(4):
        q = (p + rb64) & 3
        R[f'bg{p}'] = (q*8192 + ct*128, w*448*1024); R[f'bl{p}'] = (q*1024, w*4096)
    R['wa'] = (wg*4*1792, w*1792); R['wb'] = (wg*4*512, w*512)
    R['pf2'] = ((448*(j >> 3) + 192 + 32*(j & 7))*1024, w*8192); R['pfo'] = (j*16*1024, w*4096)
    lead = kp == 0 and ty == 0
    R['lead'] = (FLAGS + rb*8192 if lead else OOB, w*2048)
    R['dbg'] = (rb*4 if lead else OOB, 0 if w == 0 else 4096)
    R['red'] = (rb64*65536 + ct*128, w*16384)
    R['ct'] = (ct*512, 0)
    return [R[k] for k in REC]
def table():
    L = []
    for nm, wg0 in (('A', 0), ('B', 16)):
        L.append(f'.macro rec{nm} ' + ', '.join(f'p{i}' for i in range(32)))
        for w in range(4): L.append('.long ' + ', '.join(f'\\p{i}+{g}' for i, (f, g) in enumerate(record(wg0, w))))
        L.append('.endm')
    L += ['.p2align 7', '.type L_tab,@object', 'L_tab:']
    for wg in range(256): L.append(('recA ' if ((wg >> 3) & 3) < 2 else 'recB ') + ', '.join(str(f) for f, g in record(wg, 0)))
    L.append('.size L_tab, 131072')
    return L
def srd(b): return f's[{b}:{b+3}]'

ACC0, ACC1, WF = 0, 64, 128
(v_l16, v_tr0, v_tr1, v_trh, v_wf, v_wf1, v_wq, v_wq1, v_bv, v_fl, v_P, v_P2, v_xe, v_xo, v_oa, v_rw, v_rr, v_wo, v_hh, v_pf,
 v_b0, v_b1, v_b2, v_b3) = range(160, 184)
v_T = 184
v_KX = 200
EB = 208
ACC3 = 192
NA = 48
def vr(b, n): return f'v[{b}:{b+n-1}]' if n > 1 else f'v{b}'
def ar(b, n): return f'a[{b}:{b+n-1}]'

RING = 6
BSTEP = [('w2', 32*i, 1 if i >= 12 else 0) for i in range(14)] + [('wo', 32*i, 0) for i in range(4)]
SLOTB = [49152 + 16384*k for k in range(7)] + [32768, 0, 16384]

class Gen:
    def __init__(self, diag=False, opt=None):
        self.diag = diag; self.opt = opt or {}
        self.slow = []; self.nlab = 0
        ne = self.ne = self.opt.get('ne', 3)
        order = list(range(7)) + list(range(ne)) + [7, 8, 9] + list(range(ne, 7)) + [1, 2, 3, 4]
        if ne == 0: order = list(range(10)) + [0, 1, 2, 3, 4, 5, 6, 7]
        self.slot = order[:18]
        self.scr = 0 if ne else 49152
    def o(self, k, d): return self.opt.get(k, d)
    def bslot(self, i): return SLOTB[self.slot[i]]
    def dstamp(self, a, i, force=False):
        if not self.diag: return
        if 'sa' in self.opt and i in (5, 6, 7) and not force: return
        a(f's_memtime s[{s_st}:{s_st+1}]'); a(f's_memrealtime s[100:101]'); a.wait(lg0=True)
        d = s_st+2+i if i < 8 else 1
        a(f's_sub_u32 s{s_st}, s{s_st}, s0'); a(f's_sub_u32 s100, s100, s3'); a(f's_pack_ll_b32_b16 s{d}, s{s_st}, s100')
    def fstamp(self, a, i):
        if not (self.diag and self.opt.get('fine')): return
        a(f's_memtime s[{s_st}:{s_st+1}]'); a.wait(lg0=True)
        a(f's_sub_u32 s{s_st}, s{s_st}, s0'); a.raw(f'    v_writelane_b32 v{v_P2}, s{s_st}, {i}')
    def spin(self, k, sr, soff, off, mask):
        self.slow += [f'L_slow{k}:', f'    s_mov_b32 s{s_cnt}, 0', f'L_spin{k}:',
             f'    v_bfe_u32 v{v_P}, v{v_l16}, 2, 6', f'    buffer_load_dword v{v_P}, v{v_P}, {srd(sr)}, {soff} offen offset:{off} sc1', '    s_waitcnt vmcnt(0)',
             f'    v_cmp_eq_u32 vcc, {FV}, v{v_P}', '    s_nop 3', f'    s_and_b32 s{s_t0}, vcc_lo, {mask}', f'    s_cmp_eq_u32 s{s_t0}, {mask}',
             f'    s_cbranch_scc1 L_ok{k}', f'    s_add_u32 s{s_cnt}, s{s_cnt}, 1', f'    s_cmp_lt_u32 s{s_cnt}, 0x8000',
             f'    s_cbranch_scc1 L_spin{k}', f'    s_branch L_ok{k}']
    def poll_check(self, sr, soff, off, mask):
        def f(a):
            self.nlab += 1; n = self.nlab
            a(f'v_cmp_eq_u32 vcc, {FV}, v{v_P}')
            a(f's_and_b32 s{s_t0}, vcc_lo, {mask}'); a(f's_cmp_eq_u32 s{s_t0}, {mask}'); a(f's_cbranch_scc0 L_slow{n}')
            a.label(f'L_ok{n}'); self.spin(n, sr, soff, off, mask)
        return [f]
    def spoll_issue(self, d, n, soff, off):
        op = {1: 'dword', 4: 'dwordx4', 8: 'dwordx8'}[n]; dst = f's[{d}:{d+n-1}]' if n > 1 else f's{d}'
        self.smem_open = 1 if n == 1 else 2
        return [lambda a: a(f's_buffer_load_{op} {dst}, {srd(sWS)}, s{soff} offset:{off} glc', track=False)]
    def spoll_check(self, d, n, soff, line, mask, extra=None):
        self.smem_open = 0
        def f(a):
            self.nlab += 1; k = self.nlab
            a.smem_pending = True; a.wait(lg0=True)
            if n == 8: a(f's_and_b64 s[{d}:{d+1}], s[{d}:{d+1}], s[{d+4}:{d+5}]'); a(f's_and_b64 s[{d+2}:{d+3}], s[{d+2}:{d+3}], s[{d+6}:{d+7}]')
            if n >= 4: a(f's_and_b64 s[{d}:{d+1}], s[{d}:{d+1}], s[{d+2}:{d+3}]'); a(f's_and_b32 s{d}, s{d}, s{d+1}')
            if extra: a(f's_cmp_eq_u32 s{extra}, 0'); a(f's_cselect_b32 s{d}, {FV}, s{d}')
            if self.o('xc', 0) and line in (128, 256, 512): return
            a(f's_cmp_eq_u32 s{d}, {FV}'); a(f's_cbranch_scc0 L_slow{k}')
            a.label(f'L_ok{k}'); self.spin(k, sWS, f's{soff}', line, mask)
        return [f]
    def flag(self, key, stage):
        return [lambda a: a.wait(vm_tok=self.tok[key]),
                f'buffer_store_dword v{v_fl}, v{v_fl}, {srd(sWS)}, s{s_fl} offen offset:{stage*128} sc1']
    def wreg(self, slab): return s_wo0 + (slab & 1)
    def wprep(self, slab): return [f'v_readlane_b32 s{self.wreg(slab)}, v{v_wo}, {slab}']
    def wdma(self, slab):
        ch = 0 if slab < 16 else (1 if slab < 32 else 2)
        ffn = self.typ == 'B' or ch == 0
        vv = v_wf if ffn and ch < 2 else v_wq; sr = sWF if ffn else sWQ
        ld = lambda n: ('dma', f'buffer_load_dwordx4 v{vv+n}, {srd(sr)}, s{self.wreg(slab)} offen offset:{1024*n} lds', ('W', slab, n))
        return [[f's_add_u32 m0, s{s_wm}, {(slab % RING)*8192}', ld(0)], [ld(1)]]
    def bdma(self, n):
        i, p = n >> 2, n & 3
        mat, ro, half = BSTEP[i % 8 if self.o('xb', 0) else i]
        if i < 7 + self.ne and self.o('brot', 1): m0, so = f's{s_bl+p}, {self.bslot(i)}', f's{s_bg+p}, {ro*1024}'
        else: m0, so = f's{s_bm}, {self.bslot(i) + p*1024}', f's{s_b2 if mat == "w2" else s_bo}, {ro*1024 + ([0, 2, 1, 3][p] if half else p)*8192}'
        return [f's_add_u32 m0, {m0}', f's_add_u32 s{s_t1}, {so}',
                ('dma', f'buffer_load_dwordx4 v{v_bv}, {srd(sB2 if mat == "w2" else sBo)}, s{s_t1} offen lds', ('B', i, p))]
    def aslot(self, n): return (n % NA)*4
    def aload(self, n):
        i, t = n >> 2, n & 3
        if self.o('xa', 0): i &= 3
        return ([f's_add_u32 s{s_t2}, s{s_al}, {i*4096}'] if t == 0 else []) + \
               [('dma', f'buffer_load_dwordx4 {ar(self.aslot(n), 4)}, v{v_l16}, {srd(sWS)}, s{s_t2} offen offset:{t*1024} sc1', ('A', n))]
    def blocks(self, key):
        if not isinstance(key, tuple) or key[0] not in ('W', 'B', 'X'): return []
        if key[0] == 'W': return [key[1] % RING]
        if key[0] == 'X': return [4 + key[1]]
        return [self.bslot(key[1]) // 8192, self.bslot(key[1]) // 8192 + 1]
    def do(self, a, it):
        if isinstance(it, str): a(it)
        elif isinstance(it, list):
            for x in it: self.do(a, x)
        elif callable(it): it(a)
        elif it[0] == 'dma':
            key = it[2]; blocks = self.blocks(key)
            for b in blocks:
                if self.lds_key.get(b) != key[:2]:
                    priv = key[0] == 'B' and self.lds_key.get(b, ('-',))[0] == 'B'
                    for t in self.lds_rd.get(b, []): assert a.retired(t) if priv else a.done_at_barrier(t), ('WAR on LDS', key, b)
                    self.lds_key[b] = key[:2]; self.lds_rd[b] = []; self.lds_wr[b] = []
            self.tok[key] = a(it[1])
            for b in blocks: self.lds_wr[b].append(self.tok[key])
        elif it[0] == 'rd':
            key = it[2]
            for b in self.blocks(key):
                assert self.lds_key.get(b) == key, ('stale LDS read', key, self.lds_key.get(b))
                assert key[0] == 'X' or len(self.lds_wr[b]) == (2 if key[0] == 'W' else 4), key
                for t in self.lds_wr[b]: assert a.retired(t) if key[0] == 'B' else a.done_at_barrier(t), ('RAW on LDS', key)
            t = a(it[1])
            for b in self.blocks(key): self.lds_rd[b].append(t)
        else: raise ValueError(it)
    def weight(self, it):
        if isinstance(it, list): return sum(self.weight(x) for x in it)
        if isinstance(it, tuple): return self.weight(it[1])
        if isinstance(it, str):
            op = it.split()[0].replace('_e32','').replace('_e64','')
            if op.startswith('buffer'): return self.o('wv', 4)
            if op.startswith('v_mfma'): return 3
            return 2 if op in ('v_exp_f32','v_rcp_f32','v_rsq_f32') else 1
        return 0
    def xreads(self, s):
        L = []; v = v_xo if s & 1 else v_xe
        pre = [f'v_add_u32 v{v}, 0x10000, v{v}'] if s in (8, 9) else []
        for t in range(4):
            it = ('rd', f'ds_read_b128 {ar((4*s+t)*4,4)}, v{v} offset:{(s & 7)*8192 + t*1024}', ('X', s))
            L.append(pre + [it] if t == 0 else it)
        return L
    def prologue(self, a):
        o = self.o
        g, c16, T0, T1, T2, vR, vW, vW1, c8, row, lane, M0r, M1r, K512, ONE, ONE1, WB, WB1, Z = range(EB, EB+19)
        Z = EB + 20
        a(f's_load_dwordx2 s[{sX}:{sX+1}], s[0:1], 0')
        if self.diag: a(f's_memrealtime s[{s_st}:{s_st+1}]'); a(f's_memtime s[{s_st+2}:{s_st+3}]')
        a('s_cmp_ge_u32 s2, 256'); a('s_cbranch_scc1 L_end')
        a(f's_getpc_b64 s[{sWQ}:{sWQ+1}]'); a.label('L_pc')
        a(f'v_lshrrev_b32 v{T2}, 6, v0'); a(f'v_and_b32 v{T0}, 31, v0'); a(f'v_lshl_add_u32 v{T0}, v{T2}, 5, v{T0}'); a(f'v_lshlrev_b32 v{T0}, 2, v{T0}')
        a(f's_mov_b32 s{sWQ+2}, L_tab+131072-L_pc'); a(f's_mov_b32 s{sWQ+3}, 0x20000')
        a(f's_lshl_b32 s{s_t1}, s2, 9'); a(f's_add_u32 s{s_t1}, s{s_t1}, L_tab-L_pc')
        a(f'buffer_load_dword v{vR}, v{T0}, {srd(sWQ)}, s{s_t1} offen')
        a(f'v_readfirstlane_b32 s{s_w}, v{T2}')
        a(f'v_and_b32 v{T0}, 7, v0'); a(f'v_lshlrev_b32 v{T0}, 4, v{T0}'); a(f'v_bfe_u32 v{T1}, v0, 3, 3'); a(f'v_lshl_add_u32 v{v_oa}, v{T1}, 10, v{T0}')
        a(f's_bfe_u32 s{s_ty}, s2, 0x20003'); a(f's_lshr_b32 s{s_t2}, s2, 5')
        a(f's_and_b32 s{s_t0}, s2, 4'); a(f's_lshl1_add_u32 s{s_t0}, s{s_t0}, s{s_t2}')
        a(f's_and_b32 s{s_xm}, s{s_ty}, 1'); a(f's_and_b32 s{s_t3}, s2, {o("kr", 1)}'); a(f's_lshl1_add_u32 s{s_xm}, s{s_xm}, s{s_t3}')
        a(f's_lshl2_add_u32 s{s_xo}, s{s_t0}, s{s_w}'); a(f's_lshl2_add_u32 s{s_xo}, s{s_xo}, s{s_xm}'); a(f's_lshl_b32 s{s_xo}, s{s_xo}, 13')
        if o('k2', 1): a(f's_lshl1_add_u32 s{s_t2}, s2, s{s_t2}'); a(f's_and_b32 s{s_t2}, s{s_t2}, 7')
        a(f's_lshl_b32 s{s_wt}, s{s_t2}, 7'); a(f's_add_u32 s{s_wt}, s{s_xo}, s{s_wt}'); a(f's_add_u32 s{s_xo}, s{s_wt}, 1024')
        a(f's_mov_b32 s{sX+2}, {2049*1024}'); a(f's_mov_b32 s{sX+3}, 0x20000')
        s_rh = 12
        def xload(n):
            G, i = n >> 3, n & 7; L = []
            if i == 0 and G: L = [f's_xor_b32 s{s_xo}, s{s_xo}, {(G ^ (G-1))*8192}', f's_xor_b32 s{s_wt}, s{s_wt}, {(G ^ (G-1))*8192}']
            if i == 0: return L + [f'buffer_load_dwordx4 {vr(4*n,4)}, v{v_oa}, {srd(sX)}, s{s_xo} offen']
            return [f's_cmp_ge_u32 s{s_rh}, {8-i}', f's_cselect_b32 s{s_xa}, s{s_wt}, s{s_xo}', f'buffer_load_dwordx4 {vr(4*n,4)}, v{v_oa}, {srd(sX)}, s{s_xa} offen offset:{128*i}']
        a(f's_mov_b32 s{s_rh}, s{s_t2}')
        if o('cpf', 1):
            a(f's_mov_b32 s{sWQ+2}, L_codeend-L_pc')
            a(f's_lshr_b32 s{s_t0}, s2, 3'); a(f's_lshl_b32 s{s_t0}, s{s_t0}, 11')
            a(f'v_lshrrev_b32 v{T0}, 4, v0'); a(f'v_lshlrev_b32 v{T0}, 13, v{T0}'); a(f'v_add_lshl_u32 v{T0}, v{T0}, v0, 7')
            a(f'buffer_load_dword a255, v{T0}, {srd(sWQ)}, s{s_t0} offen')
        a(f'v_and_b32 v{lane}, 63, v0')
        a.wait(lg0=True)
        a(f's_sub_u32 s{sX}, s{sX}, 1024'); a(f's_subb_u32 s{sX+1}, s{sX+1}, 0')
        n0 = o('x0', 8)
        for n in range(n0): self.do(a, xload(n))
        if self.diag: a(f's_mov_b32 s3, s{s_st}'); a(f's_mov_b32 s89, s{s_st+2}')
        a(f's_and_b32 s{s_c}, s{s_w}, 1'); a(f's_lshr_b32 s{s_r}, s{s_w}, 1'); a(f's_lshl_b32 s{s_rot}, s{s_t2}, 1')
        a(f's_lshl3_add_u32 s22, s{s_c}, s0'); a('s_addc_u32 s23, s1, 0')
        a(f's_load_dwordx2 s[{sWF}:{sWF+1}], s[22:23], 32')
        for d, off in ((sB2, 48), (sBo, 16), (sWS, 72), (sDBG, 64), (sWQ, 8), (sOUT, 56)): a(f's_load_dwordx2 s[{d}:{d+1}], s[0:1], {off}')
        for d, n in ((sWF, 512*3584), (sWQ, 512*3072), (sB2, 1792*1024), (sBo, 512*1024), (sWS, WSSZ), (sDBG, 256), (sOUT, 2048*1024)):
            a(f's_mov_b32 s{d+2}, {n}'); a(f's_mov_b32 s{d+3}, 0x20000')
        a(f'v_mov_b32 v{ONE}, 0xbb00bb00'); a(f'v_mov_b32 v{ONE1}, 0xbb00bb00')
        L0 = f'v{lane}'
        a(f'v_lshrrev_b32 v{g}, 4, {L0}'); a(f'v_and_b32 v{c16}, 15, {L0}'); a(f'v_lshlrev_b32 v{v_l16}, 4, {L0}')
        a(f's_lshl_b32 s{s_t0}, s{s_r}, 12'); a(f's_add_u32 s{s_t0}, s{s_t0}, 32768')
        a(f'v_xor_b32 v{T0}, v{c16}, v{g}'); a(f'v_lshl_add_u32 v{T0}, v{T0}, 4, s{s_t0}'); a(f'v_lshl_add_u32 v{v_xe}, v{g}, 8, v{T0}'); a(f'v_xor_b32 v{v_xo}, 64, v{v_xe}')
        a(f's_lshr_b32 s{s_t0}, s{s_xm}, 1'); a(f's_lshl1_add_u32 s{s_t0}, s{s_w}, s{s_t0}'); a(f's_and_b32 s{s_t1}, s{s_xm}, 1'); a(f's_lshl3_add_u32 s{s_t0}, s{s_t0}, s{s_t1}')
        a(f's_lshl_b32 s{s_t0}, s{s_t0}, 7'); a(f's_add_u32 s{s_t0}, s{s_t0}, 32768')
        a(f'v_xor_b32 v{T0}, {L0}, v{T1}'); a(f'v_and_b32 v{T0}, 7, v{T0}'); a(f'v_lshl_add_u32 v{T0}, v{T0}, 4, s{s_t0}')
        a(f'v_bfe_u32 v{T2}, {L0}, 2, 1'); a(f'v_lshl_add_u32 v{T0}, v{T2}, 13, v{T0}'); a(f'v_and_b32 v{c8}, 3, {L0}'); a(f'v_lshl_add_u32 v{WB}, v{c8}, 8, v{T0}'); a(f'v_add_u32 v{WB1}, 0x10000, v{WB}')
        a(f'v_cmp_gt_u32 vcc, 2, v{c8}'); a(f'v_and_b32 v{T0}, 16, v{v_l16}'); a(f'v_mov_b32 v{T2}, 0xffff'); a(f'v_lshlrev_b32 v{T0}, v{T0}, v{T2}')
        a(f'v_cndmask_b32 v{M0r}, 0, v{T0}, vcc'); a(f'v_sub_u32 v{M1r}, v{T0}, v{M0r}'); a(f'v_mov_b32 v{K512}, {hex(f2u(1/512))}')
        a(f'v_add_u32 v{T0}, 2, {L0}'); a(f'v_lshrrev_b32 v{T0}, 4, v{T0}'); a(f'v_lshlrev_b32 v{T0}, 17, v{T0}'); a(f'v_add_lshl_u32 v{vW}, v{T0}, {L0}, 7')
        a(f'v_lshrrev_b32 v{T2}, 2, {L0}'); a(f'v_lshl_add_u32 v{vW1}, v{T2}, 24, v{vW}')
        a(f'v_lshlrev_b32 v{T0}, 14, v{T1}'); a(f'v_add_lshl_u32 v{v_pf}, v{T0}, {L0}, 10')
        for i in range(4): a(f'v_mov_b32 v{Z+i}, 0')
        a(f's_lshl_b32 s{s_t0}, s{s_w}, 12'); a(f's_add_u32 s{s_t1}, s{s_t0}, {SLOTB[0]}')
        a(f'v_and_b32 v{row}, 3, v{T1}'); a(f'v_lshl_add_u32 v{T0}, v{row}, 5, s{s_t1}'); a(f'v_lshl_add_u32 v{T0}, v{c8}, 3, v{T0}'); a(f'v_lshl_add_u32 v{v_b0}, v{T2}, 7, v{T0}')
        for j in (1, 2, 3): a(f'v_xor_b32 v{v_b0+j}, {32*j}, v{v_b0}')
        a(f's_movk_i32 s{s_t1}, 3584'); a(f's_movk_i32 s{s_t3}, 3072')
        a(f'v_and_b32 v{T0}, 32, {L0}'); a(f'v_lshl_add_u32 v{v_hh}, v{T0}, 4, v{v_l16}')
        a(f'v_lshlrev_b32 v{v_wq}, 4, v{c8}'); a(f'v_xor_b32 v{T0}, v{T0}, v{v_wq}'); a(f'v_mad_u32_u24 v{v_trh}, v{T2}, s{s_t1}, v{T0}')
        a(f's_lshl_b32 s{s_xa}, s{s_c}, 1'); a(f'v_xor_b32 v{v_tr0}, s{s_xa}, v{row}'); a(f'v_lshlrev_b32 v{v_tr0}, 5, v{v_tr0}'); a(f'v_lshl_add_u32 v{v_tr0}, v{c8}, 3, v{v_tr0}')
        a(f'v_and_b32 v{row}, 7, {L0}'); a(f'v_xor_b32 v{T0}, v{g}, v{row}'); a(f's_add_u32 s{s_t0}, s{s_t0}, {self.scr}'); a(f'v_lshl_add_u32 v{T0}, v{T0}, 4, s{s_t0}'); a(f'v_lshl_add_u32 v{v_rw}, v{c16}, 8, v{T0}')
        a(f's_lshl_b32 s{s_t0}, s{s_w}, 14'); a(f's_add_u32 s{s_t0}, s{s_t0}, {self.scr}')
        a(f'v_lshlrev_b32 v{T0}, 1, v{row}'); a(f'v_xor_b32 v{T0}, v{T0}, v{T1}'); a(f'v_lshl_add_u32 v{T0}, v{T0}, 4, s{s_t0}'); a(f'v_lshl_add_u32 v{v_rr}, v{T1}, 8, v{T0}')
        a(f'v_and_b32 v{T0}, 0x70, v{v_l16}'); a(f'v_lshlrev_b32 v{T2}, 5, v{g}'); a(f'v_xor_b32 v{v_bv}, v{T0}, v{T2}'); a(f'v_lshl_add_u32 v{v_bv}, v{T1}, 10, v{v_bv}')
        a(f'v_and_b32 v{T2}, 32, v{T2}'); a(f'v_xor_b32 v{T0}, v{T0}, v{T2}')
        a(f'v_mad_u32_u24 v{v_wf}, v{T1}, s{s_t1}, v{T0}'); a(f'v_mad_u32_u24 v{v_wq}, v{T1}, s{s_t3}, v{T0}')
        a(f'v_xor_b32 v{v_wf1}, 64, v{v_wf}'); a(f'v_add_u32 v{v_wf1}, {8*3584-1024}, v{v_wf1}'); a(f'v_xor_b32 v{v_wq1}, 64, v{v_wq}'); a(f'v_add_u32 v{v_wq1}, {8*3072-1024}, v{v_wq1}')
        a(f's_cmp_ge_u32 s{s_ty}, 2'); a('s_cselect_b64 vcc, -1, 0'); a(f'v_add_u32 v{T0}, {16*3584-1024}, v{v_trh}')
        a(f'v_cndmask_b32 v{v_wq}, v{v_wq}, v{v_trh}, vcc'); a(f'v_cndmask_b32 v{v_wq1}, v{v_wq1}, v{T0}, vcc')
        a(f'v_bfe_u32 v{row}, {L0}, 2, 2'); a(f'v_lshl_add_u32 v{row}, v{g}, 3, v{row}')
        a(f'v_lshl_add_u32 v{v_tr0}, v{row}, 7, v{v_tr0}'); a(f'v_xor_b32 v{v_tr1}, 32, v{v_tr0}')
        a(f's_lshl_b32 s{s_t0}, s{s_c}, 5'); a(f'v_xor_b32 v{T0}, s{s_t0}, v{T2}'); a(f'v_lshl_add_u32 v{T0}, v{c8}, 3, v{T0}'); a(f'v_lshl_add_u32 v{v_trh}, v{row}, 6, v{T0}')
        a(f'v_lshl_add_u32 v{v_fl}, {L0}, 25, {FV}'); a(f'v_lshlrev_b32 v{v_P}, 2, v{c16}')
        a(f'v_cmp_lt_u32 vcc, 31, {L0}'); a(f'v_lshlrev_b32 v{T0}, 1, {L0}'); a(f'v_cndmask_b32 v{T0}, {L0}, v{T0}, vcc')
        a(f'v_add_u32 v{T0}, s{s_rot}, v{T0}'); a(f'v_and_b32 v{T0}, 15, v{T0}'); a(f'v_lshlrev_b32 v{T0}, 5, v{T0}')
        a(f's_cmp_lt_u32 s{s_ty}, 2'); a(f's_cselect_b32 s{s_t3}, s{s_t3}, s{s_t1}')
        a(f'v_cmp_lt_u32 s[20:21], 15, {L0}'); a(f'v_mov_b32 v{T2}, s{s_t1}'); a(f'v_mov_b32 v{c8}, s{s_t3}'); a(f'v_cndmask_b32 v{T2}, v{T2}, v{c8}, s[20:21]')
        a(f'v_mul_u32_u24 v{v_wo}, v{T0}, v{T2}')
        for k, m in enumerate((0x22222222, 0x44444444, 0x88888888)): a(f's_mov_b32 s{18+2*k}, {hex(m)}'); a(f's_mov_b32 s{19+2*k}, {hex(m)}')
        a(f'v_lshlrev_b32 v{T0}, 2, v{g}'); a.wait(lg0=True)
        if self.diag: a('s_mov_b32 s0, s89')
        a(f'ds_bpermute_b32 v{T2}, v{T0}, v{vR}')
        for i in range(3, 32): a(f'v_readlane_b32 s{TAB+i}, v{vR}, {i}')
        a(f'v_add_u32 v{v_wo}, v{v_wo}, v{T2}')
        for k in range(2): self.do(a, ('dma', f'buffer_store_dwordx4 {vr(Z,4)}, v{v_l16}, {srd(sWS)}, s{s_lead} offen offset:{1024*k} sc1', 'zero'))
        a(f's_min_u32 s{s_hms}, s{s_hms}, 1'); a(f's_cmp_eq_u32 s{s_hms}, 0'); a(f's_cselect_b32 s{s_hp}, {OOB}, s{s_hp}')
        a(f's_mov_b32 s{s_nl2e}, {hex(f2u(-LOG2E))}')
        self.typ = 'A'
        self.do(a, self.wprep(0))
        self.dstamp(a, 0)
        wq = []
        for k in range(4): w_ = self.wdma(k); wq += [w_[0] + self.wprep(k+1), w_[1]]
        if o('bwarm', 1): wq += [[f'buffer_load_dword a254, v{vW}, {srd(sB2)}, s{s_wa} offen'], [f'buffer_load_dword a253, v{vW1}, {srd(sBo)}, s{s_wb} offen']]
        vq = [xload(n) for n in range(n0, 32)] + wq
        def issue(a):
            if vq: self.do(a, vq.pop(0))
        def stats(G):
            S = v_T + 8*(G & 1); Q = S + 4; X = 32*G; L = []
            for u in range(16):
                xp = vr(X+2*u, 2)
                L += [f'v_mfma_f32_4x4x4_16b_bf16 {vr(S,4)}, {vr(ONE,2)}, {xp}, {vr(S,4) if u else 0}', f'v_mfma_f32_4x4x4_16b_bf16 {vr(Q,4)}, {xp}, {xp}, {vr(Q,4) if u else 0}']
                if not u & 1: L.append(issue)
            return L
        def chain(G):
            S = v_T + 8*(G & 1); Q = S + 4; L = []; a = L.append
            dp = ['quad_perm:[1,0,3,2]', 'quad_perm:[2,3,0,1]', 'row_half_mirror']
            for k in range(3):
                a(f'v_add_f32_dpp v{S}, v{S}, v{S} {dp[k]} row_mask:0xf bank_mask:0xf'); a(f'v_cndmask_b32 v{Q}, v{Q}, v{Q+1+k}, s[{18+2*k}:{19+2*k}]')
            a(f'v_mul_f32 v{S+1}, v{S}, v{S}')
            for k in range(3): a(f'v_add_f32_dpp v{Q}, v{Q}, v{Q} {dp[k]} row_mask:0xf bank_mask:0xf')
            a(f'v_fma_f32 v{Q}, v{Q}, v{K512}, -v{S+1}'); a(f'v_max_f32 v{Q}, 0, v{Q}'); a(f'v_add_f32 v{Q}, {hex(f2u(1e-5))}, v{Q}'); a(f'v_rsq_f32 v{Q}, v{Q}')
            a(f'v_cvt_pk_bf16_f32 v{Q+1}, v{Q}, v{Q}')
            for k in (1, 2, 3, 0): a(f'v_mul_f32 v{S+k}, v{S}, v{Q}')
            a(f'v_and_b32 v{Q+2}, 0xffff0000, v{Q+1}'); a(f'v_sub_f32 v{Q+2}, v{Q}, v{Q+2}')
            a(f'v_and_b32 v{Q}, v{M0r}, v{Q+1}'); a(f'v_and_b32 v{Q+1}, v{M1r}, v{Q+1}')
            a(f'v_cvt_pk_bf16_f32 v{Q+3}, v{Q+2}, v{Q+2}'); a(f'v_and_b32 v{Q+2}, v{M0r}, v{Q+3}'); a(f'v_and_b32 v{Q+3}, v{M1r}, v{Q+3}')
            return L
        def norm(G):
            S = v_T + 8*(G & 1); Q = S + 4; X = 32*G; L = []; a = L.append
            D = lambda u: WF + 4*(u & 7)
            hi = lambda u: f'v_mfma_f32_4x4x4_16b_bf16 {vr(D(u),4)}, {vr(Q,2)}, {vr(X+2*u,2)}, {vr(S,4)}'
            lo = lambda u: f'v_mfma_f32_4x4x4_16b_bf16 {vr(D(u),4)}, {vr(Q+2,2)}, {vr(X+2*u,2)}, {vr(D(u),4)}'
            cv = lambda u: [f'v_cvt_pk_bf16_f32 v{X+2*u}, v{D(u)}, v{D(u)+1}', f'v_cvt_pk_bf16_f32 v{X+2*u+1}, v{D(u)+2}, v{D(u)+3}']
            if G:
                d = G ^ (G-1); d = (d & 1)*128 + (d >> 1)*1024
                a(f'v_xor_b32 v{WB}, {d}, v{WB}'); a(f'v_xor_b32 v{WB1}, {d}, v{WB1}')
            for u in range(3): a(hi(u))
            for u in range(19):
                if u + 3 < 16: a(hi(u+3))
                if u >= 3: a(cv(u-3)[0])
                if u < 16: a(lo(u))
                if u >= 3:
                    a(cv(u-3)[1])
                    if (u-3) & 1: i = (u-3) >> 1; a(f'ds_write_b128 v{WB+(i>>2)}, {vr(X+4*i,4)} offset:{(i&3)*16384}')
                if u in (2, 6, 10, 14)[:o('nmore', 2)]: a(issue)
            return L
        def merge(x, y, frm):
            k0 = int(len(x)*frm); n = len(x) - k0; L = list(x[:k0])
            for k in range(n): L += [x[k0+k]] + y[len(y)*k//n:len(y)*(k+1)//n]
            return L if n else L + y
        self.do(a, stats(0) + chain(0))
        mf = [int(c)/10 for c in str(o('mf', 'm952'))[1:]]
        for G in range(4):
            if self.opt.get('fine', 0) & 4: self.fstamp(a, 58 + G)
            self.do(a, merge(norm(G), stats(G+1) + chain(G+1), mf[G]) if G < 3 else norm(G))
        while vq: issue(a)
        if self.opt.get('fine', 0) & 4: self.fstamp(a, 62)
        a.wait(vm_tok=[self.tok[('W', 0, 1)]], lg0=True); a.barrier()
        self.dstamp(a, 1)
        for x in self.xreads(0) + self.wreads(0) + self.xreads(1): self.do(a, x)
        assert a.done_at_barrier(self.tok['zero'])
        a(f'buffer_store_dword v{v_fl}, v{v_fl}, {srd(sDBG)}, s{s_dbg} offen sc1')
    def wreads(self, s):
        buf = WF + (s & 1)*16; base = (s % RING)*8192; L = []
        for f in range(4):
            p, tf = f >> 1, f & 1
            for rd in range(2):
                if s >= 32 and self.typ == 'B': addr, off = v_trh, base + p*4096 + tf*2048 + rd*256
                else: addr, off = (v_tr1 if tf else v_tr0), base + p*4096 + rd*512
                L.append(('rd', f'ds_read_b64_tr_b16 {vr(buf+4*f+2*rd,2)}, v{addr} offset:{off}', ('W', s)))
        return L
    def bbuf(self, i): return EB + 16*i if i < self.ne else WF + (i & 1)*16
    def breads(self, i):
        buf = self.bbuf(i); L = []; base = self.bslot(i); pre = []
        if not (0 <= base - self.bwin and base - self.bwin + 16384 <= 65536):
            nb = 0 if base < 49152 else min(base, 98304)
            d = (nb - self.bwin) & 0xffffffff
            pre = [f'v_add_u32 v{v_b0+j}, {hex(d)}, v{v_b0+j}' for j in range(4)]; self.bwin = nb
        for j in range(4):
            for rd in range(2):
                it = ('rd', f'ds_read_b64_tr_b16 {vr(buf+4*j+2*rd,2)}, v{v_b0+j} offset:{base - self.bwin + rd*2048}', ('B', i))
                L.append([pre[j], it] if pre and rd == 0 else it)
        return L
    def mfmas(self, s):
        buf = WF + (s & 1)*16; L = []; typ = self.typ
        for f in range(4):
            p, tf = f >> 1, f & 1
            for t in (range(4) if not (f & 1 and self.o('snake', 1)) else (3, 2, 1, 0)):
                if s >= 40:
                    i = s - 40; acc = ar(ACC3 + (f*4+t)*4, 4)
                    L.append(f'v_mfma_f32_16x16x32_bf16 {acc}, {vr(self.bbuf(i)+4*f, 4)}, {ar(self.aslot(4*i+t), 4)}, {acc if i else 0}'); continue
                w = vr(buf+4*f, 4); swap = False
                if s < 32:
                    ks = s & 15; acc = (ACC0 if s < 16 else ACC1) + (f*4+t)*4
                    swap = (s >= 16 and typ == 'A' and p == 1)
                else:
                    u, cidx = (p, tf) if typ == 'A' else (tf, p)
                    ks = 2*(s-32) + u; acc = ACC0 + (cidx*4+t)*4
                x = ar((4*ks+t)*4, 4); C = vr(acc, 4) if ks else 0
                A, B = (x, w) if swap else (w, x)
                L.append(f'v_mfma_f32_16x16x32_bf16 {vr(acc,4)}, {A}, {B}, {C}')
        return L
    def silu2(self, b0, b1):
        def parts(G, U, O, T):
            return ([f'v_mul_f32 v{T+r}, s{s_nl2e}, v{G+r}' for r in range(4)], [f'v_exp_f32 v{T+r}, v{T+r}' for r in range(4)],
                    [f'v_mul_f32 v{U+r}, v{G+r}, v{U+r}' for r in range(4)], [f'v_add_f32 v{T+r}, 1.0, v{T+r}' for r in range(4)],
                    [f'v_rcp_f32 v{T+r}, v{T+r}' for r in range(4)], [f'v_mul_f32 v{U+r}, v{U+r}, v{T+r}' for r in range(4)],
                    [f'v_cvt_pk_bf16_f32 v{O}, v{U}, v{U+1}', f'v_cvt_pk_bf16_f32 v{O+1}, v{U+2}, v{U+3}'])
        A, B = parts(*b0), parts(*b1); il = lambda *ls: [x for t in zip(*ls) for x in t]
        return A[0] + il(A[1], B[0], A[2]) + il(B[1], A[3], B[2]) + il(A[4], B[3]) + il(B[4], A[5]) + A[6] + B[5] + B[6]
    def hstore(self, regs, t, key):
        return [('dma', f'buffer_store_dwordx4 {vr(regs,4)}, v{v_l16}, {srd(sWS)}, s{s_t3} offen offset:{t*1024} sc1', key)]
    def ffn_epi(self, acc, istep, key):
        L = [f's_add_u32 s{s_t3}, s{s_hst}, {istep*4096}']
        for t in range(4):
            O = acc + t*4
            L += self.silu2(*[(acc + (tf*4+t)*4, acc + ((2+tf)*4+t)*4, O + 2*tf, v_T + 4*tf) for tf in range(2)]) + self.hstore(O, t, key)
        return L
    def Kp(self, hh, t): return (v_KX + 4 if t < 0 else (v_KX if t == 3 else ACC0 + 52 + 4*t)) + 2*hh
    def Vp(self, hh, t): return ACC0 + 32 + (2*(3 - t) if hh == 0 else 10 + 2*(t + 1))
    def kv_epi(self):
        L = []
        K = lambda hh, t: ACC1 + (hh*4+t)*4
        V = lambda hh, t: ACC1 + 32 + (hh*4+t)*4
        pk = lambda d, s: [f'v_cvt_pk_bf16_f32 v{d}, v{s}, v{s+1}', f'v_cvt_pk_bf16_f32 v{d+1}, v{s+2}, v{s+3}']
        L += pk(v_KX, K(0,3)) + pk(v_KX+2, K(1,3))
        L += [('dma', f'buffer_store_dwordx4 {vr(v_KX,4)}, v{v_l16}, {srd(sWS)}, s{s_ha} offen sc1', ('halo', 0))]
        L += pk(v_T, V(0,3)) + pk(v_T+2, V(1,3))
        L += [('dma', f'buffer_store_dwordx4 {vr(v_T,4)}, v{v_l16}, {srd(sWS)}, s{s_ha} offen offset:1024 sc1', ('halo', 1))]
        for hh in range(2):
            for t in range(4): L += pk(self.Vp(hh, t), V(hh, t))
        for hh in range(2):
            for t in range(3): L += pk(self.Kp(hh, t), K(hh, t))
        return L
    def half_epi(self):
        L = []
        for tp in range(2):
            X = ACC0 + 32 + 4*tp
            L += self.silu2(*[(ACC0 + (2*tp+k)*4, ACC0 + (4+2*tp+k)*4, X + 2*k, v_T + 4*k) for k in range(2)])
            L += [f'v_permlane32_swap_b32 v{X}, v{X+2}', f'v_permlane32_swap_b32 v{X+1}, v{X+3}']
            L += [('dma', f'buffer_store_dwordx4 {vr(X,4)}, v{v_hh}, {srd(sWS)}, s{s_hs2} offen offset:{2048*tp} sc1', 'fin')]
        return L
    def att_pre(self):
        cur = [0]*4; prv = [0]*4
        for l in range(64):
            t, g = l & 15, l >> 4
            for r in range(4):
                i = 4*g + r
                if (i ^ t) & 1: continue
                if i <= t: cur[r] |= 1 << l
                else: prv[r] |= 1 << l
        Mc, Mp, Mp0, Ac, Ap, ONES, NEG, HM = self.am
        L = [f'v_mov_b32 v{NEG}, {hex(f2u(-1e30))}']
        def sel(d, f_, t_, m): L.append([f's_mov_b32 vcc_lo, {hex(m & 0xffffffff)}', f's_mov_b32 vcc_hi, {hex(m >> 32)}', f'v_cndmask_b32 v{d}, {f_}, {t_}, vcc'])
        full = (1 << 64) - 1
        for r in range(4): sel(Mc+r, 0, f'v{NEG}', full ^ cur[r]); sel(Mp+r, 0, f'v{NEG}', full ^ prv[r])
        L.append([f's_cmp_eq_u32 s{s_hms}, 0', 's_cselect_b64 vcc, -1, 0'] + [f'v_cndmask_b32 v{Mp0+r}, v{Mp+r}, v{NEG}, vcc' for r in range(4)])
        L += [f'v_and_b32 v{NEG}, 16, v{v_l16}', f'v_mov_b32 v{HM}, 0xffff', f'v_lshlrev_b32 v{HM}, v{NEG}, v{HM}']
        for d in range(2): sel(Ac+d, 0, f'v{HM}', cur[2*d] | cur[2*d+1])
        L += [f'v_xor_b32 v{Ap+d}, v{HM}, v{Ac+d}' for d in range(2)]
        L += [f'v_mov_b32 v{ONES+i}, 0x3f803f80' for i in range(4)]
        L += [f's_mov_b32 s14, {hex(f2u(0.25*LOG2E))}', f's_add_u32 s{s_t3}, s{s_hst}, {14*4096}']
        return L
    def attention(self, t0):
        Mc, Mp, Mp0, Ac, Ap, ONES, NEG, HM = self.am
        L = []; a = L.append
        Qa = lambda hh, t: ACC0 + (hh*4+t)*4
        units = [(0,t0),(1,t0),(0,t0+1),(1,t0+1)]
        for hh, t in units:
            q = Qa(hh, t); a(f'v_cvt_pk_bf16_f32 v{q}, v{q}, v{q+1}'); a(f'v_cvt_pk_bf16_f32 v{q+1}, v{q+2}, v{q+3}')
        Sg = lambda u: ACC1 + 8*u
        for u, (hh, t) in enumerate(units):
            a(f'v_mfma_f32_16x16x16_bf16 {vr(Sg(u)+4,4)}, {vr(self.Kp(hh,t),2)}, {vr(Qa(hh,t),2)}, {vr(Mc,4)}')
        for u, (hh, t) in reversed(list(enumerate(units))):
            if u == 1 and t == 0: a('HALO')
            a(f'v_mfma_f32_16x16x16_bf16 {vr(Sg(u),4)}, {vr(self.Kp(hh,t-1),2)}, {vr(Qa(hh,t),2)}, {vr(Mp0 if t == 0 else Mp,4)}')
        m = [v_T+u for u in range(4)]
        for u in (3, 2, 1, 0):
            S = Sg(u)
            a(f'v_max3_f32 v{S}, v{S}, v{S+1}, v{S+4}'); a(f'v_max3_f32 v{S+2}, v{S+2}, v{S+3}, v{S+6}')
            a(f'v_max_f32 v{S}, v{S}, v{S+5}'); a(f'v_max_f32 v{S+2}, v{S+2}, v{S+7}')
            a(f'v_max_f32 v{m[u]}, v{S}, v{S+2}')
        a(f'v_permlane32_swap_b32 v{m[2]}, v{m[3]}'); a(f'v_permlane32_swap_b32 v{m[0]}, v{m[1]}')
        a(f'v_max_f32 v{m[2]}, v{m[2]}, v{m[3]}'); a(f'v_max_f32 v{m[0]}, v{m[0]}, v{m[1]}')
        a(f'v_permlane16_swap_b32 v{m[0]}, v{m[2]}')
        a(f'v_max_f32 v{m[0]}, v{m[0]}, v{m[2]}')
        a(f'v_mul_f32 v{m[2]}, s14, v{m[0]}'); a(f'v_mul_f32 v{m[0]}, s14, v{m[0]}')
        a(f'v_permlane16_swap_b32 v{m[0]}, v{m[2]}')
        a(f'v_mov_b32 v{m[1]}, v{m[0]}'); a(f'v_mov_b32 v{m[3]}, v{m[2]}')
        a(f'v_permlane32_swap_b32 v{m[0]}, v{m[1]}'); a(f'v_permlane32_swap_b32 v{m[2]}, v{m[3]}')
        for u in range(4):
            S = Sg(u); a(f'v_fma_f32 v{S}, v{S}, s14, -v{m[u]}'); a(f'v_fma_f32 v{S+2}, v{S+2}, s14, -v{m[u]}')
        for u in range(4):
            S = Sg(u); a(f'v_exp_f32 v{S}, v{S}'); a(f'v_exp_f32 v{S+2}, v{S+2}')
        for u, (hh, t) in enumerate(units):
            S = Sg(u); P = S + 4
            a(f'v_cvt_pk_bf16_f32 v{S}, v{S}, v{S}'); a(f'v_cvt_pk_bf16_f32 v{S+2}, v{S+2}, v{S+2}')
            first, second = (Ac, Ap) if hh == 0 else (Ap, Ac)
            a(f'v_and_b32 v{P}, v{first}, v{S}'); a(f'v_and_b32 v{P+1}, v{first+1}, v{S+2}')
            a(f'v_and_b32 v{P+2}, v{second}, v{S}'); a(f'v_and_b32 v{P+3}, v{second+1}, v{S+2}')
        for u, (hh, t) in enumerate(units):
            S = Sg(u); P = S + 4; Vw = self.Vp(0, t) if hh == 0 else self.Vp(1, t-1)
            a(f'v_mfma_f32_16x16x32_bf16 {vr(S,4)}, {vr(ONES,4)}, {vr(P,4)}, 0')
            a(f'v_mfma_f32_16x16x32_bf16 {vr(Qa(hh,t),4)}, {vr(Vw,4)}, {vr(P,4)}, 0')
        for u in range(4): a(f'v_rcp_f32 v{m[u]}, v{Sg(u)}')
        for t in (t0, t0+1):
            O = v_T + 8 + 4*(t & 1)
            for hh in range(2):
                u = units.index((hh, t)); q = Qa(hh, t)
                for r in range(4): a(f'v_mul_f32 v{q+r}, v{q+r}, v{m[u]}')
                a(f'v_cvt_pk_bf16_f32 v{O+2*hh}, v{q}, v{q+1}'); a(f'v_cvt_pk_bf16_f32 v{O+2*hh+1}, v{q+2}, v{q+3}')
            L += self.hstore(O, t, 'fin')
        return L
    def step(self, a, mf, reads, misc, valu, quota, endwait, barrier, head):
        NG = 15 if barrier else 16; lastr = self.o('lastr', 11)
        gaps = [[] for _ in range(16)]
        gaps[0] += list(head)
        rg = [round(k*lastr/7) for k in range(8)] if len(reads) <= 8 else [k*(lastr+1)//len(reads) for k in range(len(reads))]
        for k, x in zip(rg, reads): gaps[k].append(x)
        mark = []
        if self.smem_open and reads:
            def dummy(a):
                if not mark: mark.append([t for t, _ in a.lg])
                a(f'ds_read_b32 v{v_P}, v{v_l16}'); a.lg[-1] = (a.lg[-1][0], set())
            for k in range(self.smem_open): gaps[rg[len(reads)-1] + k] += [dummy]
        free = [k for k in range(1, NG) if k not in rg[:len(reads)]]
        if len(free) < len(misc): free = list(range(1, NG))
        n = len(misc)
        for j, grp in enumerate(misc):
            k = free[(2*j+1)*len(free)//(2*n)]; grp = list(grp); hd = []
            while grp and isinstance(grp[0], str) and grp[0].startswith('s_add'): hd.append(grp.pop(0))
            kk = k - 1 if (j == 0 or self.lastk < k) else k
            gaps[kk] += hd; gaps[k] += grp; self.lastk = k
        take = []; w = 0
        while valu and valu[0] != 'HALO' and w + self.weight(valu[0]) <= quota + 0.01: w += self.weight(valu[0]); take.append(valu.pop(0))
        lvl = (sum(self.weight(g_) for g_ in gaps) + w + 1)/NG; cum = 0
        for k, m in enumerate(mf):
            a(m); self.do(a, gaps[k]); cum += self.weight(gaps[k])
            while take and k < NG and (cum + self.weight(take[0]) <= lvl*(k+1) + 0.5 or k == NG - 1):
                it = take.pop(0); cum += self.weight(it); self.do(a, it)
            if k == 14:
                if self.smem_open: a.wait(vm_tok=[self.tok[k_] for k_ in endwait if k_ in self.tok], lg_tok=mark[0] if mark else None)
                else: a.wait(vm_tok=[self.tok[k_] for k_ in endwait if k_ in self.tok], lg0=True)
        if barrier: a.barrier()
    def main(self, a, typ):
        o = lambda k, d: self.opt.get(k + typ, self.opt.get(k, d))
        self.typ = typ; A = typ == 'A'; ne = self.ne
        self.bwin = SLOTB[0]; self.smem_open = 0
        am0 = ACC1 + 32
        self.am = (am0, am0+4, am0+8, am0+12, am0+14, am0+16, am0+20, am0+21)
        a.wait(vm_tok=[self.tok[('W', 1, 1)]], lg0=True); a.barrier()
        valu = []
        D = RING; nw = 4; nb = 0; na = 0; st = 0; flagged = False
        f0 = o('f0', 27); c0 = o('c0', 33); fh = o('fh', 35); ch = o('ch', 40); c1 = o('c1', 45); c2 = o('c2', 48); c3 = o('c3', 51)
        bpat = str(o('bpat', 'b1211211211211111111122222222222'))[1:]; b0 = o('b0', 2); e0 = o('e0', 24)
        pat = str(o('pat', 'p2244444'))[1:] + str(o('pl', 6))*30
        for s in range(58):
            misc = []; head = []; i = s - 40
            if s < 39: reads = self.wreads(s+1)
            elif s < 57 and i + 1 >= ne: reads = self.breads(i+1)
            else: reads = []
            if s < 14: reads = self.xreads(s+2) + reads
            if e0 <= s < e0 + 2*ne: reads = reads + self.breads((s-e0) >> 1)[4*((s-e0) & 1):][:4]
            while nw < min(40, s + D + 1) and nw < 4 + 2*(s+1):
                w_ = self.wdma(nw); nw += 1; misc += [w_[0] + (self.wprep(nw) if nw < 40 else []), w_[1]]
            if s == o('pfs', 34) and o('pf', 1):
                misc += [[f'buffer_load_dword v{v_xe}, v{v_pf}, {srd(sB2)}, s{s_pf2} offen offset:384'], [f'buffer_load_dword v{v_xo}, v{v_pf}, {srd(sBo)}, s{s_pfo} offen offset:384']]
            if s == 8: misc.append([f'buffer_load_dword v{v_P}, v{v_P}, {srd(sDBG)}, 0 offen offset:{FV} sc1'])
            if s == 14: misc.append(self.poll_check(sDBG, 0, FV, 0xffff))
            if s == 16: valu += self.ffn_epi(ACC0, 4 if A else 0, 'h0')
            if s == 32:
                assert not valu
                valu += self.kv_epi() + self.att_pre() if A else self.ffn_epi(ACC1, 8, 'h1')
            if s == 40:
                if A: valu += self.attention(2) + self.attention(0)
                else:
                    he = self.half_epi(); k_ = len(he)*o('f1', 90)//100
                    valu += he[:k_] + [self.flag('h1', 1)] + he[k_:]
                self.dstamp(a, 4)
            quota = o('qb', 36) if s < 32 else (o('qc', 16 if A else 36) if s < 40 else o('qd', 120))
            if s == o('ra', 50):
                assert not valu
                misc += [[f'buffer_load_dwordx4 v[0:3], v{v_oa}, {srd(sX)}, s{s_red} offen offset:1024'], [f's_add_u32 s{s_t3}, s{s_red}, 8192', f'buffer_load_dwordx4 v[4:7], v{v_oa}, {srd(sX)}, s{s_t3} offen offset:1024']]
            if s == 56:
                valu += [f'v_xor_b32 v{v_T+j_}, {j_*64}, v{v_rw}' for j_ in (1, 2, 3)] + [f'v_xor_b32 v{v_T}, 16, v{v_rr}']
                for j_ in range(8): valu += [f'v_lshlrev_b32 v{8+2*j_}, 16, v{j_}', f'v_and_b32 v{9+2*j_}, 0xffff0000, v{j_}']
            for n_, k_ in enumerate(('sa', 'sb', 'sc')):
                if self.opt.get(k_, -1) == s: self.dstamp(a, 5 + n_, force=True)
            if s == 16: self.dstamp(a, 2)
            if s == 32: self.dstamp(a, 3)
            def P(c, lag, d, n, soff, line, woff, mask, extra=None, stamp=None):
                if s == c - lag:
                    assert not self.smem_open
                    head.extend(self.spoll_issue(d, n, soff, line + woff))
                if s == c: head.extend(self.spoll_check(d, n, soff, line, mask, extra) + ([lambda a: self.dstamp(a, stamp)] if stamp else []))
            if s == f0: misc.append(self.flag('h0', 0))
            P(c0, o('l0', 2), 16, 8, s_pl, 0, 0, 0xff, stamp=5)
            if s == c0: st = 1
            if A and s == fh: misc.append(self.flag(('halo', 1), 5))
            if A: P(ch, o('lh', 2), 12, 1, s_hl, 0, 0, f's{s_hms}', extra=s_hms)
            if A and s == ch:
                misc = [[f'buffer_load_dwordx4 {vr(self.Kp(0,-1),4)}, v{v_l16}, {srd(sWS)}, s{s_hp} offen sc1'],
                        [f'buffer_load_dwordx4 {vr(self.Vp(0,-1),4)}, v{v_l16}, {srd(sWS)}, s{s_hp} offen offset:1024 sc1']] + misc
            if A and s == ch + o('hlag', 1): valu.remove('HALO')
            if s > 40 and not valu and not flagged and s >= self.at.setdefault('fin', s) + o('flag2', 1): misc.append(self.flag('fin', 2 if A else 4)); flagged = True
            P(c1, o('l1', 2), 16, 4, s_pl, 128, 16, 0xf0, stamp=6)
            if s == c1: st = 2
            P(c2, o('l2', 2), 16, 4, s_pl, 512, 16, 0xf0)
            if s == c2:
                assert A or flagged
                st = 3
            P(c3, o('l3', 2), 20, 4, s_pl, 256, 0, 0x0f, stamp=7)
            if s == c3:
                assert flagged
                st = 4
            for k_, (c_, i0, i1) in enumerate(((c0, 0, 8), (c1, 8, 12), (c2, 12, 14), (c3, 14, 18))):
                if s == c_ and o('apf', 0) >> k_ & 1:
                    sh = {8: 5, 4: 4, 2: 3}[i1-i0]
                    misc.insert(0, [f's_mul_i32 s15, s{s_ct}, {i1-i0}', f's_add_u32 s15, s15, s{s_al}', f's_add_u32 s15, s15, {i0*4096}',
                                    f'v_lshrrev_b32 v{v_xe}, {4+sh}, v{v_l16}', f'v_lshlrev_b32 v{v_xe}, 22, v{v_xe}', f'v_add_lshl_u32 v{v_xe}, v{v_xe}, v{v_l16}, 3',
                                    f'buffer_load_dword v{v_xe}, v{v_xe}, {srd(sWS)}, s15 offen sc1'])
            def b_ok():
                if nb >= 72: return False
                k = nb >> 2; sl = self.slot[k]
                if k < 7: return s >= 2*k + 2
                prev = max([q for q in range(k) if self.slot[q] == sl], default=None)
                if prev is None: return s >= {7: 35, 8: 37, 9: 39}[sl]
                return s >= (e0 + 2*prev + 2 if prev < ne else 40 + prev)
            lim = [0, 32, 48, 56, 72][st]
            def a_ok(): return na < lim and (na < 8*(s-32) if na < NA else i > (na - NA) >> 2)
            budget = int(pat[s-33]) if s >= 33 else (int(bpat[(s-b0) % len(bpat)]) if s >= b0 else 0)
            while budget > 0:
                da = (na >> 2) if a_ok() else 99
                db = (nb >> 2) - o('bahead', 1) if b_ok() else 99
                if min(da, db) == 99: break
                if da <= db: misc.append(self.aload(na)); na += 1
                else: misc.append(self.bdma(nb)); nb += 1
                budget -= 1
            while 39 <= s < 57 and na < 4*(i+2):
                assert a_ok(), (s, na); misc.append(self.aload(na)); na += 1
            while 38 <= s < 56 and nb < 4*(i+3):
                assert b_ok(), (s, nb); misc.append(self.bdma(nb)); nb += 1
            if o('verbose', 0): sys.stderr.write(f'{typ} step {s}: na {na} nb {nb} nw {nw} valu {len(valu)} flagged {flagged} misc {len(misc)} reads {len(reads)}\n')
            if self.opt.get('fine', 0) & 1 and o('fs', 4) < s < 40: self.fstamp(a, s)
            if self.opt.get('fine', 0) & 2 and s >= 40: self.fstamp(a, s)
            ew = [('W', s+2, 1)] if s < 38 else [('B', i+2, 3), ('A', 4*i+7)]
            if e0 - 1 <= s < e0 + 2*ne - 1: ew.append(('B', (s+1-e0) >> 1, 3))
            redw = [f'ds_write_b128 v{v_T+j_ if j_ else v_rw}, {ar(ACC3 + (j_*4+t)*4, 4)} offset:{t*16384}' for j_ in range(4) for t in (range(4) if not (j_ & 1 and self.o('snake', 1)) else (3, 2, 1, 0))]
            if s == 57:
                for k_, m_ in enumerate(self.mfmas(s)):
                    a(m_)
                    if k_ >= o('tw', 7): a(redw.pop(0))
                break
            self.step(a, self.mfmas(s), reads, misc, valu, quota, ew, s < 39, head)
        assert not valu and na == 72 and nb == 72
        self.dstamp(a, 8)
        for x in redw: a(x)
        a.wait(lg0=True); a.barrier()
        for h in range(2):
            for k in range(4):
                for hf in range(2): a(f'ds_read_b128 {vr(ACC1+32*h+8*k+4*hf,4)}, v{v_T if hf else v_rr} offset:{k*4096 + h*2048}')
        for h in range(2):
            for k in range(4):
                for e in range(8): a(f'v_add_f32 v{8+8*h+e}, v{8+8*h+e}, v{ACC1+32*h+8*k+e}')
            for k in range(4): a(f'v_cvt_pk_bf16_f32 v{4*h+k}, v{8+8*h+2*k}, v{9+8*h+2*k}')
            a(f'buffer_store_dwordx4 {vr(4*h,4)}, v{v_oa}, {srd(sOUT)}, s{s_t3 if h else s_red} offen sc0 sc1')
    def finish(self, a):
        if self.diag:
            a.wait(vm0=True)
            a(f's_memtime s[{s_st}:{s_st+1}]'); a(f's_memrealtime s[16:17]'); a.wait(lg0=True)
            regs = [0] + [s_st+2+i for i in range(8)] + [1, 1] + [s_st, 3, 16]
            for dup in range(2):
                a(f's_lshl_b32 s{s_t0}, s2, 3'); a(f's_add_u32 s{s_t0}, s{s_t0}, s{s_w}'); a(f's_add_u32 s{s_t0}, s{s_t0}, {4*dup}'); a(f's_lshl_b32 s{s_t1}, s{s_t0}, 6'); a(f's_add_u32 s{s_t1}, s{s_t1}, {STAMP - FV}')
                for i, s in enumerate(regs):
                    a(f'v_mov_b32 v0, s{s}'); a(f'buffer_store_dword v0, v{v_fl}, {srd(sWS)}, s{s_t1} offen offset:{4*i}')
                if self.opt.get('fine'):
                    a(f's_lshl_b32 s{s_t0}, s{s_t0}, 8'); a(f's_add_u32 s{s_t0}, s{s_t0}, {STAMP+0x40000}')
                    a(f'v_lshrrev_b32 v0, 2, v{v_l16}'); a(f'buffer_store_dword v{v_P2}, v0, {srd(sWS)}, s{s_t0} offen')
        a('s_endpgm')
    def build(self):
        self.tok = {}; self.lds_key = {4+k: ('X', k) for k in range(16)}; self.lds_rd = {4+k: [] for k in range(16)}; self.lds_wr = {4+k: [] for k in range(16)}
        a = Asm()
        self.prologue(a)
        a(f's_cmp_ge_u32 s{s_ty}, 2'); a('s_cbranch_scc1 L_typeB')
        parts = [a]
        base = copy.deepcopy((self.tok, self.lds_key, self.lds_rd, self.lds_wr))
        for typ in 'AB':
            b = a.fork(); self.tok, self.lds_key, self.lds_rd, self.lds_wr = copy.deepcopy(base); self.at = {}
            if typ == 'B': b.raw('.p2align 6'); b.label('L_typeB')
            self.main(b, typ)
            self.finish(b)
            parts.append(b)
        hdr = open('parallel_sum__sliding_local_dilated__glu_gated_swiglu__prompt.s.ref').read().split('\n')
        H = [l for l in hdr if l.startswith(';') and '@launch' not in l]
        H.append('; @launch grid=(256,1,1) block=(256,1,1) lds=163840')
        H += ['.amdgcn_target "amdgcn-amd-amdhsa--gfx950"', '.text', f'.globl {KN}', '.p2align 8', f'.type {KN},@function', f'{KN}:']
        T = ['L_end:', '    s_endpgm'] + self.slow + ['L_codeend:'] + table()
        T += ['.section .rodata,"a"', '.p2align 6', f'.amdhsa_kernel {KN}', '  .amdhsa_next_free_vgpr 512', '  .amdhsa_next_free_sgpr 102',
              '  .amdhsa_accum_offset 256', '  .amdhsa_group_segment_fixed_size 0', '  .amdhsa_kernarg_size 80', '  .amdhsa_user_sgpr_count 2',
              '  .amdhsa_user_sgpr_kernarg_segment_ptr 1', '  .amdhsa_system_sgpr_workgroup_id_x 1', '.end_amdhsa_kernel']
        sys.stderr.write('instr: ' + ' '.join(f'{p.ninst}(+{p.nnop} nops)' for p in parts) + '\n')
        return '\n'.join(H) + '\n' + ''.join(p.text() for p in parts) + '\n'.join(T) + '\n'

if __name__ == '__main__':
    out = sys.argv[1]; diag = 'diag' in sys.argv[2:]
    opt = {k: (int(v) if v.lstrip('-').isdigit() else v) for k, v in (x.split('=') for x in sys.argv[2:] if '=' in x)}
    DEF = dict(pl=5, qb=37, qcB=37, c1=46, c2=49, c3=52, c0=35, e0=14, bpat='b2222222200002222222222220000000', pat='p004444488855', flag2=3, fh=34, ch=39, f1=50)
    if 'nodef' not in opt: opt = {**DEF, **opt}
    open(out, 'w').write(Gen(diag=diag, opt=opt).build())
```
